```python
import torch

def _softmax(x, axis=-1):
    return torch.softmax(x, dim=axis)
def _gelu(x):
    return torch.nn.functional.gelu(x, approximate="tanh")
def _silu(x):
    return torch.nn.functional.silu(x)
def _sigmoid(x):
    return torch.sigmoid(x)
def _layernorm(x, axis=-1, eps=1e-5):
    m = x.mean(dim=axis, keepdim=True)
    v = x.var(dim=axis, keepdim=True, unbiased=False)
    return (x - m) / torch.sqrt(v + eps)
def _scatter_add(tgt, idx, src, axis=0):
    return tgt.clone().index_add_(axis, idx, src)
def _segment_sum(src, seg, n):
    out = torch.zeros((n,) + src.shape[1:], dtype=src.dtype)
    return out.index_add_(0, seg, src)
def _pad(x, pw):
    flat = tuple(v for pair in reversed(pw) for v in pair)
    return torch.nn.functional.pad(x, flat)

kernel_name = 'concat_heads__compressed_kv_cla__sliding_local_dilated__prompt'

def setup_inputs():

    _w = (lambda a: (lambda t: t.to(torch.bfloat16) if t.is_floating_point() else t)(torch.as_tensor(a)))
    def _A_setup():
        B, H, Sq, Sk, D, M = 1, 32, 2048, 2048, 128, 1024
        Dc = 4 * D
        return {
            "x": _w((lambda *s: torch.randn(*s, dtype=torch.bfloat16) * 0.2)(B, Sq, M)),
            "c_kv": _w((lambda *s: torch.randn(*s, dtype=torch.bfloat16) * 1.6)(B, Sk, Dc)),
            "w_q": _w((lambda *s: torch.randn(*s, dtype=torch.bfloat16) * 3.2)(M, H, D) * (M ** -0.5)),
            "w_uk": _w((lambda *s: torch.randn(*s, dtype=torch.bfloat16) * 3.2)(Dc, H, D) * (Dc ** -0.5)),
            "w_uv": _w((lambda *s: torch.randn(*s, dtype=torch.bfloat16) * 1.6)(Dc, H, D) * (Dc ** -0.5)),
            "w_o": _w((lambda *s: torch.randn(*s, dtype=torch.bfloat16) * 1.6)(H, D, M) * ((H * D) ** -0.5)),
        }
    _A_in = _A_setup()

    def _B_setup():
        B, S, D = 1, 2048, 1024
        return {
            "x": _w((lambda *s: torch.randn(*s, dtype=torch.bfloat16) * 0.2)(B, S, D)),
            "wqkv": _w((lambda *s: torch.randn(*s, dtype=torch.bfloat16) * 0.2)(D, 3 * D)),
            "wo": _w((lambda *s: torch.randn(*s, dtype=torch.bfloat16) * 0.05)(D, D)),
        }
    _B_in = _B_setup()

    return {
        "A_x": _A_in["x"],
        "A_c_kv": _A_in["c_kv"],
        "A_w_q": _A_in["w_q"],
        "A_w_uk": _A_in["w_uk"],
        "A_w_uv": _A_in["w_uv"],
        "A_w_o": _A_in["w_o"],
        "B_x": _B_in["x"],
        "B_wqkv": _B_in["wqkv"],
        "B_wo": _B_in["wo"],
    }

def reference(A_x, A_c_kv, A_w_q, A_w_uk, A_w_uv, A_w_o, B_x, B_wqkv, B_wo):
    def _A_ref(x, c_kv, w_q, w_uk, w_uv, w_o):
        B, Sq, M = x.shape[0], x.shape[1], x.shape[2]
        Sk = c_kv.shape[1]
        H, D = w_q.shape[1], w_q.shape[2]
        q = torch.einsum("bqm,mhd->bhqd", x, w_q)
        k = torch.einsum("bkc,chd->bhkd", c_kv, w_uk)
        v = torch.einsum("bkc,chd->bhkd", c_kv, w_uv)
        scores = torch.einsum("bhqd,bhkd->bhqk", q, k) * (D ** -0.5)
        off = Sk - Sq
        qi = torch.arange(Sq)[:, None]
        kj = torch.arange(Sk)[None, :]
        cmask = kj <= (qi + off)
        scores = torch.where(cmask[None, None], scores, -1e9)
        p = _softmax(scores, axis=-1)
        ctx = torch.einsum("bhqk,bhkd->bhqd", p, v)
        return torch.einsum("bhqd,hdm->bqm", ctx, w_o)

    def _B_ref(x, wqkv, wo):
        B, S, D = x.shape
        H = 32; Dh = D // H
        W, dil = 8, 2
        qkv = (lambda x, *d: x.permute(*d))((x @ wqkv).reshape(B, S, 3, H, Dh), 2, 0, 3, 1, 4)
        q, k, v = qkv[0], qkv[1], qkv[2]
        scale = Dh ** -0.5
        pos = torch.arange(S)
        off = torch.arange(W) * dil
        idx = pos[:, None] - off[None, :]
        mask = idx >= 0
        idx_c = torch.where(mask, idx, 0).reshape(-1)
        kg = k[:, :, idx_c, :].reshape(B, H, S, W, Dh)
        vg = v[:, :, idx_c, :].reshape(B, H, S, W, Dh)
        logits = torch.einsum("bhsd,bhswd->bhsw", q, kg) * scale
        logits = torch.where(mask[None, None, :, :], logits, -1e9)
        attn = _softmax(logits, axis=-1)
        o = torch.einsum("bhsw,bhswd->bhsd", attn, vg)
        return (lambda x, *d: x.permute(*d))(o, 0, 2, 1, 3).reshape(B, S, D) @ wo

    a = _A_ref(A_x, A_c_kv, A_w_q, A_w_uk, A_w_uv, A_w_o)
    b = _B_ref(B_x, B_wqkv, B_wo)
    return torch.concatenate([a, b], axis=-1)
```

```python
import re

TRANS = ("v_exp_f32", "v_log_f32", "v_rcp_f32", "v_rsq_f32", "v_sqrt_f32", "v_sin_f32", "v_cos_f32")

_reg_re = re.compile(r"(?<![\w.])([vsa])(\d+)(?![\w])|(?<![\w.])([vsa])\[(\d+):(\d+)\]|\b(vcc|exec|m0|scc)\b")


def regs_of(text):
    out = []
    for m in _reg_re.finditer(text):
        if m.group(1):
            out.append((m.group(1), int(m.group(2))))
        elif m.group(3):
            for i in range(int(m.group(4)), int(m.group(5)) + 1):
                out.append((m.group(3), i))
        else:
            out.append((m.group(6), 0))
    return out


def split_ops(s):
    ops, depth, cur = [], 0, ""
    for ch in s:
        if ch == "[":
            depth += 1
        elif ch == "]":
            depth -= 1
        if ch == "," and depth == 0:
            ops.append(cur.strip())
            cur = ""
        else:
            cur += ch
    if cur.strip():
        ops.append(cur.strip())
    return ops


class Ins:
    __slots__ = ("text", "mn", "kind", "wr", "rd", "states", "label", "target", "passes",
                 "srcc", "dst", "trans", "dpp", "wide_store_data", "ab")

    def __init__(self, text):
        self.text = text
        self.label = None
        self.target = None
        self.wr = set()
        self.rd = set()
        self.states = 1
        self.kind = "other"
        self.passes = 0
        self.srcc = ()
        self.dst = ()
        self.ab = set()
        self.trans = False
        self.dpp = False
        self.wide_store_data = set()
        t = text.split(";")[0].strip()
        if t.endswith(":"):
            self.label = t[:-1]
            self.kind = "label"
            self.states = 0
            self.mn = ""
            return
        if not t or t.startswith("."):
            self.kind = "directive"
            self.states = 0
            self.mn = ""
            return
        parts = t.split(None, 1)
        mn = parts[0]
        self.mn = mn
        rest = parts[1] if len(parts) > 1 else ""
        ops = split_ops(rest)
        R = regs_of
        if mn == "s_nop":
            self.kind = "nop"
            self.states = int(ops[0], 0) + 1
        elif mn.startswith("s_cbranch") or mn == "s_branch":
            self.kind = "branch"
            self.target = ops[0]
            if "vcc" in mn:
                self.rd.add(("vcc", 0))
        elif mn.startswith("v_mfma"):
            self.kind = "mfma"
            self.passes = 8 if "32x32x16" in mn else 4
            self.dst = tuple(R(ops[0]))
            self.wr = set(self.dst)
            self.ab = set(R(ops[1])) | set(R(ops[2]))
            self.srcc = tuple(R(ops[3]))
            self.rd = self.ab | set(self.srcc)
        elif mn.startswith("v_"):
            self.kind = "valu"
            self.trans = any(mn.startswith(x) for x in TRANS)
            self.dpp = "dpp" in mn or "quad_perm" in t or "row_" in t
            if mn.startswith("v_permlane32_swap") or mn.startswith("v_permlane16_swap"):
                self.kind = "permlane"
                self.wr = set(R(ops[0])) | set(R(ops[1]))
                self.rd = set(self.wr)
            elif mn.startswith("v_add_co") or mn.startswith("v_addc_co") or mn.startswith("v_sub_co"):
                self.wr = set(R(ops[0])) | set(R(ops[1]))
                for o in ops[2:]:
                    self.rd |= set(R(o))
            else:
                self.wr = set(R(ops[0]))
                for o in ops[1:]:
                    self.rd |= set(R(o))
                if mn.startswith("v_fmac") or mn.startswith("v_pk_fmac") or mn.startswith("v_dot2c"):
                    self.rd |= self.wr
                if mn.startswith("v_cndmask") and len(ops) == 3:
                    self.rd.add(("vcc", 0))
                if mn.startswith("v_readfirstlane") or mn.startswith("v_readlane"):
                    self.kind = "readlane"
        elif mn.startswith("ds_"):
            self.kind = "ds"
            if mn.startswith("ds_read") or mn.startswith("ds_bpermute") or mn.startswith("ds_swizzle"):
                self.wr = set(R(ops[0]))
                for o in ops[1:]:
                    self.rd |= set(R(o))
            else:
                for o in ops:
                    self.rd |= set(R(o))
        elif mn.startswith("buffer_") or mn.startswith("global_"):
            self.kind = "vmem"
            is_lds = re.search(r"\blds\b", t) is not None or "load_lds" in mn
            if is_lds:
                self.kind = "ldsdma"
                for o in ops:
                    self.rd |= set(R(o))
                self.rd.add(("m0", 0))
            elif "load" in mn:
                self.wr = set(R(ops[0]))
                for o in ops[1:]:
                    self.rd |= set(R(o))
            else:
                for o in ops:
                    self.rd |= set(R(o))
                if "x4" in mn or "x3" in mn:
                    d = ops[0] if mn.startswith("buffer_") else ops[1]
                    self.wide_store_data = set(R(d))
        elif mn.startswith("s_"):
            self.kind = "salu"
            if mn.startswith("s_cmp") or mn in ("s_barrier", "s_waitcnt", "s_endpgm", "s_setprio", "s_sleep"):
                for o in ops:
                    self.rd |= set(R(o))
            elif ops:
                self.wr = set(R(ops[0]))
                for o in ops[1:]:
                    self.rd |= set(R(o))


VALUISH = ("valu", "permlane", "readlane")


def need(p, c):
    n = 0
    if p.kind in VALUISH:
        vw = {r for r in p.wr if r[0] in "va"}
        sw = {r for r in p.wr if r[0] in ("s", "vcc")}
        if vw:
            if c.kind == "mfma" and vw & c.rd:
                n = max(n, 2)
            if c.kind == "permlane" and vw & c.rd:
                n = max(n, 2)
            if c.kind == "valu" and c.dpp and vw & c.rd:
                n = max(n, 2)
            if c.kind == "readlane" and vw & c.rd:
                n = max(n, 1)
            if p.trans and c.kind in VALUISH and not c.trans and vw & (c.rd | c.wr):
                n = max(n, 1)
        if sw:
            if c.kind in VALUISH and sw & c.rd:
                n = max(n, 2)
            if c.kind in ("vmem", "ldsdma") and sw & c.rd:
                n = max(n, 5)
            if c.kind in ("salu", "branch") and sw & c.rd:
                n = max(n, 1)
    if p.kind == "valu" and p.mn.startswith("v_dot"):
        d = p.wr
        if d & (c.rd | c.wr):
            if c.mn == p.mn:
                ops = split_ops(c.text.split(";")[0].strip().split(None, 1)[1])
                ab = set(regs_of(ops[1])) | set(regs_of(ops[2]))
                if d & ab:
                    n = max(n, 3)
            else:
                n = max(n, 3)
    if p.kind == "mfma":
        d = p.wr
        if c.kind == "mfma":
            if d & c.ab:
                n = max(n, p.passes + 4)
            if d & set(c.srcc):
                if c.srcc == p.dst and c.passes == p.passes:
                    pass
                else:
                    n = max(n, p.passes + 2)
            elif d & c.wr:
                n = max(n, p.passes + 4)
        elif c.kind in VALUISH + ("vmem", "ds", "ldsdma"):
            if d & (c.rd | c.wr):
                n = max(n, p.passes + 4)
        if c.kind in VALUISH and set(p.srcc) & c.wr:
            n = max(n, p.passes - 1)
    if p.kind == "salu" and ("m0", 0) in p.wr and c.kind == "ldsdma":
        n = max(n, 1)
    if p.wide_store_data and p.wide_store_data & c.wr:
        n = max(n, 2 if c.kind in VALUISH else 1)
    return n


WIN = 24


class Asm:
    def __init__(self):
        self.ins = []
        self.nlab = 0

    def __call__(self, text):
        for line in text.split("\n"):
            line = line.strip()
            if line:
                self.ins.append(Ins(line))

    def label(self, name):
        self.ins.append(Ins(name + ":"))

    _glab = [0]

    def newlabel(self, prefix="L"):
        Asm._glab[0] += 1
        return "%s_%d" % (prefix, Asm._glab[0])

    def _fix_linear(self):
        out = []
        for c in self.ins:
            if c.states > 0 and c.kind != "nop":
                dist = 0
                req = 0
                k = len(out) - 1
                cnt = 0
                while k >= 0 and cnt < WIN:
                    p = out[k]
                    if p.states > 0:
                        r = need(p, c) - dist
                        req = max(req, r)
                        dist += p.states
                        cnt += 1
                    k -= 1
                while req > 0:
                    n = min(req, 16)
                    out.append(Ins("s_nop %d" % (n - 1)))
                    req -= n
            out.append(c)
        self.ins = out

    def _fix_branches(self):
        changed = True
        while changed:
            changed = False
            lab = {x.label: i for i, x in enumerate(self.ins) if x.label}
            for j, b in enumerate(self.ins):
                if b.kind != "branch" or b.target not in lab:
                    continue
                i = lab[b.target]
                pre = [x for x in self.ins[max(0, j - 3 * WIN):j + 1] if x.states > 0][-WIN:]
                post = [x for x in self.ins[i:i + 3 * WIN] if x.states > 0][:WIN]
                worst = 0
                d_post = 0
                for c in post:
                    dist = d_post
                    for p in reversed(pre):
                        worst = max(worst, need(p, c) - dist)
                        dist += p.states
                    d_post += c.states
                if worst > 0:
                    self.ins.insert(j, Ins("s_nop %d" % (worst - 1)))
                    changed = True
                    break

    def _auto_lgkm(self):
        out = []
        pend = []
        for c in self.ins:
            if c.kind in ("label", "branch") or c.mn in ("s_barrier", "s_endpgm"):
                if any(pend):
                    out.append(Ins("s_waitcnt lgkmcnt(0)"))
                pend = []
                out.append(c)
                continue
            if c.mn == "s_waitcnt":
                m = re.search(r"lgkmcnt\((\d+)\)", c.text)
                if m:
                    n = int(m.group(1))
                    pend = pend[max(0, len(pend) - n):] if n else []
                out.append(c)
                continue
            touch = c.rd | c.wr
            last = -1
            for i, d in enumerate(pend):
                if d & touch:
                    last = i
            if last >= 0:
                n = len(pend) - 1 - last
                n = min(n, 15)
                out.append(Ins("s_waitcnt lgkmcnt(%d)" % n))
                pend = pend[len(pend) - n:] if n else []
            if c.kind == "ds":
                pend.append(set(c.wr))
            out.append(c)
        self.ins = out

    def finish(self, auto_lgkm=False):
        if auto_lgkm:
            self._auto_lgkm()
        self._fix_linear()
        self._fix_branches()
        s = []
        for x in self.ins:
            if x.kind == "label":
                s.append(x.text)
            else:
                s.append("  " + x.text)
        return "\n".join(s) + "\n"


def interleave(main, fill, per=None):
    out = []
    nm = len(main)
    nf = len(fill)
    if nm == 0:
        return list(fill)
    k = 0
    for i, m in enumerate(main):
        out.append(m)
        tgt = (nf * (i + 1) + nm - 1) // nm if per is None else min(nf, per * (i + 1))
        while k < tgt:
            out.append(fill[k])
            k += 1
    out.extend(fill[k:])
    return out


def cost(ins):
    mn = ins.split(None, 1)[0]
    if any(mn.startswith(x) for x in TRANS):
        return 2.0
    if mn.startswith("s_"):
        return 0.5
    return 1.0


def weave(items, fill, lead=0.0):
    tot = sum(cost(x) for x in fill)
    out = []
    k = 0
    acc = 0.0
    n = len(items)
    while k < len(fill) and acc < lead * tot:
        out.append(fill[k]); acc += cost(fill[k]); k += 1
    base = acc
    for i, it in enumerate(items):
        out.extend(it)
        tgt = base + (tot - base) * (i + 1) / n
        while k < len(fill) and acc + cost(fill[k]) * 0.5 <= tgt:
            out.append(fill[k]); acc += cost(fill[k]); k += 1
    out.extend(fill[k:])
    return out
```

```python
import re

TRANS = ("v_exp_f32", "v_log_f32", "v_rcp_f32", "v_rsq_f32", "v_sqrt_f32", "v_sin_f32", "v_cos_f32")

_reg_re = re.compile(r"(?<![\w.])([vsa])(\d+)(?![\w])|(?<![\w.])([vsa])\[(\d+):(\d+)\]|\b(vcc|exec|m0|scc)\b")


def regs_of(text):
    out = []
    for m in _reg_re.finditer(text):
        if m.group(1):
            out.append((m.group(1), int(m.group(2))))
        elif m.group(3):
            for i in range(int(m.group(4)), int(m.group(5)) + 1):
                out.append((m.group(3), i))
        else:
            out.append((m.group(6), 0))
    return out


def split_ops(s):
    ops, depth, cur = [], 0, ""
    for ch in s:
        if ch == "[":
            depth += 1
        elif ch == "]":
            depth -= 1
        if ch == "," and depth == 0:
            ops.append(cur.strip())
            cur = ""
        else:
            cur += ch
    if cur.strip():
        ops.append(cur.strip())
    return ops


class Ins:
    __slots__ = ("text", "mn", "kind", "wr", "rd", "states", "label", "target", "passes",
                 "srcc", "dst", "trans", "dpp", "wide_store_data", "ab")

    def __init__(self, text):
        self.text = text
        self.label = None
        self.target = None
        self.wr = set()
        self.rd = set()
        self.states = 1
        self.kind = "other"
        self.passes = 0
        self.srcc = ()
        self.dst = ()
        self.ab = set()
        self.trans = False
        self.dpp = False
        self.wide_store_data = set()
        t = text.split(";")[0].strip()
        if t.endswith(":"):
            self.label = t[:-1]
            self.kind = "label"
            self.states = 0
            self.mn = ""
            return
        if not t or t.startswith("."):
            self.kind = "directive"
            self.states = 0
            self.mn = ""
            return
        parts = t.split(None, 1)
        mn = parts[0]
        self.mn = mn
        rest = parts[1] if len(parts) > 1 else ""
        ops = split_ops(rest)
        R = regs_of
        if mn == "s_nop":
            self.kind = "nop"
            self.states = int(ops[0], 0) + 1
        elif mn.startswith("s_cbranch") or mn == "s_branch":
            self.kind = "branch"
            self.target = ops[0]
            if "vcc" in mn:
                self.rd.add(("vcc", 0))
        elif mn.startswith("v_mfma"):
            self.kind = "mfma"
            self.passes = 8 if "32x32x16" in mn else 4
            self.dst = tuple(R(ops[0]))
            self.wr = set(self.dst)
            self.ab = set(R(ops[1])) | set(R(ops[2]))
            self.srcc = tuple(R(ops[3]))
            self.rd = self.ab | set(self.srcc)
        elif mn.startswith("v_"):
            self.kind = "valu"
            self.trans = any(mn.startswith(x) for x in TRANS)
            self.dpp = "dpp" in mn or "quad_perm" in t or "row_" in t
            if mn.startswith("v_permlane32_swap") or mn.startswith("v_permlane16_swap"):
                self.kind = "permlane"
                self.wr = set(R(ops[0])) | set(R(ops[1]))
                self.rd = set(self.wr)
            elif mn.startswith("v_add_co") or mn.startswith("v_addc_co") or mn.startswith("v_sub_co"):
                self.wr = set(R(ops[0])) | set(R(ops[1]))
                for o in ops[2:]:
                    self.rd |= set(R(o))
            else:
                self.wr = set(R(ops[0]))
                for o in ops[1:]:
                    self.rd |= set(R(o))
                if mn.startswith("v_fmac") or mn.startswith("v_pk_fmac") or mn.startswith("v_dot2c"):
                    self.rd |= self.wr
                if mn.startswith("v_cndmask") and len(ops) == 3:
                    self.rd.add(("vcc", 0))
                if mn.startswith("v_readfirstlane") or mn.startswith("v_readlane"):
                    self.kind = "readlane"
        elif mn.startswith("ds_"):
            self.kind = "ds"
            if mn.startswith("ds_read") or mn.startswith("ds_bpermute") or mn.startswith("ds_swizzle"):
                self.wr = set(R(ops[0]))
                for o in ops[1:]:
                    self.rd |= set(R(o))
            else:
                for o in ops:
                    self.rd |= set(R(o))
        elif mn.startswith("buffer_") or mn.startswith("global_"):
            self.kind = "vmem"
            is_lds = re.search(r"\blds\b", t) is not None or "load_lds" in mn
            if is_lds:
                self.kind = "ldsdma"
                for o in ops:
                    self.rd |= set(R(o))
                self.rd.add(("m0", 0))
            elif "load" in mn:
                self.wr = set(R(ops[0]))
                for o in ops[1:]:
                    self.rd |= set(R(o))
            else:
                for o in ops:
                    self.rd |= set(R(o))
                if "x4" in mn or "x3" in mn:
                    d = ops[0] if mn.startswith("buffer_") else ops[1]
                    self.wide_store_data = set(R(d))
        elif mn.startswith("s_"):
            self.kind = "salu"
            if mn.startswith("s_cmp") or mn.startswith("s_bitcmp") or mn in ("s_barrier", "s_waitcnt", "s_endpgm", "s_setprio", "s_sleep"):
                for o in ops:
                    self.rd |= set(R(o))
            elif ops:
                self.wr = set(R(ops[0]))
                for o in ops[1:]:
                    self.rd |= set(R(o))


VALUISH = ("valu", "permlane", "readlane")


def need(p, c):
    n = 0
    if p.kind in VALUISH:
        vw = {r for r in p.wr if r[0] in "va"}
        sw = {r for r in p.wr if r[0] in ("s", "vcc")}
        if vw:
            if c.kind == "mfma" and vw & c.rd:
                n = max(n, 2)
            if c.kind == "permlane" and vw & c.rd:
                n = max(n, 2)
            if c.kind == "valu" and c.dpp and vw & c.rd:
                n = max(n, 2)
            if c.kind == "readlane" and vw & c.rd:
                n = max(n, 1)
            if p.trans and c.kind in VALUISH and not c.trans and vw & (c.rd | c.wr):
                n = max(n, 1)
        if sw:
            if c.kind in VALUISH and sw & c.rd:
                n = max(n, 2)
            if c.kind in ("vmem", "ldsdma") and sw & c.rd:
                n = max(n, 5)
            if c.kind in ("salu", "branch") and sw & c.rd:
                n = max(n, 1)
    if p.kind == "valu" and p.mn.startswith("v_dot"):
        d = p.wr
        if d & (c.rd | c.wr):
            if c.mn == p.mn:
                ops = split_ops(c.text.split(";")[0].strip().split(None, 1)[1])
                ab = set(regs_of(ops[1])) | set(regs_of(ops[2]))
                if d & ab:
                    n = max(n, 3)
            else:
                n = max(n, 3)
    if p.kind == "mfma":
        d = p.wr
        if c.kind == "mfma":
            if d & c.ab:
                n = max(n, p.passes + 4)
            if d & set(c.srcc):
                if c.srcc == p.dst and c.passes == p.passes:
                    pass
                else:
                    n = max(n, p.passes + 2)
            elif d & c.wr:
                n = max(n, p.passes + 4)
        elif c.kind in VALUISH + ("vmem", "ds", "ldsdma"):
            if d & (c.rd | c.wr):
                n = max(n, p.passes + 4)
        if c.kind in VALUISH and set(p.srcc) & c.wr:
            n = max(n, p.passes - 1)
    if p.kind == "salu" and ("m0", 0) in p.wr and c.kind == "ldsdma":
        n = max(n, 1)
    if p.wide_store_data and p.wide_store_data & c.wr:
        n = max(n, 2 if c.kind in VALUISH else 1)
    return n


WIN = 24


class Asm:
    def __init__(self):
        self.ins = []
        self.nlab = 0

    def __call__(self, text):
        for line in text.split("\n"):
            line = line.strip()
            if line:
                self.ins.append(Ins(line))

    def label(self, name, keep=False):
        self.ins.append(Ins(name + ":" + (" ;@keep" if keep else "")))

    _glab = [0]

    def newlabel(self, prefix="L"):
        Asm._glab[0] += 1
        return "%s_%d" % (prefix, Asm._glab[0])

    def _fix_linear(self):
        out = []
        for c in self.ins:
            if c.states > 0 and c.kind != "nop":
                dist = 0
                req = 0
                k = len(out) - 1
                cnt = 0
                while k >= 0 and cnt < WIN:
                    p = out[k]
                    if p.states > 0:
                        r = need(p, c) - dist
                        req = max(req, r)
                        dist += p.states
                        cnt += 1
                    k -= 1
                while req > 0:
                    n = min(req, 16)
                    out.append(Ins("s_nop %d" % (n - 1)))
                    req -= n
            out.append(c)
        self.ins = out

    def _fix_branches(self):
        changed = True
        while changed:
            changed = False
            lab = {x.label: i for i, x in enumerate(self.ins) if x.label}
            for j, b in enumerate(self.ins):
                if b.kind != "branch" or b.target not in lab:
                    continue
                i = lab[b.target]
                pre = [x for x in self.ins[max(0, j - 3 * WIN):j + 1] if x.states > 0][-WIN:]
                post = [x for x in self.ins[i:i + 3 * WIN] if x.states > 0][:WIN]
                worst = 0
                d_post = 0
                for c in post:
                    dist = d_post
                    for p in reversed(pre):
                        worst = max(worst, need(p, c) - dist)
                        dist += p.states
                    d_post += c.states
                if worst > 0:
                    self.ins.insert(j, Ins("s_nop %d" % (worst - 1)))
                    changed = True
                    break

    def _auto_lgkm(self, want=False):
        out = []
        pend = []
        for c in self.ins:
            if ";@setpend" in c.text:
                body = c.text.split(";@setpend")[1]
                pend = [set(regs_of(x)) for x in body.split("|") if x.strip()]
                continue
            need_only = None
            if ";@need" in c.text:
                need_only = set(regs_of(c.text.split(";@need")[1]))
            elif c.kind in ("label", "branch") or c.mn in ("s_barrier", "s_endpgm", "s_setpc_b64", "s_swappc_b64"):
                if ";@keep" not in c.text:
                    if pend:
                        out.append(Ins("s_waitcnt lgkmcnt(0)"))
                    pend = []
                out.append(c)
                continue
            if c.mn == "s_waitcnt":
                m = re.search(r"lgkmcnt\((\d+)\)", c.text)
                if m:
                    n = int(m.group(1))
                    pend = pend[max(0, len(pend) - n):] if n else []
                out.append(c)
                continue
            if c.mn.startswith("s_load") or c.mn.startswith("s_mem") or c.mn.startswith("s_buffer_load"):
                assert not pend, "scalar memory op with LDS ops pending: " + c.text
            touch = need_only if need_only is not None else (c.rd | c.wr)
            last = -1
            for i, d in enumerate(pend):
                if d & touch:
                    last = i
            if last >= 0:
                n = len(pend) - 1 - last
                n = min(n, 15)
                out.append(Ins("s_waitcnt lgkmcnt(%d)" % n))
                pend = pend[len(pend) - n:] if n else []
            if need_only is not None:
                continue
            if c.kind == "ds":
                pend.append(set(c.wr))
            out.append(c)
        self.ins = out
        return pend

    def replay_vm(self, upto, n=64):
        ops = []
        for p in reversed(self.ins[:upto]):
            if p.text.startswith(";@vmstop"):
                break
            if p.text.startswith(";@phantom"):
                ops.append(p.text)
            elif p.kind in ("vmem", "ldsdma") and ";@cond" not in p.text:
                m = re.search(r";@vm (\S+)", p.text)
                ops.append(";@phantom " + (m.group(1) if m else "-"))
            if len(ops) >= n:
                break
        self(";@vmstop")
        for x in reversed(ops):
            self(x)

    def pend_text(self):
        tmp = Asm()
        tmp.ins = list(self.ins)
        tmp._resolve_vm()
        return ";@setpend " + " | ".join(" ".join("%s%d" % r for r in sorted(d)) or "v999" for d in tmp._auto_lgkm(True))

    def _resolve_vm(self):
        out = []
        for i, c in enumerate(self.ins):
            if not c.text.startswith(";@waitvm"):
                out.append(c)
                continue
            parts = c.text.split(None, 2)
            tags = set(parts[1].split(","))
            extra = parts[2] if len(parts) > 2 else ""
            n = 0
            found = False
            for p in reversed(self.ins[:i]):
                if p.text.startswith(";@vmstop"):
                    break
                ph = p.text.startswith(";@phantom")
                if ph or (p.kind in ("vmem", "ldsdma") and ";@cond" not in p.text):
                    m = re.search(r";@(?:vm|phantom) (\S+)", p.text)
                    if m and m.group(1) in tags:
                        found = True
                        break
                    n += 1
            assert found, c.text
            out.append(Ins("s_waitcnt vmcnt(%d) %s" % (min(n, 63), extra)))
        self.ins = out

    def finish(self, auto_lgkm=False):
        self._resolve_vm()
        if auto_lgkm:
            self._auto_lgkm()
        self._fix_linear()
        self._fix_branches()
        s = []
        for x in self.ins:
            t = x.text.split(";@")[0].rstrip()
            if not t:
                continue
            if x.kind == "label":
                s.append(t)
            else:
                s.append("  " + t)
        return "\n".join(s) + "\n"


def interleave(main, fill, per=None):
    out = []
    nm = len(main)
    nf = len(fill)
    if nm == 0:
        return list(fill)
    k = 0
    for i, m in enumerate(main):
        out.append(m)
        tgt = (nf * (i + 1) + nm - 1) // nm if per is None else min(nf, per * (i + 1))
        while k < tgt:
            out.append(fill[k])
            k += 1
    out.extend(fill[k:])
    return out


def cost(ins):
    mn = ins.split(None, 1)[0]
    if any(mn.startswith(x) for x in TRANS):
        return 2.0
    if mn.startswith("s_"):
        return 0.5
    return 1.0


def weave(items, fill, lead=0.0):
    tot = sum(cost(x) for x in fill)
    out = []
    k = 0
    acc = 0.0
    n = len(items)
    while k < len(fill) and acc < lead * tot:
        out.append(fill[k]); acc += cost(fill[k]); k += 1
    base = acc
    for i, it in enumerate(items):
        out.extend(it)
        tgt = base + (tot - base) * (i + 1) / n
        while k < len(fill) and acc + cost(fill[k]) * 0.5 <= tgt:
            out.append(fill[k]); acc += cost(fill[k]); k += 1
    out.extend(fill[k:])
    return out


import struct as _struct


def f32bits(x):
    return _struct.unpack("<I", _struct.pack("<f", x))[0]


def srd(a, d, lo, hi, size, off=0):
    if off:
        a("s_add_u32 s%d, s%d, %d" % (d, lo, off))
        a("s_addc_u32 s%d, s%d, 0" % (d + 1, hi))
    else:
        a("s_mov_b32 s%d, s%d" % (d, lo))
        a("s_mov_b32 s%d, s%d" % (d + 1, hi))
    a("s_mov_b32 s%d, %d" % (d + 2, size))
    a("s_mov_b32 s%d, 0x00020000" % (d + 3))


def place(main, fill):
    by = {}
    for p, t in fill:
        by.setdefault(min(p, len(main) - 1), []).append(t)
    out = list(by.get(-1, []))
    for i, m in enumerate(main):
        out.append(m)
        out += by.get(i, [])
    return out


def v4(b):
    return "v[%d:%d]" % (b, b + 3)


def v2(b):
    return "v[%d:%d]" % (b, b + 1)


class Col:
    def __init__(self):
        self.L = []

    def __call__(self, text):
        for line in text.split("\n"):
            if line.strip():
                self.L.append(line.strip())

    def atoms(self, n=2):
        out = []
        glue = False
        for x in self.L:
            mn = x.split()[0]
            cons = mn.startswith("s_cselect") or mn.startswith("s_addc") or mn.startswith("v_cndmask")
            if out and (cons or glue or len(out[-1]) < n):
                out[-1].append(x)
            else:
                out.append([x])
            glue = mn.startswith("s_cmp") or mn.startswith("v_cmp")
        for i in range(1, len(out)):
            assert not out[i][0].split()[0].startswith(("s_addc", "s_cselect", "v_cndmask"))
        return out
```

```python
import os
MB = 1 << 20
WS_Q = 0
WS_KV = 16 * MB
WS_QKVB = 48 * MB
WS_CTX = 64 * MB
WS_OB = 80 * MB
WS_XCH = 96 * MB
FLG = 8 * MB
FLG_T, FLG_B, FLG_END = FLG + 4096, FLG + 12288, FLG + 16384
WS_TL = 200 * MB
FL = set(os.environ.get("FL", "").split(",")) | (set() if os.environ.get("NODEF") else {"warmonly", "warmb", "bnorot"})


def envi(name, default):
    return int(os.environ.get(name, default))


class TL:
    MAP = {(0, 0): 0, (0, 1): 1, (0, 2): 2, (0, 9): 3, (0, 10): 4, (1, 1): 5, (1, 2): 6, (1, 6): 7, (2, 5): 8, (2, 2): 9, (2, 4): 10, (2, 3): 11}
    if os.environ.get("TLMAP"):
        MAP = eval(os.environ["TLMAP"])

    def __init__(self, a, k, ptr_lo, on):
        self.a, self.k, self.lo, self.on = a, k, ptr_lo, on

    def early(self):
        if self.on and self.k == 0:
            for r in range(66, 90):
                self.a("s_mov_b32 s%d, 0" % r)
        self.stamp(0)

    def stamp(self, slot, *_, **__):
        if not self.on or (self.k, slot) not in self.MAP:
            return
        slot = self.MAP[(self.k, slot)]
        a = self.a
        a("s_waitcnt lgkmcnt(0)")
        a("s_memrealtime s[96:97]\ns_memtime s[98:99]\ns_waitcnt lgkmcnt(0)")
        a("s_mov_b32 s%d, s96\ns_mov_b32 s%d, s98" % (66 + 2 * slot, 67 + 2 * slot))

    def dump(self, vt, wave_sreg, wave=None):
        if not self.on or self.k != 2:
            return
        a = self.a
        L = a.newlabel("Ltl")
        a("s_cmp_lg_u32 %s, %d" % (wave_sreg, envi("TLW", 0)))
        a("s_cbranch_scc1 %s" % L)
        a("s_add_u32 s92, s%d, %d" % (self.lo, WS_TL))
        a("s_addc_u32 s93, s%d, 0" % (self.lo + 1))
        a("s_mov_b32 s94, 65536")
        a("s_mov_b32 s95, 0x00020000")
        a("s_lshl_b32 s100, s2, 7")
        a("s_mov_b64 exec, 1")
        a("v_mov_b32 v%d, 0" % (vt + 2))
        for slot in range(12):
            a("v_mov_b32 v%d, s%d" % (vt, 66 + 2 * slot))
            a("v_mov_b32 v%d, s%d" % (vt + 1, 67 + 2 * slot))
            a("buffer_store_dwordx2 v[%d:%d], v%d, s[92:95], s100 offen offset:%d" % (vt, vt + 1, vt + 2, slot * 8))
            a("s_waitcnt vmcnt(0)")
        a("s_mov_b64 exec, -1")
        a.label(L)
```

```python
import re

TRANS = ("v_exp_f32", "v_log_f32", "v_rcp_f32", "v_rsq_f32", "v_sqrt_f32", "v_sin_f32", "v_cos_f32")

_reg_re = re.compile(r"(?<![\w.])([vsa])(\d+)(?![\w])|(?<![\w.])([vsa])\[(\d+):(\d+)\]|\b(vcc|exec|m0|scc)\b")


def regs_of(text):
    out = []
    for m in _reg_re.finditer(text):
        if m.group(1):
            out.append((m.group(1), int(m.group(2))))
        elif m.group(3):
            for i in range(int(m.group(4)), int(m.group(5)) + 1):
                out.append((m.group(3), i))
        else:
            out.append((m.group(6), 0))
    return out


def split_ops(s):
    ops, depth, cur = [], 0, ""
    for ch in s:
        if ch == "[":
            depth += 1
        elif ch == "]":
            depth -= 1
        if ch == "," and depth == 0:
            ops.append(cur.strip())
            cur = ""
        else:
            cur += ch
    if cur.strip():
        ops.append(cur.strip())
    return ops


class Ins:
    __slots__ = ("text", "mn", "kind", "wr", "rd", "states", "label", "target", "passes",
                 "srcc", "dst", "trans", "dpp", "wide_store_data", "ab")

    def __init__(self, text):
        self.text = text
        self.label = None
        self.target = None
        self.wr = set()
        self.rd = set()
        self.states = 1
        self.kind = "other"
        self.passes = 0
        self.srcc = ()
        self.dst = ()
        self.ab = set()
        self.trans = False
        self.dpp = False
        self.wide_store_data = set()
        t = text.split(";")[0].strip()
        if t.endswith(":"):
            self.label = t[:-1]
            self.kind = "label"
            self.states = 0
            self.mn = ""
            return
        if not t or t.startswith("."):
            self.kind = "directive"
            self.states = 0
            self.mn = ""
            return
        parts = t.split(None, 1)
        mn = parts[0]
        self.mn = mn
        rest = parts[1] if len(parts) > 1 else ""
        ops = split_ops(rest)
        R = regs_of
        if mn == "s_nop":
            self.kind = "nop"
            self.states = int(ops[0], 0) + 1
        elif mn.startswith("s_cbranch") or mn == "s_branch":
            self.kind = "branch"
            self.target = ops[0]
            if "vcc" in mn:
                self.rd.add(("vcc", 0))
        elif mn.startswith("v_mfma"):
            self.kind = "mfma"
            self.passes = 8 if "32x32x16" in mn else (2 if "4x4x4" in mn else 4)
            self.dst = tuple(R(ops[0]))
            self.wr = set(self.dst)
            self.ab = set(R(ops[1])) | set(R(ops[2]))
            self.srcc = tuple(R(ops[3]))
            self.rd = self.ab | set(self.srcc)
        elif mn.startswith("v_"):
            self.kind = "valu"
            self.trans = any(mn.startswith(x) for x in TRANS)
            self.dpp = "dpp" in mn or "quad_perm" in t or "row_" in t
            if mn.startswith("v_permlane32_swap") or mn.startswith("v_permlane16_swap"):
                self.kind = "permlane"
                self.wr = set(R(ops[0])) | set(R(ops[1]))
                self.rd = set(self.wr)
            elif mn.startswith("v_add_co") or mn.startswith("v_addc_co") or mn.startswith("v_sub_co"):
                self.wr = set(R(ops[0])) | set(R(ops[1]))
                for o in ops[2:]:
                    self.rd |= set(R(o))
            else:
                self.wr = set(R(ops[0]))
                for o in ops[1:]:
                    self.rd |= set(R(o))
                if mn.startswith("v_fmac") or mn.startswith("v_pk_fmac") or mn.startswith("v_dot2c"):
                    self.rd |= self.wr
                if mn.startswith("v_cndmask") and len(ops) == 3:
                    self.rd.add(("vcc", 0))
                if mn.startswith("v_readfirstlane") or mn.startswith("v_readlane"):
                    self.kind = "readlane"
        elif mn.startswith("ds_"):
            self.kind = "ds"
            if mn.startswith("ds_read") or mn.startswith("ds_bpermute") or mn.startswith("ds_swizzle"):
                self.wr = set(R(ops[0]))
                for o in ops[1:]:
                    self.rd |= set(R(o))
            else:
                for o in ops:
                    self.rd |= set(R(o))
        elif mn.startswith("buffer_") or mn.startswith("global_"):
            self.kind = "vmem"
            is_lds = re.search(r"\blds\b", t) is not None or "load_lds" in mn
            if is_lds:
                self.kind = "ldsdma"
                for o in ops:
                    self.rd |= set(R(o))
                self.rd.add(("m0", 0))
            elif "load" in mn:
                self.wr = set(R(ops[0]))
                for o in ops[1:]:
                    self.rd |= set(R(o))
            else:
                for o in ops:
                    self.rd |= set(R(o))
                if "x4" in mn or "x3" in mn:
                    d = ops[0] if mn.startswith("buffer_") else ops[1]
                    self.wide_store_data = set(R(d))
        elif mn.startswith("s_"):
            self.kind = "salu"
            if mn.startswith("s_cmp") or mn.startswith("s_bitcmp") or mn in ("s_barrier", "s_waitcnt", "s_endpgm", "s_setprio", "s_sleep"):
                for o in ops:
                    self.rd |= set(R(o))
            elif ops:
                self.wr = set(R(ops[0]))
                for o in ops[1:]:
                    self.rd |= set(R(o))


VALUISH = ("valu", "permlane", "readlane")


def need(p, c):
    n = 0
    if p.kind in VALUISH:
        vw = {r for r in p.wr if r[0] in "va"}
        sw = {r for r in p.wr if r[0] in ("s", "vcc")}
        if vw:
            if c.kind == "mfma" and vw & c.rd:
                n = max(n, 2)
            if c.kind == "permlane" and vw & c.rd:
                n = max(n, 2)
            if c.kind == "valu" and c.dpp and vw & c.rd:
                n = max(n, 2)
            if c.kind == "readlane" and vw & c.rd:
                n = max(n, 1)
            if p.trans and c.kind in VALUISH and not c.trans and vw & (c.rd | c.wr):
                n = max(n, 1)
        if sw:
            if c.kind in VALUISH and sw & c.rd:
                n = max(n, 2)
            if c.kind in ("vmem", "ldsdma") and sw & c.rd:
                n = max(n, 5)
            if c.kind in ("salu", "branch") and sw & c.rd:
                n = max(n, 1)
    if p.kind == "valu" and p.mn.startswith("v_dot"):
        d = p.wr
        if d & (c.rd | c.wr):
            if c.mn == p.mn:
                ops = split_ops(c.text.split(";")[0].strip().split(None, 1)[1])
                ab = set(regs_of(ops[1])) | set(regs_of(ops[2]))
                if d & ab:
                    n = max(n, 3)
            else:
                n = max(n, 3)
    if p.kind == "mfma":
        d = p.wr
        if c.kind == "mfma":
            if d & c.ab:
                n = max(n, p.passes + 4)
            if d & set(c.srcc):
                if c.srcc == p.dst and c.passes == p.passes:
                    if p.passes == 2:
                        n = max(n, 2)
                else:
                    n = max(n, p.passes + 2)
            elif d & c.wr:
                n = max(n, p.passes + 4)
        elif c.kind in VALUISH + ("vmem", "ds", "ldsdma"):
            if d & (c.rd | c.wr):
                n = max(n, p.passes + 4)
        if c.kind in VALUISH and set(p.srcc) & c.wr:
            n = max(n, p.passes - 1)
    if p.kind == "salu" and ("m0", 0) in p.wr and c.kind == "ldsdma":
        n = max(n, 1)
    if p.wide_store_data and p.wide_store_data & c.wr:
        n = max(n, 2 if c.kind in VALUISH else 1)
    return n


WIN = 24


class Asm:
    def __init__(self):
        self.ins = []
        self.nlab = 0

    def __call__(self, text):
        for line in text.split("\n"):
            line = line.strip()
            if line:
                self.ins.append(Ins(line))

    def label(self, name, keep=False):
        self.ins.append(Ins(name + ":" + (" ;@keep" if keep else "")))

    _glab = [0]

    def newlabel(self, prefix="L"):
        Asm._glab[0] += 1
        return "%s_%d" % (prefix, Asm._glab[0])

    def _fix_linear(self):
        out = []
        for c in self.ins:
            if c.states > 0 and c.kind != "nop":
                dist = 0
                req = 0
                k = len(out) - 1
                cnt = 0
                while k >= 0 and cnt < WIN:
                    p = out[k]
                    if p.states > 0:
                        r = need(p, c) - dist
                        req = max(req, r)
                        dist += p.states
                        cnt += 1
                    k -= 1
                while req > 0:
                    n = min(req, 16)
                    out.append(Ins("s_nop %d" % (n - 1)))
                    req -= n
            out.append(c)
        self.ins = out

    def _fix_branches(self):
        changed = True
        while changed:
            changed = False
            lab = {x.label: i for i, x in enumerate(self.ins) if x.label}
            for j, b in enumerate(self.ins):
                if b.kind != "branch" or b.target not in lab:
                    continue
                i = lab[b.target]
                pre = [x for x in self.ins[max(0, j - 3 * WIN):j + 1] if x.states > 0][-WIN:]
                post = [x for x in self.ins[i:i + 3 * WIN] if x.states > 0][:WIN]
                worst = 0
                d_post = 0
                for c in post:
                    dist = d_post
                    for p in reversed(pre):
                        worst = max(worst, need(p, c) - dist)
                        dist += p.states
                    d_post += c.states
                if worst > 0:
                    self.ins.insert(j, Ins("s_nop %d" % (worst - 1)))
                    changed = True
                    break

    def _auto_lgkm(self, want=False):
        out = []
        pend = []
        for c in self.ins:
            if ";@setpend" in c.text:
                body = c.text.split(";@setpend")[1]
                pend = [set(regs_of(x)) for x in body.split("|") if x.strip()]
                continue
            need_only = None
            if ";@need" in c.text:
                need_only = set(regs_of(c.text.split(";@need")[1]))
            elif c.kind in ("label", "branch") or c.mn in ("s_barrier", "s_endpgm", "s_setpc_b64", "s_swappc_b64"):
                if ";@keep" not in c.text:
                    if pend:
                        out.append(Ins("s_waitcnt lgkmcnt(0)"))
                    pend = []
                out.append(c)
                continue
            if c.mn == "s_waitcnt":
                m = re.search(r"lgkmcnt\((\d+)\)", c.text)
                if m:
                    n = int(m.group(1))
                    pend = pend[max(0, len(pend) - n):] if n else []
                out.append(c)
                continue
            if c.mn.startswith("s_load") or c.mn.startswith("s_mem") or c.mn.startswith("s_buffer_load"):
                assert not pend or ";@spf" in c.text, "scalar memory op with LDS ops pending: " + c.text
            touch = need_only if need_only is not None else (c.rd | c.wr)
            last = -1
            for i, d in enumerate(pend):
                if d & touch:
                    last = i
            if last >= 0:
                n = len(pend) - 1 - last
                n = min(n, 15)
                out.append(Ins("s_waitcnt lgkmcnt(%d)" % n))
                pend = pend[len(pend) - n:] if n else []
            if need_only is not None:
                continue
            if c.kind == "ds":
                pend.append(set(c.wr))
            out.append(c)
        self.ins = out
        return pend

    def _resolve_vm(self):
        import collections
        ins = self.ins
        targets = collections.defaultdict(list)
        for i, c in enumerate(ins):
            if c.kind == "branch":
                targets[c.target].append(i)
        info = []
        for c in ins:
            isop = c.kind in ("vmem", "ldsdma") and ";@cond" not in c.text
            m = re.search(r";@vm (\S+)", c.text) if c.kind in ("vmem", "ldsdma") else None
            drain = (c.mn == "s_waitcnt" and "vmcnt(0)" in c.text) or c.text.startswith(";@vmdrain")
            stop = c.mn in ("s_branch", "s_endpgm")
            info.append((isop, m.group(1) if m else None, drain, stop))
        out = []
        for i, c in enumerate(ins):
            if not c.text.startswith(";@waitvm"):
                out.append(c)
                continue
            parts = c.text.split(None, 2)
            tags = set(parts[1].split(","))
            extra = parts[2] if len(parts) > 2 else ""
            best = 63
            dist = {i: 0}
            dq = collections.deque([i])
            while dq:
                j = dq.popleft()
                d = dist[j]
                if d >= best:
                    continue
                preds = []
                if j > 0 and not info[j - 1][3]:
                    preds.append(j - 1)
                if ins[j].label:
                    preds += targets.get(ins[j].label, [])
                assert j > 0, "no tagged op on a path to " + c.text
                for p in preds:
                    isop, tag, drain, _ = info[p]
                    if tag in tags:
                        best = min(best, d)
                        continue
                    if drain:
                        continue
                    nd = d + (1 if isop else 0)
                    if nd < dist.get(p, 99):
                        dist[p] = nd
                        if isop:
                            dq.append(p)
                        else:
                            dq.appendleft(p)
            out.append(Ins("s_waitcnt vmcnt(%d) %s" % (best, extra)))
        self.ins = out

    def _wt(self):
        out = []
        ph = 0
        for i, c in enumerate(self.ins):
            m = re.match(r";@wtphase (\d+)", c.text)
            if m:
                ph = int(m.group(1))
                continue
            if c.mn == "s_waitcnt" and "vmcnt" in c.text and i + 1 < len(self.ins) and self.ins[i + 1].mn == "s_barrier" and ph:
                out += [Ins("s_waitcnt lgkmcnt(0)"), Ins("s_memtime s[96:97]"), Ins("s_waitcnt lgkmcnt(0)"), c, Ins("s_memtime s[98:99]"), Ins("s_waitcnt lgkmcnt(0)"),
                        Ins("s_sub_u32 s96, s98, s96"), Ins("s_add_u32 s%d, s%d, s96" % (66 + 2 * ph, 66 + 2 * ph))]
                continue
            out.append(c)
            if c.mn == "s_barrier" and i > 0 and self.ins[i - 1].mn == "s_waitcnt" and "vmcnt" in self.ins[i - 1].text and ph:
                out += [Ins("s_memtime s[96:97]"), Ins("s_waitcnt lgkmcnt(0)"), Ins("s_sub_u32 s96, s96, s98"),
                        Ins("s_add_u32 s%d, s%d, s96" % (67 + 2 * ph, 67 + 2 * ph))]
        self.ins = out

    def finish(self, auto_lgkm=False):
        self._resolve_vm()
        import os
        if 'wt' in os.environ.get("FL", "").split(","):
            self._wt()
        if auto_lgkm:
            self._auto_lgkm()
        self._fix_linear()
        self._fix_branches()
        s = []
        for x in self.ins:
            t = x.text.split(";@")[0].rstrip()
            if not t:
                continue
            if x.kind == "label":
                s.append(t)
            else:
                s.append("  " + t)
        return "\n".join(s) + "\n"


def interleave(main, fill, per=None):
    out = []
    nm = len(main)
    nf = len(fill)
    if nm == 0:
        return list(fill)
    k = 0
    for i, m in enumerate(main):
        out.append(m)
        tgt = (nf * (i + 1) + nm - 1) // nm if per is None else min(nf, per * (i + 1))
        while k < tgt:
            out.append(fill[k])
            k += 1
    out.extend(fill[k:])
    return out


def cost(ins):
    mn = ins.split(None, 1)[0]
    if any(mn.startswith(x) for x in TRANS):
        return 2.0
    if mn.startswith("s_"):
        return 0.5
    return 1.0


def weave(items, fill, lead=0.0):
    tot = sum(cost(x) for x in fill)
    out = []
    k = 0
    acc = 0.0
    n = len(items)
    while k < len(fill) and acc < lead * tot:
        out.append(fill[k]); acc += cost(fill[k]); k += 1
    base = acc
    for i, it in enumerate(items):
        out.extend(it)
        tgt = base + (tot - base) * (i + 1) / n
        while k < len(fill) and acc + cost(fill[k]) * 0.5 <= tgt:
            out.append(fill[k]); acc += cost(fill[k]); k += 1
    out.extend(fill[k:])
    return out


import struct as _struct


def f32bits(x):
    return _struct.unpack("<I", _struct.pack("<f", x))[0]


def srd(a, d, lo, hi, size, off=0):
    if off:
        a("s_add_u32 s%d, s%d, %d" % (d, lo, off))
        a("s_addc_u32 s%d, s%d, 0" % (d + 1, hi))
    else:
        a("s_mov_b32 s%d, s%d" % (d, lo))
        a("s_mov_b32 s%d, s%d" % (d + 1, hi))
    a("s_mov_b32 s%d, %d" % (d + 2, size))
    a("s_mov_b32 s%d, 0x00020000" % (d + 3))


def place(main, fill):
    by = {}
    for p, t in fill:
        by.setdefault(min(p, len(main) - 1), []).append(t)
    out = list(by.get(-1, []))
    for i, m in enumerate(main):
        out.append(m)
        out += by.get(i, [])
    return out


def v4(b):
    return "v[%d:%d]" % (b, b + 3)


def v2(b):
    return "v[%d:%d]" % (b, b + 1)


class Col:
    def __init__(self):
        self.L = []

    def __call__(self, text):
        for line in text.split("\n"):
            if line.strip():
                self.L.append(line.strip())

    def atoms(self, n=2):
        out = []
        glue = False
        for x in self.L:
            mn = x.split()[0]
            cons = mn.startswith("s_cselect") or mn.startswith("s_addc") or mn.startswith("v_cndmask")
            if out and (cons or glue or len(out[-1]) < n):
                out[-1].append(x)
            else:
                out.append([x])
            glue = mn.startswith("s_cmp") or mn.startswith("v_cmp")
        for i in range(1, len(out)):
            assert not out[i][0].split()[0].startswith(("s_addc", "s_cselect", "v_cndmask"))
        return out
```

```python
import os
MB = 1 << 20
WS_Q = 0
WS_KV = 16 * MB
WS_QKVB = 48 * MB
WS_CTX = 64 * MB
WS_OB = 80 * MB
WS_XCH = 96 * MB
FLG = 16 * MB
FLG_T, FLG_B, FLG_END = FLG + 4096, FLG + 12288, FLG + 16384
WS_TL = 200 * MB
FL = set(os.environ.get("FL", "").split(",")) | (set() if os.environ.get("NODEF") else {"stlast", "nospf", "notidy"})


def envi(name, default):
    return int(os.environ.get(name, default))


class TL:
    MAP = {(0, 0): 0, (0, 1): 1, (0, 2): 2, (0, 9): 3, (0, 10): 4, (1, 1): 5, (1, 2): 6, (1, 6): 7, (2, 5): 8, (2, 2): 9, (2, 4): 10, (2, 3): 11}
    if os.environ.get("TLMAP"):
        MAP = eval(os.environ["TLMAP"])

    def __init__(self, a, k, ptr_lo, on):
        self.a, self.k, self.lo, self.on = a, k, ptr_lo, on

    def early(self):
        if self.on and self.k == 0:
            for r in range(66, 90):
                self.a("s_mov_b32 s%d, 0" % r)
        self.stamp(0)

    def stamp(self, slot, *_, **__):
        if not self.on or (self.k, slot) not in self.MAP:
            return
        slot = self.MAP[(self.k, slot)]
        a = self.a
        a("s_waitcnt lgkmcnt(0)")
        a("s_memrealtime s[96:97]\ns_memtime s[98:99]\ns_waitcnt lgkmcnt(0)")
        a("s_mov_b32 s%d, s96\ns_mov_b32 s%d, s98" % (66 + 2 * slot, 67 + 2 * slot))

    def dump(self, vt, wave_sreg, wave=None):
        if not self.on or self.k != 2:
            return
        a = self.a
        L = a.newlabel("Ltl")
        a("s_cmp_lg_u32 %s, %d" % (wave_sreg, envi("TLW", 0)))
        a("s_cbranch_scc1 %s" % L)
        a("s_add_u32 s92, s%d, %d" % (self.lo, WS_TL))
        a("s_addc_u32 s93, s%d, 0" % (self.lo + 1))
        a("s_mov_b32 s94, 65536")
        a("s_mov_b32 s95, 0x00020000")
        a("s_lshl_b32 s100, s2, 7")
        a("s_mov_b64 exec, 1")
        a("v_mov_b32 v%d, 0" % (vt + 2))
        for slot in range(12):
            a("v_mov_b32 v%d, s%d" % (vt, 66 + 2 * slot))
            a("v_mov_b32 v%d, s%d" % (vt + 1, 67 + 2 * slot))
            a("buffer_store_dwordx2 v[%d:%d], v%d, s[92:95], s100 offen offset:%d" % (vt, vt + 1, vt + 2, slot * 8))
            a("s_waitcnt vmcnt(0)")
        a("s_mov_b64 exec, -1")
        a.label(L)


def code_touch(a, l0, l1, vaddr, vdst, sp):
    if 'notouch' in FL:
        return
    L = a.newlabel("Lpc")
    a("s_getpc_b64 s[%d:%d]" % (sp, sp + 1))
    a.label(L, keep=True)
    a("s_add_u32 s%d, s%d, %s-%s" % (sp, sp, l0, L))
    a("s_addc_u32 s%d, s%d, 0" % (sp + 1, sp + 1))
    a("s_lshr_b32 s%d, s2, 3" % (sp + 2))
    a("s_mul_i32 s%d, s%d, ((%s-%s)/32+127)&~127" % (sp + 2, sp + 2, l1, l0))
    a("v_lshlrev_b32 v%d, 7, v0" % vaddr)
    a("v_add_u32 v%d, s%d, v%d" % (vaddr, sp + 2, vaddr))
    a("v_min_u32 v%d, %s-%s-4, v%d" % (vaddr, l1, l0, vaddr))
    a("global_load_dword v%d, v%d, s[%d:%d]" % (vdst, vaddr, sp, sp + 1))
```

```python
import math
from asmlib import Asm, Col, srd, v4, v2, f32bits
from common import *
import k2

vLane, vXd, vWd, vXr, vWr, vPF, vPFd, vT = 1, 2, 6, 10, 12, 20, 21, 24
ACC = 32
aACC7, aW, aX, aHOLD = 0, 32, 160, 192
sWave, sWm, sWn, sXo, sWo, sXend, sXre, sWend, sWre, sM0, sCnt, sLdx64, sM, sN = (
    "s20", "s21", "s22", "s23", "s24", "s25", "s26", "s27", "s28", "s29", "s30", "s31", "s52", "s53")
sPo, sPst, sPend, sPre = "s54", "s55", "s56", "s57"
XB, WB, SPARE = 0, 65536, 131072
SF = os.environ.get("K1SF", "sc1")
NSPS = envi("NSPS", 4)
NEARLY = envi("NEARLY", 14)
TARR = envi("TARR", 6)
PFD = envi("PFD", 4)


def a4(b):
    return "a[%d:%d]" % (b, b + 3)


def a2(b):
    return "a[%d:%d]" % (b, b + 1)


def acc(mi, ni):
    return v4(ACC + 4 * (8 * mi + ni)) if mi < 7 else a4(aACC7 + 4 * ni)


def wfr(buf, ni, hs):
    return aW + 64 * buf + 8 * ni + 4 * hs


def xfr(row, hs):
    return aX + 8 * (row % 4) + 4 * hs


def mfma(d, a_, b_, c):
    return "v_mfma_f32_16x16x32_bf16 %s, %s, %s, %s" % (d, a_, b_, c)


def xread(s, row):
    off = XB + s * 32768 + (row >> 2) * 16384 + (row & 3) * 2048
    return ["ds_read_b128 %s, v%d offset:%d" % (a4(xfr(row, hs)), vXr + hs, off) for hs in range(2)]


def wread(s, hs):
    L = []
    for ni in range(8):
        for j in range(2):
            L.append("ds_read_b64_tr_b16 %s, v%d offset:%d" % (a2(wfr(s, ni, hs) + 2 * j), vWr + ni, s * 32768 + hs * 16384 + j * 2048))
    return L


def dma_x(s, half):
    pre = ["s_add_u32 m0, %s, %d" % (sM0, XB + s * 32768 + half * 16384)]
    so = sXo
    if half:
        pre.append("s_add_u32 s3, %s, %s" % (sXo, sLdx64))
        so = "s3"
    ld = ["buffer_load_dwordx4 v%d, s[8:11], %s offen offset:%d lds ;@vm i%d%d" % (vXd + j, so, j * 1024, half, s) for j in range(4)]
    post = []
    if half:
        post = ["s_add_u32 %s, %s, 128" % (sXo, sXo), "s_cmp_eq_u32 %s, %s" % (sXo, sXend), "s_cselect_b32 %s, %s, %s" % (sXo, sXre, sXo)]
    return pre, ld, post


def dma_w(s, hs):
    pre = ["s_add_u32 m0, %s, %d" % (sM0, WB + s * 32768 + hs * 16384)]
    ld = ["buffer_load_dwordx4 v%d, s[12:15], %s offen offset:%d lds ;@vm i%d%d" % (vWd + j, sWo, j * 1024, hs, 1 - s) for j in range(4)]
    post = ["s_add_u32 %s, %s, %d" % (sWo, sWo, 32 * 8192)]
    if hs:
        post += ["s_cmp_eq_u32 %s, %s" % (sWo, sWend), "s_cselect_b32 %s, %s, %s" % (sWo, sWre, sWo)]
    return pre, ld, post


def pf():
    return [["buffer_load_dword v%d, v%d, s[60:63], %s offen" % (vPFd, vPF, sPo), "s_add_u32 %s, %s, %d" % (sPo, sPo, MB)]]


FL2 = "fl3" not in FL
WQ = [int(x) for x in os.environ.get("WQ", "6,7").split(",")]
NSPF = envi("NSPF", 8)


def spf():
    L = ["s_buffer_load_dword s100, s[60:63], %s offset:%d ;@spf" % (sPo, 128 * i) for i in range(NSPF)]
    return [L[i:i + 2] for i in range(0, NSPF, 2)] + [["s_add_u32 %s, %s, %d" % (sPo, sPo, 512 * NSPF * 128)]]


def units(pre, ld, post):
    U = [pre + [ld[0]]] + [[x] for x in ld[1:]]
    if 'nodma' in FL:
        U = [pre]
    if post:
        U.append(post)
    return U


def step(a, s, swapped, first, I1, I2, vm1, vm2, wnext=True, xnext=True, extra=None, mem=None, sp=False):
    M = []
    for mi in range(8):
        for ni in range(8):
            for n, hs in enumerate((0, 1) if ni % 2 == 0 else (1, 0)):
                x, w, d = a4(xfr(mi, hs)), a4(wfr(s, ni, hs)), acc(mi, ni)
                c = "0" if (first and n == 0) else d
                M.append(mfma(d, x, w, c) if swapped else mfma(d, w, x, c))
    G = [[] for _ in range(128)]
    BX, BY = 2 * 16 + 7, 6 * 16 + 7
    nr = 'noreads' in FL
    for r in range(8):
        t = r + 2
        if t < 8:
            L = xread(s, t)
        else:
            L = xread(1 - s, t - 8) if xnext else []
        g = max(16 * r + 1, BX) if r == 2 else (max(16 * r + 1, BY) if r == 6 else 16 * r + 1)
        if not nr:
            G[g] += L
        G[16 * r + 15].append(";@need %s" % a4(xfr(r + 1, 1)))
    bar = lambda vm, tag: [("s_waitcnt vmcnt(%d) lgkmcnt(0)" % vm) if vm is not None else (";@waitvm %s lgkmcnt(0)" % tag)] + \
        ([] if 'nobar' in FL else ["s_barrier ;@keep"])
    G[BX] = bar(vm1, "i1%d" % s) + G[BX]
    G[BY] = bar(vm2, "i0%d" % (1 - s)) + G[BY]
    if wnext and not nr:
        L = wread(1 - s, 0)
        for i in range(8):
            G[3 + 4 * i] += L[2 * i:2 * i + 2]
        L = wread(1 - s, 1)
        for i in range(8):
            G[BX + 4 + 6 * i] += L[2 * i:2 * i + 2]
    if sp and 'nospf' not in FL:
        mem = dict(mem or {})
        for i, u in enumerate(spf()):
            mem[BX + 1 + i] = u + mem.get(BX + 1 + i, [])
    if mem:
        for g, L in sorted(mem.items()):
            while [y for y in G[g] if not y.startswith(";@need")]:
                g += 1
            G[g] = L + G[g]
    carry = a.carry
    a.carry = []
    free = [g for g in range(128) if not G[g]]
    def put(U, lo, hi):
        c = [g for g in free if lo <= g < hi]
        n = min(len(U), len(c))
        for i in range(n):
            g = c[(i * len(c)) // n]
            G[g] += U[i]
        for i in range(n):
            free.remove(c[(i * len(c)) // n])
        return U[n:]
    assert not put(carry, 0, BX - 2)
    assert not put(I1, BX + 1, BY - 2)
    k = (len(I2) * 2 + 4) // 5
    put(I2[:k], BY + 1, 127)
    a.carry = I2[k:]
    if extra:
        for g, L in extra.items():
            G[g] += L
    for i in range(128):
        a(M[i])
        for y in G[i]:
            a(y)
    a.nstep = getattr(a, 'nstep', 0) + 1
    a.tl.stamp(200 + a.nstep)


def std_I(s, withpf=False):
    if FL2:
        I1 = units(*dma_x(1 - s, 1)) + units(*dma_w(s, 1)) + (pf() if withpf else [])
        I2 = units(*dma_x(s, 0)) + units(*dma_w(1 - s, 0))
        return I1, I2
    I1 = units(*dma_x(s, 0)) + units(*dma_w(1 - s, 0)) + (pf() if withpf else [])
    I2 = units(*dma_x(s, 1)) + units(*dma_w(1 - s, 1))
    return I1, I2


def dstep(a, swapped, first=False, withpf=False, sp=False, mem=(None, None)):
    for s in range(2):
        I1, I2 = std_I(s, withpf)
        step(a, s, swapped, first and s == 0, I1, I2, None, None, sp=sp, mem=mem[s])


def P(n):
    return ACC + 8 * n if n < 28 else ACC + 8 * (n - 28) + 4


def cvt4(d, r0, r1):
    return ["v_cvt_pk_bf16_f32 v%d, v%d, v%d" % (d, r0, r0 + 1), "v_cvt_pk_bf16_f32 v%d, v%d, v%d" % (d + 1, r0 + 2, r0 + 3),
            "v_cvt_pk_bf16_f32 v%d, v%d, v%d" % (d + 2, r1, r1 + 1), "v_cvt_pk_bf16_f32 v%d, v%d, v%d" % (d + 3, r1 + 2, r1 + 3)]


def scale(r):
    return ["v_pk_mul_f32 %s, %s, s[6:7]" % (v2(r + e), v2(r + e)) for e in (0, 2)]


def accrd(t, ni):
    return ["v_accvgpr_read_b32 v%d, a%d" % (t + e, aACC7 + 4 * ni + e) for e in range(4)]


def pack(kind, grp, dst7=None):
    L = []
    if kind in 'qk':
        for ds in range(4):
            n = 4 * grp + ds
            if grp < 7:
                r0, r1 = ACC + 8 * n, ACC + 8 * n + 4
            else:
                r0, r1 = vT, vT + 4
                L += accrd(r0, 2 * ds) + accrd(r1, 2 * ds + 1)
            if kind == 'q':
                L += scale(r0) + scale(r1)
            L += cvt4(P(n), r0, r1)
    else:
        for ni in ((0, 4, 2, 6, 1, 5, 3, 7) if grp < 3 else (0, 4, 6, 2, 1, 3, 5, 7)):
            r0 = ACC + 4 * (16 * grp + ni)
            if grp < 3:
                r1 = r0 + 32
            else:
                r1 = vT + 4 * (ni & 1)
                L += accrd(r1, ni)
            L += cvt4(P(8 * grp + ni), r0, r1)
    return L


def pack_extra(kind):
    ex = {}
    if kind in 'qk':
        for mi in range(7):
            L = pack(kind, mi)
            n = 14 if kind == 'q' else 8
            for i, x in enumerate(L):
                ex.setdefault(min(127, 16 * (mi + 1) + 3 + (i * n) // len(L)), []).append(x)
    else:
        for m in range(3):
            L = pack(kind, m)
            for i, x in enumerate(L):
                ex.setdefault(32 * (m + 1) + 3 + (i * 20) // len(L), []).append(x)
    return ex


def out_base(kind):
    sh = 14 if kind == 'q' else 15
    L = ["s_lshr_b32 s3, %s, 7" % sN, "s_add_u32 s3, s3, %s" % sWn, "s_lshl_b32 s3, s3, 5", "s_lshr_b32 s19, %s, 6" % sM, "s_add_u32 s3, s3, s19",
         "s_lshl_b32 s19, %s, 1" % sWm, "s_add_u32 s3, s3, s19", "s_lshl_b32 s92, s3, %d" % sh]
    if kind == 'v':
        L.append("s_add_u32 s92, s92, 16384")
    L.append("s_add_u32 s93, s92, %d" % (1 << sh))
    off, size = (WS_Q, 16 * MB) if kind == 'q' else (WS_KV, 32 * MB)
    L += ["s_add_u32 s16, s50, %d" % off, "s_addc_u32 s17, s51, 0", "s_mov_b32 s18, %d" % size, "s_mov_b32 s19, 0x00020000"]
    if kind == 'q':
        c = f32bits((128 ** -0.5) * math.log2(math.e))
        L += ["s_mov_b32 s4, 0x%08x" % c, "s_mov_b32 s5, 0x%08x" % c]
    return L


def store(n, reg=None):
    return ["s_add_u32 s94, s%d, %d" % (92 + (n >> 4), ((n >> 2) & 3) * 4096),
            "buffer_store_dwordx4 %s, v%d, s[16:19], s94 offen offset:%d %s ;@vm st" % (v4(P(n) if reg is None else reg), vLane, (n & 3) * 1024, SF)]


def tail(a, swapped):
    kind = 'v' if swapped else 'k'
    I1, I2 = std_I(0)
    step(a, 0, swapped, False, I1, I2, None, None)
    I1, I2 = (std_I(1)[0], units(*dma_x(1, 0))) if FL2 else (units(*dma_x(1, 0)), units(*dma_x(1, 1)))
    step(a, 1, swapped, False, I1, I2, None, None)
    S = b_setup() + out_base(kind)
    ex = {}
    for i, x in enumerate(S):
        ex.setdefault((52 + (i * 48) // len(S)) if FL2 else (41 + (i * 58) // len(S)), []).append(x)
    step(a, 0, swapped, False, [], b_dma_x(0) + b_dma_w(0), None, None, extra=ex,
         mem={40 + 2 * i: u for i, u in enumerate(units(*dma_x(1, 1))[:4])} if FL2 else None)
    if swapped:
        pos = {n: (58 + 4 * n if n < 8 else 92 + 6 * (n - 8)) for n in range(NEARLY)}
    else:
        pos = {n: 30 + 7 * n for n in range(NEARLY)}
    step(a, 1, swapped, False, b_dma_x(1) + b_dma_w(1), b_dma_x(2) + b_dma_w(2), None, 63, wnext=False, xnext=False, extra=pack_extra(kind),
         mem={g: store(n) for n, g in pos.items()})
    for x in pack(kind, 3 if swapped else 7):
        a(x)


def epilogue(a, kind):
    T = vT
    if kind == 'q':
        a("s_mov_b32 s3, 0x%08x" % f32bits((128 ** -0.5) * math.log2(math.e)))
        a("v_mov_b32 v%d, s3" % vXr)
    a("s_lshr_b32 s4, %s, 7" % sN)
    a("s_add_u32 s4, s4, %s" % sWn)
    a("s_lshl_b32 s4, s4, 5")
    a("s_lshr_b32 s5, %s, 6" % sM)
    a("s_add_u32 s4, s4, s5")
    a("s_lshl_b32 s5, %s, 1" % sWm)
    a("s_add_u32 s4, s4, s5")
    sh = 14 if kind == 'q' else 15
    a("s_lshl_b32 s4, s4, %d" % sh)
    k = 0

    def get(mi, ni, t):
        if mi < 7:
            return ACC + 4 * (8 * mi + ni)
        for e in range(4):
            a("v_accvgpr_read_b32 v%d, a%d" % (t + e, aACC7 + 4 * ni + e))
        return t
    if kind == 'v':
        pairs = [((mi, ni), (mi + 1, ni), (mi >> 2) * 32768 + 16384 + ((mi >> 1) & 1) * 8192 + ni * 1024) for mi in range(0, 8, 2) for ni in range(8)]
    else:
        pairs = [((mi, 2 * ds), (mi, 2 * ds + 1), (mi >> 2) * (1 << sh) + (mi & 3) * 4096 + ds * 1024) for mi in range(8) for ds in range(4)]
    last = None
    for p0, p1, off in pairs:
        r0 = get(p0[0], p0[1], ACC)
        r1 = get(p1[0], p1[1], ACC + 4)
        if kind == 'q':
            for r in (r0, r0 + 2, r1, r1 + 2):
                a("v_pk_mul_f32 %s, %s, %s op_sel_hi:[1,0]" % (v2(r), v2(r), v2(vXr)))
        u = T + 4 * (k % 2)
        k += 1
        a("v_cvt_pk_bf16_f32 v%d, v%d, v%d" % (u, r0, r0 + 1))
        a("v_cvt_pk_bf16_f32 v%d, v%d, v%d" % (u + 1, r0 + 2, r0 + 3))
        a("v_cvt_pk_bf16_f32 v%d, v%d, v%d" % (u + 2, r1, r1 + 1))
        a("v_cvt_pk_bf16_f32 v%d, v%d, v%d" % (u + 3, r1 + 2, r1 + 3))
        if last != off >> 12:
            a("s_add_u32 s5, s4, %d" % (off & ~4095))
            last = off >> 12
        a("buffer_store_dwordx4 %s, v%d, s[16:19], s5 offen offset:%d %s" % (v4(u), vLane, off & 4095, SF))


vBX, vBH, vBW = 2, 20, (6, 7, 8, 9, 21, 22)
vBXr, vBWr = 10, 14
aBACC, aBW, aBX = 68, 176, 224
STG = 98304
vST = 124
BXO = (131072, 0, 18432)
BWO = (65536, 98304, 36864)
sBX, sBH, sBW, sRB, sCP = "s23", "s24", "s25", "s26", "s27"
PCR = 6
BL = 3
PITCH = 400


def bacc(mi, i):
    return aBACC + 4 * (3 * mi + i)


def bxfr(t, row, hs):
    return aBX + 8 * ((9 * t + row) % 4) + 4 * hs


def bwfr(t, i, hs):
    return aBW + 24 * (t % 2) + 8 * i + 4 * hs


def b_ids(rb, cp):
    return ["s_and_b32 s3, s2, 1", "s_lshl_b32 s3, s3, 3", "s_bfe_u32 s4, s2, 0x30003", "s_add_u32 %s, s3, s4" % rb,
            "s_bfe_u32 s3, s2, 0x20001", "s_lshl_b32 s3, s3, 2", "s_lshr_b32 s4, s2, 6", "s_xor_b32 s4, s4, %d" % envi("CPX", 2), "s_add_u32 %s, s3, s4" % cp]


def b_setup():
    T = vT
    L = []
    a = L.append
    L += b_ids(sRB, sCP)
    a("s_lshl_b32 %s, %s, 18" % (sBX, sRB))
    a("s_sub_u32 %s, %s, 32768" % (sBH, sBX))
    a("s_max_i32 %s, %s, 0" % (sBH, sBH))
    a("s_lshl_b32 %s, %s, 7" % (sBW, sCP))
    BR = envi("BROT", 0)
    a("s_add_u32 s3, %s, %s" % (sRB, sCP))
    a("s_and_b32 s3, s3, %d" % max(BR - 1, 0))
    a("s_mul_i32 s3, s3, %d" % (16 // max(BR, 1)))
    if 'btype' in FL:
        a("s_lshr_b32 s3, s2, 7")
        a("s_lshl_b32 s3, s3, 3")
    a("s_sub_u32 s31, 16, s3")
    a("s_mov_b32 s54, s31")
    a("s_movk_i32 s57, 128")
    a("s_mov_b32 s55, %d" % ((64 * 6144 - 1024 * 6144) & 0xffffffff))
    a("s_mov_b32 s56, %d" % (64 * 6144))
    a("s_lshl_b32 s4, s3, 7")
    a("s_add_u32 %s, %s, s4" % (sBX, sBX))
    a("s_add_u32 %s, %s, s4" % (sBH, sBH))
    a("s_mul_i32 s4, s3, %d" % (64 * 6144))
    a("s_add_u32 %s, %s, s4" % (sBW, sBW))
    a("s_mov_b64 s[8:9], s[44:45]")
    a("s_mov_b32 s10, %d" % (4 * MB))
    a("s_mov_b64 s[12:13], s[46:47]")
    a("s_mov_b32 s14, %d" % (6 * MB))
    a("s_mov_b64 s[36:37], s[90:91]")
    a("s_mov_b32 s38, 256")
    a("s_mov_b32 s39, 0x00020000")
    a("s_lshl_b32 s28, %s, 9" % sWave)
    a("s_mul_i32 s30, %s, 6144" % sWave)
    a("s_lshl_b32 s3, %s, 5" % sWave)
    a("v_lshrrev_b32 v%d, 3, v0" % T)
    a("v_and_b32 v%d, 7, v0" % (T + 1))
    a("v_add_u32 v%d, s3, v%d" % (T + 4, T))
    for j in range(4):
        a("v_add_u32 v%d, %d, v%d" % (T + 2, 8 * j, T + 4))
        a("v_bfe_u32 v%d, v%d, 1, 3" % (T + 3, T + 2))
        a("v_xor_b32 v%d, v%d, v%d" % (T + 3, T + 3, T + 1))
        a("v_lshlrev_b32 v%d, 11, v%d" % (T + 2, T + 2))
        a("v_lshl_add_u32 v%d, v%d, 4, v%d" % (T + 2, T + 3, T + 2))
        a("v_subrev_u32 v%d, %d, v%d" % (vBX + j, j * 1024, T + 2))
    a("s_lshl_b32 s3, %s, 2" % sWave)
    a("v_lshrrev_b32 v%d, 5, v0" % (T + 2))
    a("v_add_u32 v%d, s3, v%d" % (T + 2, T + 2))
    a("v_bfe_u32 v%d, v0, 2, 3" % (T + 5))
    for i, d in enumerate((vBH, 23)):
        if i:
            a("v_add_u32 v%d, 2, v%d" % (T + 2, T + 2))
        a("v_bfe_u32 v%d, v%d, 1, 3" % (T + 3, T + 2))
        a("v_xor_b32 v%d, v%d, v%d" % (T + 3, T + 3, T + 5))
        a("v_lshlrev_b32 v%d, 4, v%d" % (T + 3, T + 3))
        a("v_and_b32 v%d, 3, v0" % (T + 6))
        a("v_lshl_add_u32 v%d, v%d, 2, v%d" % (T + 3, T + 6, T + 3))
        a("v_lshl_add_u32 v%d, v%d, 11, v%d" % (d, T + 2, T + 3))
    a("v_subrev_u32 v23, 256, v23")
    a("s_mul_i32 s3, %s, 48" % sWave)
    a("v_add_u32 v%d, s3, v%d" % (T + 4, T))
    for j in range(6):
        a("v_add_u32 v%d, %d, v%d" % (T + 2, 8 * j, T + 4))
        a("v_mul_u32_u24 v%d, 0xaaab, v%d" % (T + 3, T + 2))
        a("v_lshrrev_b32 v%d, 17, v%d" % (T + 3, T + 3))
        a("v_lshrrev_b32 v%d, 1, v%d" % (T + 5, T + 3))
        a("v_and_b32 v%d, 4, v%d" % (T + 5, T + 5))
        a("v_and_or_b32 v%d, v%d, 2, v%d" % (T + 3, T + 3, T + 5))
        a("v_xor_b32 v%d, v%d, v%d" % (T + 3, T + 3, T + 1))
        a("v_lshlrev_b32 v%d, 11, v%d" % (T + 2, T + 2))
        a("v_lshl_add_u32 v%d, v%d, 4, v%d" % (T + 2, T + 3, T + 2))
        a("v_subrev_u32 v%d, %d, v%d" % (vBW[j], (j & 3) * 1024, T + 2))
    return L


def b_dma_x(t):
    st = t % 3
    U = [["s_add_u32 m0, s28, %d" % BXO[st], "buffer_load_dword v%d, s[8:11], %s offen lds ;@vm bx%d" % (vBH, sBH, t)],
         ["buffer_load_dword v23, s[8:11], %s offen offset:256 lds ;@vm bx%d" % (sBH, t)]]
    for j in range(4):
        U.append((["s_add_u32 m0, %s, %d" % (sM0, BXO[st] + 2048)] if j == 0 else []) +
                 ["buffer_load_dwordx4 v%d, s[8:11], %s offen offset:%d lds ;@vm bx%d" % (vBX + j, sBX, j * 1024, t)])
    U.append(["s_sub_u32 s31, s31, 1", "s_cmp_eq_u32 s31, 0", "s_cselect_b32 s58, %d, s57" % (128 - 2048),
              "s_add_u32 %s, %s, s58" % (sBX, sBX), "s_add_u32 %s, %s, s58" % (sBH, sBH)])
    return U


def b_dma_w(t):
    st = t % 3
    U = []
    for j in range(6):
        U.append((["s_add_u32 m0, s30, %d" % (BWO[st] + (j >> 2) * 4096)] if j % 4 == 0 else []) +
                 ["buffer_load_dwordx4 v%d, s[12:15], %s offen offset:%d lds ;@vm bw%d" % (vBW[j], sBW, (j & 3) * 1024, t)])
    U.append(["s_sub_u32 s54, s54, 1", "s_cmp_eq_u32 s54, 0", "s_cselect_b32 s58, s55, s56", "s_add_u32 %s, %s, s58" % (sBW, sBW)])
    return U


def b_xread(t, row):
    st = t % 3
    return ["ds_read_b128 %s, v%d offset:%d" % (a4(bxfr(t, row, hs)), vBXr + (2 if st == 0 else 0) + hs, (0 if st == 0 else BXO[st]) + row * 2048) for hs in range(2)]


def b_wread(t):
    st = t % 3
    L = []
    for hs in range(2):
        for i in range(3):
            for j in range(2):
                off = (0 if st == 1 else BWO[st] - BWO[2]) + (hs * 32 + j * 4) * 384
                L.append("ds_read_b64_tr_b16 %s, v%d offset:%d" % (a2(bwfr(t, i, hs) + 2 * j), vBWr + (3 if st == 1 else 0) + i, off))
    return L


def b_stage_out(mi):
    L = []
    for i in range(3):
        t = vT + 4 * (i % 2)
        L += ["v_accvgpr_read_b32 v%d, a%d" % (t + e, bacc(mi, i) + e) for e in range(4)]
        L += ["v_cvt_pk_bf16_f32 v%d, v%d, v%d" % (t, t, t + 1), "v_cvt_pk_bf16_f32 v%d, v%d, v%d" % (t + 1, t + 2, t + 3),
              "ds_write_b64 v%d, %s offset:%d" % (vST, v2(t), mi * 16 * PITCH + i * 32)]
    return L


def b_step(a, t, stores, valu=None, late=None, post_bar=None):
    M = []
    for mi in range(9):
        for i in range(3):
            for n, hs in enumerate((0, 1) if (3 * mi + i) % 2 == 0 else (1, 0)):
                d = a4(bacc(mi, i))
                M.append(mfma(d, a4(bwfr(t, i, hs)), a4(bxfr(t, mi, hs)), "0" if (t == 0 and n == 0) else d))
    G = [[] for _ in range(54)]
    BB = 6 * (9 - BL) + 4
    for r in range(9):
        q = r + BL
        if q < 9:
            G[6 * r] += b_xread(t, q)
        elif t < 15:
            G[max(6 * r, BB)] += b_xread(t + 1, q - 9)
        if r < 8 or t < 15:
            G[6 * r + 5].append(";@need %s" % a4(bxfr(t, r + 1, 1) if r < 8 else bxfr(t + 1, 0, 1)))
    if t < 15:
        tags = "bx%d" % (t + 1) + (",bw%d" % (t + 2) if t + 2 < 16 else "")
        post = []
        if t == TARR:
            tags += ",st"
            post = ["s_cmp_lg_u32 s101, 0", "s_cbranch_scc1 Lk1_arr ;@keep", "v_mov_b32 v127, 1", "s_and_b32 s94, s2, 128",
                    "s_mov_b64 exec, 1", "buffer_atomic_add v127, off, s[36:39], s94 sc1 ;@cond", "s_mov_b64 exec, -1", "Lk1_arr: ;@keep"]
        G[BB] = [";@waitvm %s lgkmcnt(0)" % tags, "s_barrier ;@keep"] + G[BB] + post + (post_bar or [])
        L = b_wread(t + 1)
        for i in range(6):
            G[2 + 6 * i] += L[2 * i:2 * i + 2]
    carry = a.carry
    I = [] if 'stlast' in FL else list(stores)
    if t + 3 < 16:
        I += b_dma_x(t + 3)
    if t + 4 < 16:
        I += b_dma_w(t + 4)
    if 'stlast' in FL:
        I += list(stores)
    I += late or []
    free = [g for g in range(54) if not G[g] or G[g][0].startswith(";@need")]

    def put(U, lo, hi):
        c = [g for g in free if lo <= g < hi]
        assert len(U) <= len(c), (len(U), len(c))
        pos = [c[(i * len(c)) // len(U)] for i in range(len(U))]
        for g, u in zip(pos, U):
            G[g] = u + G[g]
            free.remove(g)
    put(carry, 0, (BB - 1) if t < 15 else 54)
    k = min(len(I), 4 if t < 14 else 7)
    put(I[:k], BB + 1, 54)
    a.carry = I[k:]
    if valu:
        lo, hi, U = valu
        for i, u in enumerate(U):
            G[lo + (i * (hi - lo)) // len(U)] += u
    if t == 15:
        G[BB] = ["s_waitcnt lgkmcnt(0)", "s_barrier ;@keep"] + G[BB]
        for mi in range(7):
            L = b_stage_out(mi)
            g0 = 6 * (mi + 2) if mi != 5 else BB + 1
            n = 6 if mi != 5 else 7
            for i in range(n):
                G[g0 + i] += L[(i * 21) // n:((i + 1) * 21) // n]
    for i in range(54):
        a(M[i])
        for y in G[i]:
            a(y)


vRXd, vRWd, vRXr, vRWr = 2, 6, 10, 14
aRW, aRX = 64, 192
RXO = (65536, 98304, 131072)
sRX, sRW = "s23", "s24"


def racc(mi, ni):
    return ACC + 4 * (8 * mi + ni)


def rw(k, ni, hs):
    return aRW + 64 * (k % 2) + 8 * ni + 4 * hs


def rx(row, hs):
    return aRX + 8 * (row % 4) + 4 * hs


def r_dma_x(k):
    U = []
    for j in range(8):
        pre = ["s_add_u32 m0, s28, %d" % (RXO[k % 3] + (j >> 2) * 4096)] if j % 4 == 0 else []
        if j == 4:
            pre.append("s_add_u32 s25, %s, 65536" % sRX)
        U.append(pre + ["buffer_load_dwordx4 v%d, s[8:11], %s offen offset:%d lds ;@vm rx%d" % (vRXd + (j & 3), "s25" if j >= 4 else sRX, (j & 3) * 1024, k)])
    U.append(["s_sub_u32 s31, s31, 1", "s_cmp_eq_u32 s31, 0", "s_cselect_b32 s58, %d, s57" % (128 - 2048), "s_add_u32 %s, %s, s58" % (sRX, sRX)])
    return U


def r_dma_w(k):
    U = [(["s_add_u32 m0, %s, %d" % (sM0, (k % 4) * 16384)] if j == 0 else []) +
         ["buffer_load_dwordx4 v%d, s[12:15], %s offen offset:%d lds ;@vm rw%d" % (vRWd + j, sRW, j * 1024, k)] for j in range(4)]
    U.append(["s_sub_u32 s30, s30, 1", "s_cmp_eq_u32 s30, 0", "s_cselect_b32 s58, s26, s27", "s_add_u32 %s, %s, s58" % (sRW, sRW)])
    return U


def r_xread(k, row):
    st = k % 3
    return ["ds_read_b128 %s, v%d offset:%d" % (a4(rx(row, hs)), vRXr + (2 if st == 2 else 0) + hs, (32768 if st == 1 else 0) + row * 2048) for hs in range(2)]


def r_wread(k):
    return ["ds_read_b64_tr_b16 %s, v%d offset:%d" % (a2(rw(k, ni, hs) + 2 * j), vRWr + ni, (k % 4) * 16384 + (hs * 32 + j * 4) * 256)
            for ni in range(8) for hs in range(2) for j in range(2)]


def r_setup_w(a, T):
    a("s_lshl_b32 s3, s101, 4")
    a("v_lshrrev_b32 v%d, 4, v0" % T)
    a("v_and_b32 v%d, 15, v0" % (T + 1))
    a("v_lshlrev_b32 v%d, 1, v%d" % (T + 2, T))
    a("v_xor_b32 v%d, v%d, v%d" % (T + 1, T + 1, T + 2))
    a("v_add_u32 v%d, s3, v%d" % (T, T))
    a("v_lshlrev_b32 v%d, 13, v%d" % (T, T))
    for j in range(4):
        a("v_xor_b32 v%d, %d, v%d" % (T + 2, 8 * (j >> 1), T + 1))
        a("v_lshl_add_u32 v%d, v%d, 4, v%d" % (T + 2, T + 2, T))
        a("v_add_u32 v%d, %d, v%d" % (vRWd + j, 4 * j * 8192 - j * 1024, T + 2))


def r_setup_x(a, T):
    a("v_lshrrev_b32 v%d, 3, v0" % T)
    a("v_and_b32 v%d, 7, v0" % (T + 1))
    for j in range(4):
        a("v_add_u32 v%d, %d, v%d" % (T + 2, 8 * j, T))
        a("v_bfe_u32 v%d, v%d, 1, 3" % (T + 3, T + 2))
        a("v_xor_b32 v%d, v%d, v%d" % (T + 3, T + 3, T + 1))
        a("v_lshlrev_b32 v%d, 11, v%d" % (T + 2, T + 2))
        a("v_lshl_add_u32 v%d, v%d, 4, v%d" % (T + 2, T + 3, T + 2))
        a("v_subrev_u32 v%d, %d, v%d" % (vRXd + j, j * 1024, T + 2))
    a("s_sub_u32 s3, 15, s21")
    a("s_cmp_lt_u32 s101, 2")
    a("s_cselect_b32 s3, s21, s3")
    a("s_lshl_b32 s3, s3, 1")
    a("s_and_b32 s25, s101, 1")
    a("s_add_u32 s3, s3, s25")
    a("s_lshl_b32 %s, s3, 17" % sRX)
    a("s_lshl_b32 %s, s20, 8" % sRW)
    a("s_and_b32 s3, s2, %d" % (0 if 'rnorot' in FL else 7))
    a("s_lshl_b32 s3, s3, 1")
    a("s_sub_u32 s31, 16, s3")
    a("s_mov_b32 s30, s31")
    a("s_lshl_b32 s25, s3, 7")
    a("s_add_u32 %s, %s, s25" % (sRX, sRX))
    a("s_lshl_b32 s25, s3, 19")
    a("s_add_u32 %s, %s, s25" % (sRW, sRW))
    a("s_mov_b32 s26, %d" % ((64 * 8192 - 1024 * 8192) & 0xffffffff))
    a("s_mov_b32 s27, %d" % (64 * 8192))
    a("s_lshl_b32 s28, s101, 13")
    a("s_mov_b64 s[8:9], s[32:33]")
    a("s_mov_b64 s[12:13], s[40:41]")
    a("s_mov_b32 s14, %d" % (8 * MB))
    srd(a, 52, 50, 51, FLG_END, WS_XCH)


def r_setup_rd(a, T):
    a("v_and_b32 v%d, 15, v0" % T)
    a("v_lshlrev_b32 v%d, 7, v%d" % (T, T))
    a("s_add_u32 s3, s28, %d" % RXO[0])
    a("v_add_u32 v%d, s3, v%d" % (T, T))
    a("v_bfe_u32 v%d, v0, 1, 3" % (T + 1))
    a("v_lshrrev_b32 v%d, 4, v0" % (T + 2))
    a("v_xor_b32 v%d, v%d, v%d" % (T + 1, T + 1, T + 2))
    a("v_lshl_add_u32 v%d, v%d, 4, v%d" % (vRXr, T + 1, T))
    a("v_xor_b32 v%d, 64, v%d" % (vRXr + 1, vRXr))
    a("v_add_u32 v%d, 0x10000, v%d" % (vRXr + 2, vRXr))
    a("v_add_u32 v%d, 0x10000, v%d" % (vRXr + 3, vRXr + 1))
    a("v_bfe_u32 v%d, v0, 2, 2" % T)
    a("v_lshl_add_u32 v%d, v%d, 3, v%d" % (T + 5, T + 2, T))
    a("v_lshlrev_b32 v%d, 8, v%d" % (T + 1, T + 5))
    a("v_and_b32 v%d, 1, v0" % (T + 3))
    a("v_lshl_add_u32 v%d, v%d, 3, v%d" % (T + 1, T + 3, T + 1))
    a("v_lshlrev_b32 v%d, 1, v%d" % (T, T))
    a("v_and_or_b32 v%d, v%d, 8, v%d" % (T, T + 5, T))
    a("v_bfe_u32 v%d, v0, 1, 1" % (T + 2))
    for ni in range(8):
        a("v_add_u32 v%d, %d, v%d" % (T + 3, 2 * ni, T + 2))
        a("v_xor_b32 v%d, v%d, v%d" % (T + 3, T + 3, T))
        a("v_lshl_add_u32 v%d, v%d, 4, v%d" % (vRWr + ni, T + 3, T + 1))


def r_pack(mi):
    L = []
    for ds in range(4):
        r0, r1 = racc(mi, 2 * ds), racc(mi, 2 * ds + 1)
        L += scale(r0) + scale(r1) + cvt4(r0, r0, r1)
        L += ["v_accvgpr_write_b32 a%d, v%d" % (k2.aQ + 16 * mi + 4 * ds + e, r0 + e) for e in range(4)]
        L += ["ds_write_b128 v%d, %s offset:%d" % (vT, v4(r0), (4 * mi + ds) * 1024)]
    return L


def r_step(a, k, late=None, valu=None, post_bar=None):
    M = []
    for mi in range(4):
        for ni in range(8):
            d = v4(racc(mi, ni))
            for n, hs in enumerate((0, 1) if ni % 2 == 0 else (1, 0)):
                M.append(mfma(d, a4(rw(k, ni, hs)), a4(rx(mi, hs)), "0" if (k == 0 and n == 0) else d))
    G = [[] for _ in range(64)]
    BB = 40
    G[1] += r_xread(k, 2)
    G[17] += r_xread(k, 3)
    tags = ",".join(["rx%d" % (k + 1)] * (k < 15) + ["rw%d" % (k + 2)] * (k < 14))
    G[BB] = [(";@waitvm %s lgkmcnt(0)" % tags) if tags else "s_waitcnt lgkmcnt(0)", "s_barrier ;@keep"]
    if k < 15:
        G[BB] += r_xread(k + 1, 0)
        G[49] += r_xread(k + 1, 1)
        L = r_wread(k + 1)
        c = [g for g in range(0, BB - 5, 2)]
        for i in range(16):
            G[c[i] + (1 if c[i] % 16 else 0) + (1 if c[i] % 16 == 0 else -1)] += L[2 * i:2 * i + 2]
    G[BB] += post_bar or []
    for r in range(4):
        if r < 3 or k < 15:
            G[16 * r + 15].append(";@need %s" % a4(rx(r + 1, 1)))
    I = (r_dma_x(k + 3) if k + 3 < 16 else []) + (r_dma_w(k + 4) if k + 4 < 16 else []) + (late or [])
    free = [g for g in range(64) if not G[g] or G[g][0].startswith(";@need")]

    def put(U, lo, hi):
        c = [g for g in free if lo <= g < hi]
        assert len(U) <= len(c), (k, len(U), len(c))
        pos = [c[(i * len(c)) // len(U)] for i in range(len(U))]
        for g, u in zip(pos, U):
            G[g] = u + G[g]
            free.remove(g)
    put(a.carry, 0, BB - 1)
    n = len(I) if k == 15 else min(len(I), (len(I) * 2) // 5 + 1)
    put(I[:n], BB + 1, 64)
    a.carry = I[n:]
    for lo, hi, U in valu or []:
        for i, u in enumerate(U):
            G[lo + (i * (hi - lo)) // len(U)] += u
    for i in range(64):
        a(M[i])
        for y in G[i]:
            a(y)


def r_phase(a, tl):
    a(";@waitvm rw1,rx0")
    a("s_barrier")
    for x in r_wread(0) + r_xread(0, 0) + r_xread(0, 1):
        a(x)
    a("v_and_b32 v23, 1, v0")
    a("v_lshlrev_b32 v23, 7, v23")
    a("v_mov_b32 v%d, 0" % (vT + 2))
    a("v_mov_b32 v%d, 1" % (vT + 3))
    a("s_lshl_b32 s3, s101, 14")
    a("s_add_u32 s3, s3, 98304")
    a("v_add_u32 v%d, s3, v%d" % (vT, vLane))
    a("s_waitcnt lgkmcnt(0)")
    c_ = Col()
    c_("s_mov_b64 s[4:5], s[50:51]")
    k2.early(c_)
    E = c_.atoms(2)
    L0, L1, LV = k2.early_loads()
    c = f32bits((128 ** -0.5) * math.log2(math.e))
    for k in range(16):
        kw = {}
        if k == 1:
            kw['post_bar'] = [";@waitvm ob", "s_mov_b64 exec, 1", "buffer_store_dword v%d, v%d, s[52:55], s65 offen sc1" % (vT + 3, vT + 2), "s_mov_b64 exec, -1"]
        if k == 11:
            kw['late'] = [["buffer_load_dword v22, v23, s[36:39], 0 offen sc1"]]
        if k == 13:
            kw['post_bar'] = [";@waitvm pc", "v_cmp_gt_u32 vcc, 0x80, v22", "s_cbranch_vccnz Lk1_spin ;@keep", "Lk1_got: ;@keep"]
            kw['valu'] = [(41, 64, E)]
        if k == 14:
            a.carry = a.carry + L1
            kw['late'] = LV
            kw['valu'] = [(0, 2, [["s_mov_b32 s6, 0x%08x" % c], ["s_mov_b32 s7, s6"]])]
        if k == 15:
            kw['late'] = L0
            z = ["v_accvgpr_write_b32 a%d, 0" % r for r in range(k2.aO, k2.aO + 48)]
            kw['valu'] = [(0, 18, [z[i:i + 3] for i in range(0, 48, 3)])]
            for mi in range(3):
                P_ = r_pack(mi)
                kw['valu'].append((16 * (mi + 1) + 3, min(64, 16 * (mi + 2) + 2), [P_[i:i + 4] for i in range(0, len(P_), 4)]))
        r_step(a, k, **kw)
        tl.stamp(40 + k)
    for x in r_pack(3):
        a(x)
    a("s_mov_b64 s[44:45], s[42:43]")


def b_job(a, tl):
    T = vT
    a("v_and_b32 v%d, 15, v0" % T)
    a("v_lshlrev_b32 v%d, 7, v%d" % (T, T))
    a("v_bfe_u32 v%d, v0, 1, 3" % (T + 1))
    a("v_lshrrev_b32 v%d, 4, v0" % (T + 2))
    a("v_xor_b32 v%d, v%d, v%d" % (T + 1, T + 1, T + 2))
    a("v_lshl_add_u32 v%d, v%d, 4, v%d" % (vBXr, T + 1, T))
    a("v_xor_b32 v%d, 64, v%d" % (vBXr + 1, vBXr))
    a("v_add_u32 v%d, %d, v%d" % (vBXr + 2, BXO[0], vBXr))
    a("v_add_u32 v%d, %d, v%d" % (vBXr + 3, BXO[0], vBXr + 1))
    a("v_bfe_u32 v%d, v0, 2, 2" % T)
    a("v_lshl_add_u32 v%d, v%d, 3, v%d" % (T + 5, T + 2, T))
    a("v_mul_u32_u24 v%d, 384, v%d" % (T + 1, T + 5))
    a("v_and_b32 v%d, 1, v0" % (T + 3))
    a("v_lshl_add_u32 v%d, v%d, 3, v%d" % (T + 1, T + 3, T + 1))
    a("v_add_u32 v%d, %d, v%d" % (T + 1, BWO[2], T + 1))
    a("v_lshrrev_b32 v%d, 1, v%d" % (T, T + 5))
    a("v_and_b32 v%d, 4, v%d" % (T, T))
    a("v_and_or_b32 v%d, v%d, 2, v%d" % (T, T + 5, T))
    a("v_bfe_u32 v%d, v0, 1, 1" % (T + 2))
    a("s_mul_i32 s4, %s, 3" % sWave)
    for i in range(3):
        a("s_add_u32 s3, s4, %d" % i)
        a("s_and_b32 s5, s3, 3")
        a("s_lshl_b32 s5, s5, 1")
        a("s_lshr_b32 s3, s3, 2")
        a("s_lshl_b32 s3, s3, 7")
        a("v_add_u32 v%d, s5, v%d" % (T + 3, T + 2))
        a("v_xor_b32 v%d, v%d, v%d" % (T + 3, T + 3, T))
        a("v_lshl_add_u32 v%d, v%d, 4, v%d" % (T + 3, T + 3, T + 1))
        a("v_add_u32 v%d, s3, v%d" % (vBWr + i, T + 3))
        a("v_add_u32 v%d, %d, v%d" % (vBWr + 3 + i, BWO[1] - BWO[2], vBWr + i))
    srd(a, 60, 40, 41, 8 * MB)
    srd(a, 44, 32, 33, 4 * MB)
    a("v_lshlrev_b32 v117, 7, v0")
    a("v_add_u32 v117, s64, v117")
    a("v_lshrrev_b32 v118, 1, v117")
    a("s_barrier")
    tl.stamp(8)
    for x in b_wread(0):
        a(x)
    for r in range(BL):
        for x in b_xread(0, r):
            a(x)
    a("s_waitcnt lgkmcnt(0)")
    a("s_barrier")
    a.carry = a.carry + b_dma_w(3)
    vQa, vKa, vVa = 120, 121, 122
    MA, MB_, MA0, ONE = 144, 148, 152, 156
    QF, KF, VF, SS, OO, LL, MX = 32, 48, 68, 88, 32, 120, 136
    NEG = 0xf149f2ca
    T = 128
    c_ = Col()
    c_("v_and_b32 v%d, 15, v0" % T)
    c_("v_mul_u32_u24 v%d, %d, v%d" % (T, PITCH, T))
    c_("v_lshrrev_b32 v%d, 4, v0" % (T + 1))
    c_("v_lshl_add_u32 v%d, v%d, 3, v%d" % (T, T + 1, T))
    c_("s_mul_i32 s3, %s, 96" % sWave)
    c_("s_add_u32 s3, s3, %d" % STG)
    c_("v_add_u32 v%d, s3, v%d" % (vST, T))
    c_("v_and_b32 v%d, 15, v0" % T)
    c_("v_lshrrev_b32 v%d, 4, v0" % (T + 1))
    c_("s_add_u32 s3, %s, 16" % sWm)
    c_("v_lshl_add_u32 v%d, v%d, 1, s3" % (T + 2, T))
    c_("s_lshl_b32 s4, %s, 6" % sWn)
    c_("s_add_u32 s4, s4, %d" % STG)
    c_("v_mul_u32_u24 v%d, %d, v%d" % (vQa, PITCH, T + 2))
    c_("v_lshl_add_u32 v%d, v%d, 4, v%d" % (vQa, T + 1, vQa))
    c_("v_add_u32 v%d, s4, v%d" % (vQa, vQa))
    c_("v_subrev_u32 v%d, 32, v%d" % (T + 2, T + 2))
    c_("v_max_i32 v%d, 0, v%d" % (T + 2, T + 2))
    c_("v_mul_u32_u24 v%d, %d, v%d" % (vKa, PITCH, T + 2))
    c_("v_lshl_add_u32 v%d, v%d, 4, v%d" % (vKa, T + 1, vKa))
    c_("v_add_u32 v%d, s4, v%d" % (vKa, vKa))
    c_("v_bfe_u32 v%d, v0, 2, 2" % (T + 3))
    c_("v_lshl_add_u32 v%d, v%d, 2, v%d" % (T + 3, T + 1, T + 3))
    c_("v_lshl_add_u32 v%d, v%d, 1, s3" % (T + 3, T + 3))
    c_("v_and_b32 v%d, 3, v0" % (T + 4))
    c_("v_lshlrev_b32 v%d, 3, v%d" % (T + 4, T + 4))
    c_("v_add_u32 v%d, s4, v%d" % (T + 4, T + 4))
    c_("v_mad_u32_u24 v%d, v%d, s5, v%d" % (vVa, T + 3, T + 4) if False else "s_movk_i32 s5, %d" % PITCH)
    c_("v_mad_u32_u24 v%d, v%d, s5, v%d" % (vVa, T + 3, T + 4))
    c_("v_subrev_u32 v%d, 32, v%d" % (T + 3, T + 3))
    c_("v_max_i32 v%d, 0, v%d" % (T + 3, T + 3))
    c_("v_mad_u32_u24 v%d, v%d, s5, v%d" % (vVa + 1, T + 3, T + 4))
    c_("v_lshlrev_b32 v%d, 2, v%d" % (T + 1, T + 1))
    c_("v_sub_u32 v%d, v%d, v%d" % (T, T, T + 1))
    c_("v_mov_b32 v%d, 0x%08x" % (T + 1, NEG))
    c_("s_cmp_eq_u32 %s, 0" % sRB)
    c_("s_cselect_b32 s3, 0x%08x, 0" % NEG)
    for r in range(4):
        c_("v_cmp_lt_i32 vcc, %d, v%d" % (r - 9, T))
        c_("v_cndmask_b32 v%d, 0, v%d, vcc" % (MA + r, T + 1))
        c_("v_subrev_u32 v%d, %d, v%d" % (T + 2, r, T))
        c_("v_cmp_lt_u32 vcc, 7, v%d" % (T + 2))
        c_("v_cndmask_b32 v%d, 0, v%d, vcc" % (MB_ + r, T + 1))
        c_("v_min_f32 v%d, s3, v%d" % (MA0 + r, MA + r))
        c_("v_mov_b32 v%d, 0x3f803f80" % (ONE + r))
    srd(c_, 16, 50, 51, 4 * MB, WS_OB)
    c_("s_lshl_b32 s3, %s, 18" % sRB)
    c_("s_lshl_b32 s4, %s, 14" % sCP)
    c_("s_add_u32 s3, s3, s4")
    c_("s_lshl_b32 s4, %s, 13" % sWm)
    c_("s_add_u32 s3, s3, s4")
    c_("s_lshl_b32 s4, %s, 10" % sWn)
    c_("s_add_u32 s6, s3, s4")
    c = (32 ** -0.5) * math.log2(math.e)
    c_("s_mov_b32 s7, 0x%08x" % f32bits(c))
    c_("s_lshl_b32 s65, %s, 8" % sRB)
    c_("s_lshl_b32 s3, %s, 4" % sCP)
    c_("s_add_u32 s65, s65, s3")
    c_("s_lshl_b32 s3, s101, 2")
    c_("s_add_u32 s65, s65, s3")
    c_("s_add_u32 s65, s65, %d" % FLG_B)
    c_("s_mov_b32 s95, 0")
    k2.ids(c_)
    A1 = c_.atoms(2)
    c_ = Col()
    r_setup_w(c_, 136)
    R13 = c_.atoms(2)
    c_ = Col()
    r_setup_x(c_, 136)
    R14 = c_.atoms(2)
    L2 = r_dma_x(1) + r_dma_w(3) + r_dma_x(2)
    h = len(A1) // 2
    for t in range(16):
        kw = {}
        if t in (8, 11):
            z = ["v_mov_b32 v%d, 0" % r for r in range(k2.OV + (0 if t == 8 else 48), k2.OV + (48 if t == 8 else 96))]
            kw['valu'] = (0, 54, [z[i:i + 2] for i in range(0, 48, 2)])
        if t == 9:
            kw['valu'] = (0, 54, A1[:h])
        if t == 10:
            kw['valu'] = (0, 54, A1[h:])
        if t in WQ and 'nowq' not in FL:
            kw['late'] = [[a.warm2[WQ.index(t)]]]
        if t == 13:
            kw['valu'] = (0, 54, R13)
        if t == 14:
            kw['valu'] = (0, 38, R14)
            kw['late'] = r_dma_w(0) + r_dma_x(0) + r_dma_w(1) + r_dma_w(2)
        a(";@wtphase %d" % (4 if t < 9 else 5))
        b_step(a, t, a.bstores[t], **kw)
        tl.stamp(20 + t)
    assert not a.carry
    tl.stamp(9)
    for mi in (7, 8):
        for x in b_stage_out(mi):
            a(x)
    a("s_waitcnt lgkmcnt(0)")
    a("s_barrier")
    n0 = len(a.ins)
    a("ds_read_b128 %s, v%d offset:128" % (v4(KF), vKa))
    for q in range(4):
        a("ds_read_b128 %s, v%d offset:%d" % (v4(QF + 4 * q), vQa, q * 32 * PITCH))
        a("ds_read_b128 %s, v%d offset:%d" % (v4(KF + 4 + 4 * q), vQa, q * 32 * PITCH + 128))
    for f in range(2):
        a("ds_read_b64_tr_b16 %s, v%d offset:%d" % (v2(VF + 10 * f), vVa + 1, 256 + 32 * f))
        for q in range(4):
            a("ds_read_b64_tr_b16 %s, v%d offset:%d" % (v2(VF + 10 * f + 2 + 2 * q), vVa, q * 32 * PITCH + 256 + 32 * f))
    r_setup_rd(a, vT)
    a("s_waitcnt lgkmcnt(0)")
    a("s_barrier")
    nw = len(a.ins) - n0
    for q in range(4):
        a(mfma(v4(SS + 8 * q), v4(KF + 4 * q), v4(QF + 4 * q), v4(MA0 if q == 0 else MA)))
        a(mfma(v4(SS + 8 * q + 4), v4(KF + 4 * q + 4), v4(QF + 4 * q), v4(MB_)))
    for q in range(4):
        s_, m = SS + 8 * q, MX + q
        a("v_max3_f32 v%d, v%d, v%d, v%d" % (m, s_, s_ + 1, s_ + 2))
        a("v_max3_f32 v%d, v%d, v%d, v%d" % (m, m, s_ + 3, s_ + 4))
        a("v_max3_f32 v%d, v%d, v%d, v%d" % (m, m, s_ + 5, s_ + 6))
        a("v_max_f32 v%d, v%d, v%d" % (m, m, s_ + 7))
    for sw in ("v_permlane16_swap_b32", "v_permlane32_swap_b32"):
        for q in range(4):
            a("v_mov_b32 v%d, v%d" % (MX + 4 + q, MX + q))
        for q in range(4):
            a("%s v%d, v%d" % (sw, MX + q, MX + 4 + q))
        for q in range(4):
            a("v_max_f32 v%d, v%d, v%d" % (MX + q, MX + q, MX + 4 + q))
    for q in range(4):
        a("v_mul_f32 v%d, s7, v%d" % (MX + q, MX + q))
    for q in range(4):
        s_ = SS + 8 * q
        for e in range(8):
            a("v_fma_f32 v%d, v%d, s7, -v%d" % (s_ + e, s_ + e, MX + q))
        for e in range(8):
            a("v_exp_f32 v%d, v%d" % (s_ + e, s_ + e))
    for q in range(4):
        s_ = SS + 8 * q
        for e in range(4):
            a("v_cvt_pk_bf16_f32 v%d, v%d, v%d" % (s_ + e, s_ + 2 * e, s_ + 2 * e + 1))
    for q in range(4):
        a(mfma(v4(LL + 4 * q), v4(ONE), v4(SS + 8 * q), "0"))
        for f in range(2):
            a(mfma(v4(OO + 8 * q + 4 * f), v4(VF + 10 * f + 2 * q), v4(SS + 8 * q), "0"))
    for q in range(4):
        a("v_rcp_f32 v%d, v%d" % (LL + 4 * q, LL + 4 * q))
    for q in range(4):
        o = OO + 8 * q
        for e in range(0, 8, 2):
            a("v_pk_mul_f32 %s, %s, %s op_sel_hi:[1,0]" % (v2(o + e), v2(o + e), v2(LL + 4 * q)))
        for e in range(4):
            a("v_cvt_pk_bf16_f32 v%d, v%d, v%d" % (o + e, o + 2 * e, o + 2 * e + 1))
        a("s_add_u32 s3, s6, %d" % (q * 2048))
        a("buffer_store_dwordx4 %s, v%d, s[16:19], s3 offen sc1 ;@vm ob" % (v4(o), vLane))
    from asmlib import Ins
    body = a.ins[n0:]
    del a.ins[n0:]
    lo, hi = nw, len(body) - 45
    assert NEARLY + NSPS * (TARR - 1) >= 32 and TARR <= 9
    for i, x in enumerate(body):
        a.ins.append(x)
        if lo <= i < hi:
            for k in range(((i - lo) * len(L2)) // (hi - lo), ((i - lo + 1) * len(L2)) // (hi - lo)):
                a.ins += [Ins(y) for y in L2[k]]


def gen():
    a = Asm()
    a.carry = []
    a.bstores = [[store(n) for n in range(NEARLY + NSPS * t, min(32, NEARLY + NSPS * (t + 1)))] for t in range(16)]
    tl = TL(a, 0, 50, 'tl' in FL)
    a.tl = tl
    T = vT
    a("s_cmp_lt_u32 s2, 256")
    a("s_cbranch_scc1 Lk1_go")
    a("s_endpgm")
    a.label("Lk1_go")
    tl.early()
    a("s_load_dwordx16 s[32:47], s[0:1], 0")
    a("s_load_dwordx2 s[48:49], s[0:1], 64")
    a("s_load_dwordx2 s[50:51], s[0:1], 88")
    a("s_load_dwordx2 s[90:91], s[0:1], 80")
    a("v_lshrrev_b32 v%d, 6, v0" % T)
    a("v_readfirstlane_b32 %s, v%d" % (sWave, T))
    a("v_and_b32 v0, 63, v0")
    a("v_lshlrev_b32 v%d, 4, v0" % vLane)
    a("s_mov_b32 s101, %s" % sWave)
    a("s_lshr_b32 %s, %s, 1" % (sWm, sWave))
    a("s_and_b32 %s, %s, 1" % (sWn, sWave))
    a("s_lshl_b32 %s, %s, 12" % (sM0, sWave))
    a("s_and_b32 s3, s2, 1")
    a("s_lshl_b32 s3, s3, 2")
    a("s_bfe_u32 s6, s2, 0x20003")
    a("s_add_u32 s3, s3, s6")
    a("s_lshl_b32 %s, s3, 8" % sM)
    a("s_bfe_u32 s3, s2, 0x20001")
    a("s_lshl_b32 s3, s3, 2")
    a("s_bfe_u32 s7, s2, 0x20005")
    a("s_add_u32 s3, s3, s7")
    a("s_lshl_b32 %s, s3, 8" % sN)
    a("s_mov_b32 s5, 10")
    a("s_lshl_b32 s3, %s, 7" % sWm)
    a("s_lshl_b32 s4, %s, 5" % sWn)
    a("s_add_u32 s3, s3, s4")
    a("v_lshrrev_b32 v%d, 3, v0" % T)
    a("v_add_u32 v%d, s3, v%d" % (T, T))
    a("v_and_b32 v%d, 7, v0" % (T + 1))
    for j in range(4):
        a("v_add_u32 v%d, %d, v%d" % (T + 2, 8 * j, T))
        a("v_bfe_u32 v%d, v%d, 1, 3" % (T + 3, T + 2))
        a("v_xor_b32 v%d, v%d, v%d" % (T + 3, T + 3, T + 1))
        a("v_lshlrev_b32 v%d, s5, v%d" % (T + 2, T + 2))
        a("v_lshl_add_u32 v%d, v%d, 4, v%d" % (T + 2, T + 3, T + 2))
        a("v_subrev_u32 v%d, %d, v%d" % (vXd + j, j * 1024, T + 2))
    a("s_lshl_b32 s3, %s, 3" % sWave)
    a("v_lshrrev_b32 v%d, 5, v0" % T)
    a("v_add_u32 v%d, s3, v%d" % (T, T))
    a("v_and_b32 v%d, 31, v0" % (T + 1))
    for j in range(4):
        a("v_add_u32 v%d, %d, v%d" % (T + 2, 2 * j, T))
        a("v_and_b32 v%d, 3, v%d" % (T + 3, T + 2))
        a("v_lshlrev_b32 v%d, 1, v%d" % (T + 3, T + 3))
        a("v_and_or_b32 v%d, v%d, 8, v%d" % (T + 3, T + 2, T + 3))
        a("v_xor_b32 v%d, v%d, v%d" % (T + 3, T + 3, T + 1))
        a("v_lshlrev_b32 v%d, 13, v%d" % (T + 2, T + 2))
        a("v_lshl_add_u32 v%d, v%d, 4, v%d" % (T + 2, T + 3, T + 2))
        a("v_subrev_u32 v%d, %d, v%d" % (vWd + j, j * 1024, T + 2))
    a("s_lshl_b32 %s, %s, s5" % (sXo, sM))
    a("s_lshl_b32 %s, 64, s5" % sLdx64)
    a("s_mov_b32 %s, %s" % (sXre, sXo))
    a("s_lshl_b32 %s, %s, 1" % (sWo, sN))
    a("s_mov_b32 %s, %s" % (sWre, sWo))
    a("s_lshl_b32 s3, 1, s5")
    a("s_add_u32 %s, %s, s3" % (sXend, sXo))
    a("s_lshl_b32 s3, s3, 12")
    a("s_add_u32 %s, %s, s3" % (sWend, sWo))
    a("s_bfe_u32 s3, s2, 0x20001")
    a("s_and_b32 s4, s2, 1")
    a("s_lshl_b32 s4, s4, 1")
    a("s_add_u32 s3, s3, s4")
    a("s_and_b32 s3, s3, %d" % (0 if 'norot' in FL else 3))
    a("s_sub_u32 s4, s5, 2")
    a("s_lshl_b32 s3, s3, s4")
    a("s_add_u32 %s, %s, s3" % (sXo, sXo))
    a("s_lshl_b32 s3, s3, 12")
    a("s_add_u32 %s, %s, s3" % (sWo, sWo))
    a("s_waitcnt lgkmcnt(0)")
    a("s_mov_b64 s[8:9], s[34:35]")
    a("s_mov_b32 s10, %d" % (2 * MB))
    a("s_mov_b32 s11, 0x00020000")
    a("s_cmp_lt_u32 s2, 128")
    a("s_cselect_b64 s[12:13], s[38:39], s[40:41]")
    a("s_mov_b32 s14, %d" % (4 * MB))
    a("s_mov_b32 s15, 0x00020000")
    a("s_mov_b64 s[40:41], s[36:37]")

    def now(pre, ld, post):
        for x in pre + ["s_nop 0"] + ([] if 'nodma' in FL else ld) + post:
            a(x)
    now(*dma_w(0, 0))
    now(*dma_x(0, 0))
    now(*dma_w(0, 1))
    tl.stamp(7)
    srd(a, 16, 50, 51, FLG_END - FLG, WS_XCH + FLG)
    for r in range(4):
        a("v_mov_b32 v%d, 0" % (T + r))
    a("s_lshl_b32 s3, s2, 4")
    a("buffer_store_dwordx4 %s, v%d, s[16:19], s3 offen sc1 ;@zero" % (v4(T), T))
    a("s_and_b32 s3, s2, 7")
    a("s_lshr_b32 s4, s2, 6")
    a("s_lshl_b32 s4, s4, 3")
    a("s_add_u32 s3, s3, s4")
    a("s_lshl_b32 s3, s3, 4")
    a("s_add_u32 s3, s3, %d" % (FLG_T - FLG))
    a("s_bfe_u32 s4, s2, 0x30003")
    a("s_lshl_b32 s4, s4, 9")
    a("s_add_u32 s92, s3, s4")
    a("s_sub_u32 s4, %d, s4" % (15 * 512))
    a("s_add_u32 s93, s3, s4")
    a("buffer_store_dwordx4 %s, v%d, s[16:19], s92 offen sc1 ;@zero" % (v4(T), T))
    a("buffer_store_dwordx4 %s, v%d, s[16:19], s93 offen sc1 ;@zero" % (v4(T), T))
    for x in b_ids("s92", "s93"):
        a(x)
    a("s_lshl_b32 s92, s92, 8")
    a("s_lshl_b32 s93, s93, 4")
    a("s_add_u32 s92, s92, s93")
    a("s_add_u32 s92, s92, %d" % (FLG_B - FLG))
    a("buffer_store_dwordx4 %s, v%d, s[16:19], s92 offen sc1 ;@zero" % (v4(T), T))
    a("s_lshl_b32 s3, s2, 2")
    a("s_add_u32 s3, s3, %s" % sWave)
    a("s_mul_i32 s6, s3, 6144")
    a("s_lshl_b32 s7, s3, 12")
    a("s_lshl_b32 s64, s3, 13")
    a("v_min_u32 v%d, 47, v0" % vPF)
    a("v_lshlrev_b32 v%d, 7, v%d" % (vPF, vPF))
    a("v_lshlrev_b32 v%d, 6, v0" % (vPF + 2))
    srd(a, 56, 46, 47, 6 * MB)
    srd(a, 60, 44, 45, 4 * MB)
    warm = ({50: ["buffer_load_dword v%d, v%d, s[56:59], s6 offen" % (vPFd, vPF)]}, {50: ["buffer_load_dword v%d, v%d, s[60:63], s7 offen" % (vPFd, vPF + 2)]})
    a.warm2 = ["buffer_load_dword v116, v117, s[60:63], 0 offen", "buffer_load_dword v116, v118, s[44:47], 0 offen"]
    a.label("Lc0", keep=True)
    now(*[[y.replace("@vm i00", "@vm p1") for y in z] for z in dma_w(1, 0)])
    a("s_lshl_b32 s4, %s, 13" % sWm)
    a("v_and_b32 v%d, 15, v0" % T)
    a("v_lshlrev_b32 v%d, 7, v%d" % (T, T))
    a("v_add_u32 v%d, s4, v%d" % (T, T))
    a("v_bfe_u32 v%d, v0, 1, 3" % (T + 1))
    a("v_lshrrev_b32 v%d, 4, v0" % (T + 2))
    a("v_xor_b32 v%d, v%d, v%d" % (T + 1, T + 1, T + 2))
    a("v_lshl_add_u32 v%d, v%d, 4, v%d" % (vXr, T + 1, T))
    a("v_xor_b32 v%d, 64, v%d" % (vXr + 1, vXr))
    a("v_bfe_u32 v%d, v0, 2, 2" % T)
    a("v_lshl_add_u32 v%d, v%d, 3, v%d" % (T + 5, T + 2, T))
    a("v_lshlrev_b32 v%d, 9, v%d" % (T + 1, T + 5))
    a("v_and_b32 v%d, 1, v0" % (T + 3))
    a("v_lshl_add_u32 v%d, v%d, 3, v%d" % (T + 1, T + 3, T + 1))
    a("v_add_u32 v%d, %d, v%d" % (T + 1, WB, T + 1))
    a("v_lshlrev_b32 v%d, 1, v%d" % (T, T))
    a("v_and_or_b32 v%d, v%d, 8, v%d" % (T, T + 5, T))
    a("v_bfe_u32 v%d, v0, 1, 1" % (T + 2))
    a("s_lshl_b32 s4, %s, 4" % sWn)
    for ni in range(8):
        a("s_add_u32 s3, s4, %d" % (2 * ni))
        a("v_add_u32 v%d, s3, v%d" % (T + 3, T + 2))
        a("v_xor_b32 v%d, v%d, v%d" % (T + 3, T + 3, T))
        a("v_lshl_add_u32 v%d, v%d, 4, v%d" % (vWr + ni, T + 3, T + 1))
    npf = 4 if 'notouch' in FL else 5
    a(";@waitvm i11")
    a("s_barrier")
    tl.stamp(1)
    for x in wread(0, 0) + wread(0, 1) + xread(0, 0) + xread(0, 1):
        a(x)
    now(*dma_x(0, 1))
    now(*dma_w(1, 1))
    a("s_barrier")
    code_touch(a, "Lc1", "Lc3", T, vPFd, 92)
    a.carry = units(*dma_x(1, 0)) + units(*dma_w(0, 0)) + ([] if FL2 else units(*dma_x(1, 1)) + units(*dma_w(0, 1)))
    carry0 = list(a.carry)
    a.label("Lc1", keep=True)
    a("s_cmp_lt_u32 s2, 128")
    a("s_cbranch_scc0 Lk1_kv")
    a(";@wtphase 1")
    dstep(a, False, first=True)
    dstep(a, False, mem=warm)
    tail(a, False)
    tl.stamp(2)
    a("s_branch Lk1_b")
    a.label("Lk1_spin")
    a("s_add_u32 s95, s95, 1")
    a("s_cmp_gt_u32 s95, %d" % envi("SPINMAX", 0x100000))
    a("s_cbranch_scc1 Lk1_got")
    a("s_sleep 2")
    a("buffer_load_dword v22, v23, s[36:39], 0 offen sc1 ;@cond")
    a("s_waitcnt vmcnt(0)")
    a("v_cmp_gt_u32 vcc, 0x80, v22")
    a("s_cbranch_vccnz Lk1_spin")
    a("s_branch Lk1_got")
    a.label("Lk1_kv")
    a.carry = carry0
    dstep(a, True, first=True)
    dstep(a, True, mem=warm)
    tail(a, True)
    tl.stamp(2)
    a.label("Lk1_b")
    tl.stamp(6)
    b_job(a, tl)
    tl.stamp(10)
    r_phase(a, tl)
    tl.lo = 4
    tl.dump(vT, "s101")
    n1 = len(a.ins)

    a(";@wtphase 6")
    a.label("Lc2")
    k2.main(a)
    a.label("Lc3")
    for i, c in enumerate(a.ins[:n1]):
        if c.wide_store_data and ';@zero' not in c.text:
            left = set(c.wide_store_data)
            for p_ in reversed(a.ins[:i]):
                hit = left & p_.wr
                if hit:
                    assert p_.mn.startswith("v_cvt_pk") or p_.mn.startswith("v_accvgpr_write"), (c.text, p_.text)
                    left -= hit
                    if not left:
                        break
    for i, c in enumerate(a.ins[:n1]):
        if c.mn == "v_accvgpr_write_b32" and c.rd and min(r[1] for r in c.wr) >= aHOLD:
            for p_ in reversed(a.ins[:i]):
                if c.rd & p_.wr:
                    assert p_.mn.startswith("v_cvt_pk"), (c.text, p_.text)
                    break
    return a.finish(auto_lgkm=True), 512, 256, 256, 163840
```

```python
from asmlib import Asm, srd, v4, v2, f32bits
from common import *
import k3

vLane, vRd, vNEG, vT = 1, 2, 4, 8
TRI, CUP, CDI, CLO = 16, 20, 24, 28
S0, S1, OV = 32, 96, 160
aQ, aO, aL, aONES, aFR = 0, 64, 96, 112, 116
NFR = 16
aQ2 = aFR + 4 * NFR
NA = aQ2 + 64
SB = (S0, S1)
SCR = 131072
LEAD = 4
sHead, sP, sWave, sU, sG, sK, sV, sWrapK, sBase, sM0, sCnt, sFlag, sRT = (
    "s20", "s21", "s22", "s23", "s24", "s25", "s26", "s27", "s28", "s29", "s30", "s60", "s31")
LO_BITS = (127 - 60) << 23
SPAN = (120 << 23)
SF = "sc1"
SUM4 = "sum4" in FL
BAR1 = True
SHARE = "noshare" not in FL
SKIP = "noskip" not in FL
vRdV = 5
sD = "s42"


def a4(b):
    return "a[%d:%d]" % (b, b + 3)


def S(b, kb, qb):
    return SB[b] + 4 * (4 * kb + qb)


def Oop(db, qb):
    return v4(OV + 4 * (4 * db + qb)) if db < 6 else a4(aO + 4 * (4 * (db - 6) + qb))


def fr(f):
    return a4(aFR + 4 * (f % NFR))


def mfma(d, a_, b_, c):
    return "v_mfma_f32_16x16x32_bf16 %s, %s, %s, %s" % (d, a_, b_, c)


DBX = [0]


def rd(f, par):
    if f < 16:
        off = f * 1024
    else:
        db, j = ((f - 16) >> 1) ^ DBX[0], f & 1
        off = 32768 + (j * 8 + db) * 1024
    return "ds_read_b128 %s, v%d offset:%d" % (fr(f), (vRd if f < 16 else vRdV) + par, off)


def live(ty, kb, qb):
    return ty == 'N' or (ty == 'T' and kb <= qb)


def soft(b, j, ty='N'):
    E, C = [], []
    for qb in range(4):
        for h in range(2):
            r = S(b, 2 * j + h, qb)
            E += ["v_exp_f32 v%d, v%d" % (r + i, r + i) for i in range(4)]
            d = S(b, 2 * j, qb) + 2 * h
            C += ["v_cvt_pk_bf16_f32 v%d, v%d, v%d" % (d, r, r + 1), "v_cvt_pk_bf16_f32 v%d, v%d, v%d" % (d + 1, r + 2, r + 3)]
            if not live(ty, 2 * j + h, qb):
                E[-4:] = [""] * 4
                C[-2:] = ["v_mov_b32 v%d, 0" % d, "v_mov_b32 v%d, 0" % (d + 1)] if live(ty, 2 * j, qb) else ["", ""]
    if 'noexp' in FL:
        E = [x.replace("v_exp_f32", "v_mov_b32") for x in E]
    return E, C


def soft_plain(a, b, j, ty='N'):
    E, C = soft(b, j, ty)
    for g in range(8):
        for x in E[4 * g:4 * g + 4]:
            a(x)
        if g:
            for x in C[2 * g - 2:2 * g]:
                a(x)
    for x in C[14:]:
        a(x)


def dma(isV, slot, g1=True):
    s = sV if isV else sK
    wr, bs = ("s62", "s63") if isV else (sWrapK, sBase)
    m0 = ["s_add_u32 m0, %s, %d" % (sM0, slot * 32768 + h * 4096) for h in range(2)]
    pre = ["s_add_u32 s32, %s, 4096" % s]
    ld = ["buffer_load_dwordx4 v%d, s[12:15], %s offen offset:%d sc1 lds" % (vLane, "s32" if j >= 4 else s, (j & 3) * 1024) + " ;@vm kv%d" % slot for j in range(8)]
    post = ["s_add_u32 %s, %s, 32768" % (s, s), "s_cmp_eq_u32 %s, %s" % (s, wr), "s_cselect_b32 %s, %s, %s" % (s, bs, s),
            "s_cselect_b32 %s, -1, %s" % (wr, wr)]
    if SHARE and g1:
        w2, b2 = ("s58", "s59") if isV else ("s56", "s57")
        post = post[:3] + ["s_cselect_b32 %s, %s, %s" % (wr, w2, wr), "s_cselect_b32 %s, %s, %s" % (bs, b2, bs), "s_cselect_b32 %s, -1, %s" % (w2, w2)]
    if 'nodma' in FL:
        ld = ["s_nop 0"] * 8
    return m0, pre, ld, post


def phase(a, M, f0, par_same, par_next, nxt0, E, C, D, vm, first_need, extraM=None, extra=None, do_next=True, pre_u=None, post_u=None, DL=None, wr_u=None, noread=False):
    E = list(E) if E else []
    C = list(C) if C else []
    if 'novalu' in FL:
        E, C = [], []
    nE = [0]
    nC = [0]

    def e():
        if E:
            nE[0] += 1
            return [E.pop(0)]
        return []

    def c(n=1):
        out = []
        while n and C and 2 * (nC[0] + 1) <= nE[0]:
            out.append(C.pop(0))
            nC[0] += 1
            n -= 1
        return out

    def rr(m):
        if 'noreads' in FL:
            return []
        if m < 8:
            return [] if noread else [rd(f0 + 2 * m, par_same), rd(f0 + 2 * m + 1, par_same)]
        if not do_next:
            return []
        return [rd(nxt0 + 2 * (m - 8), par_next), rd(nxt0 + 2 * (m - 8) + 1, par_next)]

    def w(u):
        if u < 8 and first_need[u] is not None and not noread:
            return [";@need %s" % fr(f0 + first_need[u])]
        return []
    m0, pre, ld, post = D if D else ([None, None], [], ["" for _ in range(8)], [])
    ld = list(ld)
    X = list(extra) if extra else []

    def d():
        r = [ld.pop(0)] if D else []
        return r

    def x(n):
        return X.pop(0) if X else []
    for y in w(0):
        a(y)
    if D:
        a(m0[0])
    DL = list(DL) if DL else []
    for u in range(8):
        if BAR1 and f0 == 0 and vm is None:
            gaps = [e(), rr(u + LEAD), e(), DL.pop(0), e(), c(2), e(), DL.pop(0) + (c(1) if u == 7 else []) + w(u + 1)]
        elif BAR1:
            bar = [";@waitvm %s lgkmcnt(0)" % vm, "s_barrier ;@keep"]
            if u < 4:
                gaps = [e(), rr(u + LEAD), e(), c(1), e(), x(2), e(), c(1) + w(u + 1)]
            elif u == 4:
                gaps = [e(), x(2), e(), c(1), e(), x(2), e(), c(1) + w(5)]
            elif u == 5:
                gaps = [e(), [], e(), c(1), e(), bar + rr(8), e(), c(1)]
            else:
                gaps = [e(), rr(9 if u == 6 else 11), e(), c(1), e(), rr(10) if u == 6 else [], e(), c(1)]
        elif u < 4:
            gaps = [e(), rr(u + LEAD), e(), d() + (pre if u == 0 else []), e(), c(2), e(), d() + ([m0[1]] if (u == 1 and D) else []) + w(u + 1)]
        elif u == 4:
            gaps = [e(), post, e(), c(2), e(), x(3), e(), c(1) + w(5)]
        elif u == 5:
            bar = [(";@waitvm %s lgkmcnt(0)" % vm) if isinstance(vm, str) else ("s_waitcnt vmcnt(%d) lgkmcnt(0)" % vm)] + \
                ([] if 'nobar' in FL else ["s_barrier ;@keep"])
            gaps = [e(), x(2), e(), c(1), e(), bar + rr(8) + rr(9), e(), c(1) + w(6)]
        else:
            gaps = [e(), rr(u + LEAD), e(), c(1), e(), x(2), e(), c(2) + w(u + 1)]
        for i in range(8):
            g = 8 * u + i
            if pre_u and g < 44:
                gaps[i] = gaps[i] + [y for k in range((g * len(pre_u)) // 44, ((g + 1) * len(pre_u)) // 44) for y in pre_u[k]]
            if post_u and g >= 45:
                gaps[i] = gaps[i] + [y for k in range(((g - 45) * len(post_u)) // 19, ((g - 44) * len(post_u)) // 19) for y in post_u[k]]
            if wr_u and g >= 34 and g % 2 == 0:
                gaps[i] = [wr_u.pop(0)] + gaps[i]
            a(M[8 * u + i])
            for y in gaps[i]:
                a(y)
        if extraM and u < len(extraM):
            for y in extraM[u]:
                a(y)
                for z in x(2):
                    a(z)
    for y in wr_u or []:
        a(y)
    assert not E and not C and not X, (len(E), len(C), len(X))


def qk_mfmas(nb, masked, aQ=aQ, ty='N'):
    M = []
    for kb in range(4):
        for qb in range(4):
            d = v4(S(nb, kb, qb))
            order = range(4) if qb % 2 == 0 else range(3, -1, -1)
            for n, ds in enumerate(order):
                if n:
                    c = d
                elif masked:
                    c = v4(CLO if kb < qb else (CDI if kb == qb else CUP))
                else:
                    c = "0"
                if ty == 'T' and kb == qb and n == 0:
                    c = v4(TRI)
                M.append(mfma(d, fr(4 * kb + ds), a4(aQ + 16 * qb + 4 * ds), c) if live(ty, kb, qb) else "")
    return M


QK_NEED = [3, None, 7, None, 11, None, 15, None]
PV_NEED = [1, 3, 5, 7, 9, 11, 13, 15]


def qk_phase(a, par, masked, q, tq='N', tp='N'):
    nb = 1 - par
    E, C = soft(par, 1, tp)
    if BAR1:
        DL = []
        for isV in (False, True):
            m0, pre, ld, post = dma(isV, 2 * nb + (1 if isV else 0))
            if isV:
                pre = [y.replace("s32", "s43") for y in pre]
                ld = [y.replace("s32", "s43") for y in ld]
                DL[-1] += [m0[0]]
            else:
                a(m0[0])
            U = [[y] for y in ld]
            U[0] += pre
            U[3] += [m0[1]]
            DL += U
        phase(a, qk_mfmas(nb, masked, q, tq), 0, par, par, 16, E, C, None, None, QK_NEED, DL=DL, noread=(tq == 'Z'), do_next=(tp != 'Z'))
        return
    phase(a, qk_mfmas(nb, masked, q), 0, par, par, 16, E, C, dma(True, 2 * nb + 1), "kv%d" % (2 * par + 1), QK_NEED)


def pv_phase(a, par, e0=True, vm=None, extra=None, nxt=True, dodma=True, first=False, pre_u=None, post_u=None, g1=False, wr_u=None, tq='N', tp='N'):
    M = []
    for dd in range(8):
        db = dd ^ DBX[0]
        for qb in range(4):
            for n, j in enumerate((0, 1) if qb % 2 == 0 else (1, 0)):
                M.append(mfma(Oop(db, qb), fr(16 + 2 * dd + j), v4(S(par, 2 * j, qb)), "0" if (first and n == 0) else Oop(db, qb))
                         if live(tp, 2 * j, qb) else "")
    sums = [[mfma(a4(aL + 4 * qb), a4(aONES), v4(S(par, 2 * j, qb)), "0" if (first and j == 0) else a4(aL + 4 * qb)) if live(tp, 2 * j, qb) else ""
             for j in range(2)] for qb in range(4)]
    if SUM4:
        seq = [(qb, j, h) for j in range(2) for h in range(2) for qb in range(4)]
        small = ["v_mfma_f32_4x4x4_16b_bf16 %s, a[%d:%d], %s, %s" % (a4(aL + 4 * qb), aONES, aONES + 1, v2(S(par, 2 * j, qb) + 2 * h),
                                                                   "0" if (first and j == 0 and h == 0) else a4(aL + 4 * qb)) for qb, j, h in seq]
        pos = [int(x) for x in os.environ.get("S4POS", "1,5").split(",")]
        for u in range(8):
            for k in range(2):
                M[8 * u + pos[k]] += "\n" + small[2 * u + k]
        sums = None
    E, C = soft(1 - par, 0, tq) if e0 else (None, None)
    if BAR1:
        if dodma:
            P = dma(False, 0, g1)[3] + dma(True, 0, g1)[3]
            extra = [P[i:i + 2] for i in range(0, len(P), 2)]
            if SHARE and g1:
                extra += [kflip(par), [], [], [], [], [], vflip(par)]
            vm = "kv%d,kv%d" % (2 - 2 * par, 3 - 2 * par)
        dodma = False
    phase(a, M, 16, par, 1 - par, 0, E, C, dma(False, 2 * par) if dodma else None, vm or "kv%d" % (2 - 2 * par), PV_NEED, extraM=sums, extra=extra, do_next=nxt, pre_u=pre_u, post_u=post_u, wr_u=wr_u, noread=(tp == 'Z'))


def kflip(par):
    return ["s_sub_u32 s33, %s, 1" % sD, "s_cmp_le_u32 s33, 1", "s_cselect_b32 s33, 0x4000, 0", "v_add_u32 v%d, s33, v%d" % (vRd + par, vRd + par)]


def vflip(par):
    return ["s_cmp_le_u32 %s, 1" % sD, "s_cselect_b32 s33, 0x4000, 0", "v_add_u32 v%d, s33, v%d" % (vRdV + par, vRdV + par), "s_sub_u32 %s, %s, 1" % (sD, sD)]


def set_mask(a, delta):
    a("s_lshl_b32 s33, %s, 6" % sU)
    a("s_add_i32 s33, s33, %s" % delta)
    a("s_cmp_gt_i32 s33, 0")
    a("s_cselect_b32 s34, 0, 0xf149f2ca")
    a("s_cmp_lt_i32 s33, 0")
    a("s_cselect_b32 s33, 0xf149f2ca, 0")
    for r in range(4):
        a("v_mov_b32 v%d, s34" % (CUP + r))
    for r in range(4):
        a("v_mov_b32 v%d, s33" % (CLO + r))
    for r in range(4):
        a("v_med3_f32 v%d, v%d, v%d, v%d" % (CDI + r, TRI + r, CUP, CLO))


def body(a, par, masked=None, q=aQ, first=False, g1=False, tq='N', tp='N'):
    if masked is not None:
        set_mask(a, masked)
    qk_phase(a, par, masked is not None, q, tq, tp)
    pv_phase(a, par, first=first, g1=g1, tq=tq, tp=tp)


def fin(a, first, g, idx, tp='N'):
    DBX[0] = 4 * (1 - g)
    k3.poll_b(a)
    for f in range(2 * LEAD if tp != 'Z' else 0):
        a(rd(16 + f, 0))
    a("s_lshl_b32 s33, %s, 14" % sU)
    a("s_add_u32 s34, s33, %d" % (98304 + 32768 * g))
    a("s_add_u32 s33, s33, %d" % (98304 + 32768 * (1 - g)))
    a("v_add_u32 v%d, s34, v%d" % (vRd, vLane))
    a("v_add_u32 v%d, s33, v%d" % (vRd + 1, vLane))
    soft_plain(a, 0, 1, tp)
    pre_u, post_u = k3.early(S1, idx)
    W = ["ds_write_b128 v%d, %s offset:%d" % (vRd, Oop(4 * (1 - g) + (q >> 2), q & 3), q * 1024) for q in range(16)]
    pv_phase(a, 0, e0=False, vm="pb", nxt=False, dodma=False, first=first, pre_u=pre_u, post_u=post_u, wr_u=W, tp=tp)
    DBX[0] = 0


def merge(a, g):
    a("s_lshl_b32 s33, %s, 10" % sWave)
    a("s_add_u32 s33, s33, 28672")
    a("s_xor_b32 s34, s33, 2048")
    a("v_add_u32 v%d, s33, v%d" % (vT + 6, vLane))
    a("v_add_u32 v%d, s34, v%d" % (vT + 7, vLane))
    read_l(a, CUP)
    a("ds_write_b128 v%d, %s" % (vT + 6, v4(CUP)))
    a("s_waitcnt lgkmcnt(0)")
    a("s_barrier")
    a("ds_read_b128 %s, v%d" % (v4(CLO), vT + 7))
    for q in range(16):
        a("ds_read_b128 %s, v%d offset:%d" % (v4(S0 + 4 * q), vRd + 1, q * 1024))
    for qb in range(4):
        a("v_add_f32 v%d, v%d, v%d" % (CUP + qb, CUP + qb, CLO + qb))
    a("s_sub_u32 s35, 15, %s" % sP)
    finalize(a, "s35", [2 * g, 2 * g + 1], 2, [CUP + q for q in range(4)], add_from=S0)


PEND = ";@setpend " + " | ".join(fr(f) for f in range(2 * LEAD))


def finalize(a, blk_sreg, ilist, flagbit, lsrc, add_from=None):
    vR, vC, vA = vT, vT + 4, vT + 6
    for qb in range(4):
        a("v_rcp_f32 v%d, v%d" % (vR + qb, lsrc[qb]))
    if flagbit is not None:
        for qb in range(4):
            a("v_subrev_u32 v%d, 0x%08x, v%d" % (lsrc[qb], LO_BITS, lsrc[qb]))
        a("v_max_u32 v%d, v%d, v%d" % (vC, lsrc[0], lsrc[1]))
        a("v_max3_u32 v%d, v%d, v%d, v%d" % (vC, vC, lsrc[2], lsrc[3]))
        a("s_mov_b32 s64, 0x207")
    a("s_lshl_b32 s33, %s, 20" % blk_sreg)
    a("s_lshl_b32 s34, %s, 15" % sHead)
    a("s_add_u32 s33, s33, s34")
    a("s_lshl_b32 s34, %s, 13" % sU)
    a("s_add_u32 s36, s33, s34")
    a("s_add_u32 s37, s36, 4096")
    a("s_add_u32 s38, s36, 16384")
    a("s_add_u32 s39, s36, 20480")
    dst = {}
    free = []
    chk = []
    sto = []
    for n, i in enumerate(ilist):
        for qb in range(4):
            src = []
            for h in range(2):
                db = 2 * i + h
                if db < 6:
                    r = OV + 4 * (4 * db + qb)
                else:
                    r = free.pop(0)
                    for e in range(4):
                        a("v_accvgpr_read_b32 v%d, a%d" % (r + e, aO + 4 * (4 * (db - 6) + qb) + e))
                if add_from is not None:
                    p = add_from + 4 * (4 * (2 * n + h) + qb)
                    for e in (0, 2):
                        a("v_pk_add_f32 %s, %s, %s" % (v2(r + e), v2(r + e), v2(p + e)))
                    free.append(p)
                src.append(r)
            if chk:
                a(chk.pop())
                a(sto.pop())
            for r in src:
                for e in (0, 2):
                    rp = vR + (qb & ~1)
                    a("v_pk_mul_f32 %s, %s, %s op_sel:[0,%d] op_sel_hi:[1,%d]" % (v2(r + e), v2(r + e), v2(rp), qb & 1, qb & 1))
            d = src[0]
            for h in range(2):
                a("v_cvt_pk_bf16_f32 v%d, v%d, v%d" % (d + 2 * h, src[h], src[h] + 1))
                a("v_cvt_pk_bf16_f32 v%d, v%d, v%d" % (d + 2 * h + 1, src[h] + 2, src[h] + 3))
            free.append(src[1])
            dst[(i, qb)] = d
            if flagbit is not None:
                chk.append(mfma(v4(CDI), a4(aONES), v4(d), v4(CDI) if dst.keys() != {(i, qb)} else "0"))
                sto.append("buffer_store_dwordx4 %s, v%d, s[16:19], s%d offen offset:%d %s" % (v4(dst[(i, qb)]), vLane, 36 + 2 * (i >> 1) + (qb >> 1), (qb & 1) * 2048 + (i & 1) * 1024, SF + " ;@vm cs"))
    if flagbit is not None:
        a(chk.pop())
        a(sto.pop())
        a("v_cmp_lt_u32 vcc, 0x%08x, v%d" % (SPAN if 'forceslow' not in FL else 0, vC))
        a("v_cmp_class_f32 s[40:41], v%d, s64" % CDI)
        a("s_or_b64 vcc, vcc, s[40:41]")
        a("s_cmp_lg_u64 vcc, 0")
        a("s_cselect_b32 s33, %d, 0" % flagbit)
        a("s_or_b32 %s, %s, s33" % (sFlag, sFlag))
        return
    for i in ilist:
        Ls = a.newlabel("Lss")
        a("s_bitcmp1_b32 s61, %d" % i)
        a("s_cbranch_scc0 %s" % Ls)
        for qb in range(4):
            a("buffer_store_dwordx4 %s, v%d, s[16:19], s%d offen offset:%d %s" % (v4(dst[(i, qb)]), vLane, 36 + 2 * (i >> 1) + (qb >> 1), (qb & 1) * 2048 + (i & 1) * 1024, SF + " ;@vm cs"))
        a.label(Ls)


def zero_acc(a):
    for r in range(aO, aO + 48):
        a("v_accvgpr_write_b32 a%d, 0" % r)
    for r in range(OV, OV + 96):
        a("v_mov_b32 v%d, 0" % r)


def read_l(a, dst, reduce=True):
    for qb in range(4):
        a("v_accvgpr_read_b32 v%d, a%d" % (dst + qb, aL + 4 * qb))
    if SUM4 and reduce:
        for sw in ("v_permlane16_swap_b32", "v_permlane32_swap_b32"):
            for q in range(4):
                a("v_mov_b32 v%d, v%d" % (CLO + q, dst + q))
            for q in range(4):
                a("%s v%d, v%d" % (sw, dst + q, CLO + q))
            for q in range(4):
                a("v_add_f32 v%d, v%d, v%d" % (dst + q, dst + q, CLO + q))


def slow_path(a):
    frs = [v4(S1 + 4 * i) for i in range(16)]
    vM, vAl, t, u = vT, vT + 4, vT + 5, vT + 6
    a("s_waitcnt vmcnt(0)")
    Lq = a.newlabel("Lsq")
    a("s_cmp_eq_u32 s61, 3")
    a("s_cbranch_scc0 %s" % Lq)
    for r in range(64):
        a("v_accvgpr_read_b32 v%d, a%d" % (u, aQ2 + r))
        a("v_accvgpr_write_b32 a%d, v%d" % (aQ + r, u))
    a.label(Lq)
    zero_acc(a)
    for qb in range(4):
        a("v_mov_b32 v%d, v%d" % (vM + qb, vNEG))
    a("s_lshl_b32 s57, %s, 20" % sHead)
    a("s_lshl_b32 s58, s56, 7")
    a("s_lshl_b32 s59, s56, 1")
    a("s_add_u32 s59, s59, 2")
    Lp = a.newlabel("Lslow")
    a.label(Lp)
    for f in range(16):
        if f % 4 == 0:
            a("s_add_u32 s35, s57, %d" % (f * 1024))
        a("buffer_load_dwordx4 %s, v%d, s[12:15], s35 offen offset:%d sc1" % (frs[f], vLane, (f % 4) * 1024))
    set_mask(a, "s58")
    a("s_waitcnt vmcnt(0)")
    for kb in range(4):
        for qb in range(4):
            d = v4(S(0, kb, qb))
            for ds in range(4):
                c = d if ds else v4(CLO if kb < qb else (CDI if kb == qb else CUP))
                a(mfma(d, frs[4 * kb + ds], a4(aQ + 16 * qb + 4 * ds), c))
    a("s_nop 7")
    for f in range(16):
        if f % 4 == 0:
            a("s_add_u32 s35, s57, %d" % (16384 + f * 1024))
        a("buffer_load_dwordx4 %s, v%d, s[12:15], s35 offen offset:%d sc1" % (frs[f], vLane, (f % 4) * 1024))
    for qb in range(4):
        regs = [S(0, kb, qb) + r for kb in range(4) for r in range(4)]
        a("v_max3_f32 v%d, v%d, v%d, v%d" % (t, regs[0], regs[1], vM + qb))
        for i in range(2, 16, 2):
            a("v_max3_f32 v%d, v%d, v%d, v%d" % (t, t, regs[i], regs[i + 1]))
        a("v_mov_b32 v%d, v%d" % (u, t))
        a("v_permlane16_swap_b32 v%d, v%d" % (t, u))
        a("v_max_f32 v%d, v%d, v%d" % (t, t, u))
        a("v_mov_b32 v%d, v%d" % (u, t))
        a("v_permlane32_swap_b32 v%d, v%d" % (t, u))
        a("v_max_f32 v%d, v%d, v%d" % (t, t, u))
        a("v_sub_f32 v%d, v%d, v%d" % (vAl, vM + qb, t))
        a("v_exp_f32 v%d, v%d" % (vAl, vAl))
        a("v_mov_b32 v%d, v%d" % (vM + qb, t))
        for r in regs:
            a("v_sub_f32 v%d, v%d, v%d" % (r, r, t))
        for db in range(6):
            for e in range(4):
                r = OV + 4 * (4 * db + qb) + e
                a("v_mul_f32 v%d, v%d, v%d" % (r, r, vAl))
        for r in [aO + 4 * (4 * dd + qb) + e for dd in range(2) for e in range(4)] + [aL + 4 * qb + e for e in range(4)]:
            a("v_accvgpr_read_b32 v%d, a%d" % (u, r))
            a("v_mul_f32 v%d, v%d, v%d" % (u, u, vAl))
            a("v_accvgpr_write_b32 a%d, v%d" % (r, u))
    fl = FL.copy()
    FL.discard('noexp')
    for j in range(2):
        soft_plain(a, 0, j)
    FL.update(fl)
    a("s_waitcnt vmcnt(0)")
    for j in range(2):
        for qb in range(4):
            a(mfma(a4(aL + 4 * qb), a4(aONES), v4(S(0, 2 * j, qb)), a4(aL + 4 * qb)))
        for db in range(8):
            for qb in range(4):
                a(mfma(Oop(db, qb), frs[8 * j + db], v4(S(0, 2 * j, qb)), Oop(db, qb)))
    a("s_nop 7")
    a("s_add_u32 s57, s57, 32768")
    a("s_sub_u32 s58, s58, 64")
    a("s_sub_u32 s59, s59, 1")
    a("s_cmp_lg_u32 s59, 0")
    a("s_cbranch_scc1 %s" % Lp)
    read_l(a, CUP, False)
    finalize(a, "s56", range(4), None, [CUP + q for q in range(4)])


def dma_now(a, isV, slot):
    m0, pre, ld, post = dma(isV, slot)
    for x in [m0[0]] + pre + ld[:4] + [m0[1], "s_nop 0"] + ld[4:] + post:
        a(x)


def ids(a):
    a("s_and_b32 %s, s2, 7" % sHead)
    a("s_lshr_b32 s3, s2, 6")
    a("s_lshl_b32 s3, s3, 3")
    a("s_add_u32 %s, %s, s3" % (sHead, sHead))
    a("s_bfe_u32 %s, s2, 0x30003" % sP)


def early(a):
    a("s_mov_b32 %s, s101" % sWave)
    a("s_and_b32 %s, %s, 1" % (sU, sWave))
    a("s_lshr_b32 %s, %s, 1" % (sG, sWave))
    a("s_lshl_b32 s33, %s, 14" % sG)
    a("s_lshl_b32 s34, %s, 13" % sU)
    a("s_add_u32 %s, s33, s34" % sM0)
    a("s_lshl_b32 %s, %s, 20" % (sBase, sHead))
    a("s_add_u32 %s, %s, s34" % (sBase, sBase))
    a("s_mov_b32 %s, %s" % (sK, sBase))
    a("s_lshl_b32 s33, %s, 16" % sP)
    a("s_add_u32 s34, %s, s33" % sBase)
    a("s_add_u32 s34, s34, 65536")
    a("s_add_u32 s32, %s, %d" % (sBase, 15 * 32768))
    a("s_sub_u32 s33, s32, s33")
    a("s_add_u32 s33, s33, %d" % (15 * 32768))
    a("s_cmp_eq_u32 %s, 0" % sG)
    a("s_cselect_b32 %s, s34, s32" % sWrapK)
    a("s_cselect_b32 %s, s32, s33" % sBase)
    if SHARE:
        a("s_mov_b32 s56, %s" % sWrapK)
        a("s_mov_b32 s57, %s" % sBase)
        a("s_min_u32 s34, s34, s32")
        a("s_cmp_eq_u32 s34, s32")
        a("s_cselect_b32 s33, s33, s34")
        a("s_or_b32 s34, s34, 0x40000000")
        a("s_or_b32 s32, %s, 0x40000000" % sK)
        a("s_cmp_eq_u32 %s, 1" % sG)
        a("s_cselect_b32 %s, s32, %s" % (sK, sK))
        a("s_cselect_b32 %s, s34, %s" % (sWrapK, sWrapK))
        a("s_cselect_b32 %s, s33, %s" % (sBase, sBase))
        a("s_cselect_b32 s56, s56, -1")
        a("s_add_u32 s58, s56, 16384")
        a("s_add_u32 s59, s57, 16384")
    a("s_add_u32 %s, %s, 16384" % (sV, sK))
    a("s_add_u32 s62, %s, 16384" % sWrapK)
    a("s_add_u32 s63, %s, 16384" % sBase)
    a("s_lshl_b32 %s, %s, 7" % (sRT, sP))
    a("s_cmp_eq_u32 %s, 0" % sG)
    a("s_cselect_b32 %s, %s, 960" % (sRT, sRT))
    a("s_mov_b32 %s, 0" % sFlag)
    srd(a, 12, 4, 5, 32 * MB, WS_KV)


def dma_units(isV, slot, tag):
    m0, pre, ld, post = dma(isV, slot)
    return [[m0[0]] + pre + [ld[0]], [ld[1]], [ld[2]], [ld[3]], [m0[1], "s_nop 0", ld[4]], [ld[5]], [ld[6]], [ld[7]], post]


def early_loads():
    m0, pre, ld, post = dma(False, 2)
    k0 = [x.replace(sK, "s35").replace("s32", "s64") for x in [m0[0]] + pre + ld + [m0[1]]]
    K0 = [[k0[0], k0[1], k0[2]], [k0[3]], [k0[4]], [k0[5]], [k0[10], "s_nop 0", k0[6]], [k0[7]], [k0[8]], [k0[9]]]
    return K0, [["s_mov_b32 s35, %s" % sK] + post] + dma_units(False, 0, "k1"), dma_units(True, 1, "v0")


def main(a):
    tl = TL(a, 1, 4, 'tl' in FL)
    tl.early()
    srd(a, 16, 4, 5, 16 * MB, WS_CTX)
    srd(a, 52, 4, 5, FLG_END, WS_XCH)
    a("s_mov_b32 s46, %d\ns_mov_b32 s47, 0x00020000\ns_mov_b32 s50, %d\ns_mov_b32 s51, 0x00020000" % (8 * MB, 2 * MB))
    a("s_lshl_b32 s33, %s, 14" % sG)
    a("v_add_u32 v%d, %s, v%d" % (vRd, "0" if SHARE else "s33", vLane))
    a("v_add_u32 v%d, 0x10000, v%d" % (vRd + 1, vRd))
    a("v_mov_b32 v%d, v%d" % (vRdV, vRd))
    a("v_mov_b32 v%d, v%d" % (vRdV + 1, vRd + 1))
    a("v_and_b32 v%d, 15, v0" % vT)
    a("v_bfe_u32 v%d, v0, 4, 2" % (vT + 1))
    a("v_lshlrev_b32 v%d, 2, v%d" % (vT + 1, vT + 1))
    a("v_sub_u32 v%d, v%d, v%d" % (vT, vT, vT + 1))
    a("v_mov_b32 v%d, 0xf149f2ca" % vNEG)
    for r in range(4):
        a("v_cmp_gt_i32 vcc, %d, v%d" % (r, vT))
        a("v_cndmask_b32 v%d, 0, v%d, vcc" % (TRI + r, vNEG))
    a("v_mov_b32 v%d, 0x3f803f80" % vT)
    for i in range(4):
        a("v_accvgpr_write_b32 a%d, v%d" % (aONES + i, vT))
    set_mask(a, sRT)
    a("s_barrier")
    tl.stamp(1, vT + 2, sWave)
    for f in range(2 * LEAD):
        a(rd(f, 1))
    phase(a, qk_mfmas(0, True), 0, 1, 0, 0, None, None, None, "kv0,kv1" if BAR1 else "kv0", QK_NEED)
    if not BAR1:
        dma_now(a, False, 2)
    soft_plain(a, 0, 0)
    a("s_cmp_eq_u32 %s, 1" % sG)
    a("s_cbranch_scc1 Lk2_g1 ;@keep")
    a("s_mov_b32 %s, %s" % (sCnt, sP))
    a("s_cmp_eq_u32 %s, 0" % sP)
    a("s_cbranch_scc1 Lk2_m2 ;@keep")
    a.label("Lk2_l1", keep=True)
    body(a, 0)
    a("s_sub_u32 %s, %s, 1" % (sCnt, sCnt))
    a("s_cmp_eq_u32 %s, 0" % sCnt)
    a("s_cbranch_scc1 Lk2_m1 ;@keep")
    body(a, 1)
    a("s_branch Lk2_l1 ;@keep")

    def q2():
        a("s_lshl_b32 s33, %s, 14" % sU)
        a("s_add_u32 s33, s33, %d" % SCR)
        a("v_add_u32 v%d, s33, v%d" % (vT, vLane))
        for f in range(16):
            a("ds_read_b128 %s, v%d offset:%d" % (a4(aQ2 + 4 * f), vT, f * 1024))
    if SKIP:
        a.label("Lk2_m1", keep=True)
        a("s_cmp_eq_u32 %s, 1" % sU)
        a("s_cbranch_scc1 Lk2_m1b ;@keep")
        body(a, 1, tq='T')
        a.label("Lk2_m2a", keep=True)
        q2()
        body(a, 0, tq='Z', tp='T')
        body(a, 1, q=aQ2, tp='Z')
        a("s_branch Lk2_ea ;@keep")
        a.label("Lk2_m2", keep=True)
        a(PEND)
        a("s_cmp_eq_u32 %s, 0" % sU)
        a("s_cbranch_scc1 Lk2_m2a ;@keep")
        a("s_branch Lk2_m2b ;@keep")
        a.label("Lk2_m1b", keep=True)
        a(PEND)
        body(a, 1)
        a.label("Lk2_m2b", keep=True)
        q2()
        body(a, 0, tq='T')
        body(a, 1, q=aQ2, tp='T')
        a.label("Lk2_ea", keep=True)
    else:
        a.label("Lk2_m1", keep=True)
        body(a, 1, masked="0")
        a.label("Lk2_m2", keep=True)
        q2()
        body(a, 0, masked="-64")
        body(a, 1, q=aQ2)
    tl.stamp(4, vT + 2, sWave)
    read_l(a, CUP)
    finalize(a, sP, range(4), 1, [CUP + q for q in range(4)])
    tl.stamp(5, vT + 2, sWave)
    a(PEND)
    a("s_sub_u32 %s, 7, %s" % (sCnt, sP))
    a("s_cmp_lg_u32 %s, 0" % sCnt)
    a("s_cbranch_scc1 Lk2_b0 ;@keep")
    fin(a, True, 0, 0)
    a("s_branch Lk2_merge")
    a.label("Lk2_b0", keep=True)
    a(PEND)
    body(a, 0, q=aQ2, first=True)
    a("s_branch Lk2_l2b ;@keep")
    a.label("Lk2_l2", keep=True)
    body(a, 0, q=aQ2)
    a.label("Lk2_l2b", keep=True)
    body(a, 1, q=aQ2)
    a("s_sub_u32 %s, %s, 1" % (sCnt, sCnt))
    a("s_cmp_lg_u32 %s, 0" % sCnt)
    a("s_cbranch_scc1 Lk2_l2 ;@keep")
    fin(a, False, 0, 1)
    a.label("Lk2_merge")
    tl.stamp(2, vT + 2, sWave)
    merge(a, 0)
    a("s_branch Lk2_chk")
    if 'k2nowarm' not in FL:
        a.label("Lk2_wm")
        a("s_lshl_b32 s33, s2, 1")
        a("s_add_u32 s33, s33, %s" % sU)
        a("s_lshl_b32 s34, s33, 12")
        a("s_lshl_b32 s33, s33, 14")
        a("v_lshlrev_b32 v%d, 3, v%d" % (vT, vLane))
        a("v_lshlrev_b32 v%d, 2, v%d" % (vT + 1, vLane))
        a("buffer_load_dword a244, v%d, s[44:47], s33 offen ;@cond" % vT)
        a("s_add_u32 s33, s33, 8192")
        a("buffer_load_dword a245, v%d, s[44:47], s33 offen ;@cond" % vT)
        a("buffer_load_dword a246, v%d, s[48:51], s34 offen ;@cond" % (vT + 1))
        a("s_branch Lk2_l3b")
    a.label("Lk2_g1", keep=True)
    a(PEND)
    tl.stamp(20)
    a(PEND)
    a("s_mov_b32 %s, 7" % sCnt)
    a("s_bfe_u32 s65, s2, 0x20003")
    a("s_add_u32 s65, s65, 2")
    if SHARE:
        a("s_lshl_b32 %s, %s, 1" % (sD, sP))
        a("s_min_u32 %s, %s, 13" % (sD, sD))
        a("s_add_u32 %s, %s, 2" % (sD, sD))
        for y in kflip(1):
            a(y)
        a("s_sub_u32 %s, %s, 1" % (sD, sD))
    a.label("Lk2_l3", keep=True)
    if 'k2nowarm' not in FL:
        a("s_cmp_eq_u32 %s, s65" % sCnt)
        a("s_cbranch_scc1 Lk2_wm ;@keep")
        a.label("Lk2_l3b", keep=True)
    body(a, 0, g1=True)
    body(a, 1, g1=True)
    a("s_sub_u32 %s, %s, 1" % (sCnt, sCnt))
    a("s_cmp_lg_u32 %s, 0" % sCnt)
    a("s_cbranch_scc1 Lk2_l3 ;@keep")
    tl.stamp(21)
    if SKIP:
        a("s_cmp_eq_u32 %s, 1" % sU)
        a("s_cbranch_scc1 Lk2_g1b ;@keep")
        body(a, 0, g1=True, tq='T')
        body(a, 1, g1=True, tq='Z', tp='T')
        fin(a, False, 1, 3, 'Z')
        a("s_branch Lk2_mg1")
        a.label("Lk2_g1b", keep=True)
        a(PEND)
        body(a, 0, g1=True)
        body(a, 1, g1=True, tq='T')
        fin(a, False, 1, 2, 'T')
        a.label("Lk2_mg1")
    else:
        body(a, 0, masked="0", g1=True)
        body(a, 1, masked="-64", g1=True)
        tl.stamp(22)
        fin(a, False, 1, 2)
    tl.stamp(2, vT + 2, sWave)
    merge(a, 1)
    a.label("Lk2_chk")
    a("s_cmp_eq_u32 %s, 0" % sFlag)
    a("s_cbranch_scc1 Lk2_done")
    a("s_sub_u32 s56, 15, %s" % sP)
    a("s_lshl_b32 s33, %s, 1" % sG)
    a("s_lshl_b32 s61, 3, s33")
    a("s_and_b32 s34, %s, 2" % sFlag)
    a("s_bitcmp1_b32 %s, 0" % sFlag)
    a("s_cselect_b32 s56, %s, s56" % sP)
    a("s_cselect_b32 s61, 15, s61")
    a("s_cselect_b32 %s, s34, 0" % sFlag)
    slow_path(a)
    a("s_branch Lk2_chk")
    a.label("Lk2_done")
    tl.stamp(6, vT + 2, sWave)
    tl.dump(vT + 2, sWave, envi("TLW", 0))
    a("s_lshl_b32 s33, %s, 4" % sHead)
    a("s_add_u32 s33, s33, %d" % FLG_T)
    a("s_sub_u32 s34, 15, %s" % sP)
    a("s_lshl_b32 s34, s34, 9")
    a("s_add_u32 s92, s33, s34")
    a("s_lshl_b32 s34, %s, 2" % sWave)
    a("s_add_u32 s92, s92, s34")
    a("s_lshl_b32 s34, %s, 9" % sP)
    a("s_add_u32 s93, s33, s34")
    a("s_lshl_b32 s34, %s, 3" % sU)
    a("s_add_u32 s93, s93, s34")
    a("s_cmp_eq_u32 %s, 0" % sG)
    a("s_cselect_b32 s93, s93, s92")
    a("s_cselect_b32 s94, 4, 0")
    a("s_add_u32 s94, s94, s93")

    def publish(vZ, vOne):
        a("s_mov_b64 exec, 1")
        for so in ("s92", "s93", "s94"):
            a("buffer_store_dword v%d, v%d, %s, %s offen sc1" % (vOne, vZ, k3.FS, so))
        a("s_mov_b64 exec, -1")
    tl3 = TL(a, 2, 4, 'tl' in FL)
    tl3.early()
    k3.main(a, tl3, publish)
```

```python
from asmlib import Asm, Col, srd, v4, v2
from common import *

vLane, vWdA, vWdB, vWrA, vWrB = 1, 2, 6, 8, 24
ACCA, WF = 32, 160
aB, aW1, aX = 0, 32, 96
NX = 5
vT = 232
RCV = PAY = 192
NS = 8
D = 3
NE = 0
T0 = 1
N1 = envi("K3N1", 7)
NAS = 16
TA, TB, TE = T0 + N1, T0 + N1 + NAS, T0 + 16 + NAS
sWave, sXa, sWo, sCnt = "s101", "s25", "s26", "s28"
sMA, sNA, sMB, sNB = "s29", "s30", "s21", "s22"
SF = os.environ.get("K3SF", "")
XS, WS_, FS = "s[44:47]", "s[48:51]", "s[52:55]"


def isA(t):
    return TA <= t < TB


def a4(b):
    return "a[%d:%d]" % (b, b + 3)


def mfma(d, a_, b_, c):
    return "v_mfma_f32_16x16x32_bf16 %s, %s, %s, %s" % (d, a_, b_, c)


def xf(t, mi, ks):
    return a4(aX + 32 * ((t + 3 - T0) % NX) + 8 * mi + 4 * ks)


def wreg(t, ni, ks, n):
    r = 8 * ni + 4 * ks
    return ("a[%d:%d]" % (aW1 + r, aW1 + r + n - 1)) if t % 2 else ("v[%d:%d]" % (WF + r, WF + r + n - 1))


def loads(t, wd=vWdB):
    tag = " ;@vm s%d" % (t % NS)
    if isA(t):
        U = [(["s_add_u32 m0, s41, %d" % ((t % NS) * 16384)] if j == 0 else []) +
             ["buffer_load_dwordx4 v%d, %s, %s offen offset:%d lds%s" % (vWdA + j, WS_, sWo, j * 1024, tag)] for j in range(4)]
    else:
        U = [(["s_add_u32 m0, s42, %d" % ((t % NS) * 16384)] if j == 0 else []) +
             ["buffer_load_dwordx4 v%d, %s, %s offen offset:%d lds%s" % (wd + j, WS_, sWo, j * 1024, tag)] for j in range(2)]
    U += [["buffer_load_dwordx4 %s, v%d, %s, %s offen offset:%d sc1%s" % (xf(t, j >> 1, j & 1), vLane, XS, sXa, j * 1024, tag)] for j in range(4)]
    if isA(t):
        U += [(["s_add_u32 s63, %s, 4096" % sXa] if j == 4 else []) +
              ["buffer_load_dwordx4 %s, v%d, %s, s63 offen offset:%d sc1%s" % (xf(t, j >> 1, j & 1), vLane, XS, (j - 4) * 1024, tag)] for j in range(4, 8)]
    if isA(t):
        U.append(["s_sub_u32 s39, s39, 1", "s_cmp_eq_u32 s39, 0", "s_cselect_b32 s3, s64, s65"])
        U.append(["s_add_u32 %s, %s, s3" % (sXa, sXa), "s_lshl_b32 s3, s3, 3", "s_add_u32 %s, %s, s3" % (sWo, sWo)])
    else:
        U.append(["s_add_u32 %s, %s, 16384" % (sXa, sXa), "s_add_u32 %s, %s, %d" % (sWo, sWo, 64 * 2048)])
    return U


TO_A = ["s_mov_b32 s32, %s" % sXa, "s_mov_b32 s33, %s" % sWo, "s_mov_b64 s[34:35], s[44:45]", "s_mov_b64 s[36:37], s[48:49]",
        "s_mov_b64 s[44:45], s[8:9]", "s_mov_b32 s46, %d" % (16 * MB), "s_mov_b64 s[48:49], s[10:11]", "s_mov_b32 s50, %d" % (8 * MB),
        "s_mov_b32 %s, s12" % sXa, "s_mov_b32 %s, s13" % sWo]
TO_B = ["s_mov_b64 s[44:45], s[34:35]", "s_mov_b32 s46, %d" % (4 * MB), "s_mov_b64 s[48:49], s[36:37]", "s_mov_b32 s50, %d" % (2 * MB),
        "s_mov_b32 %s, s32" % sXa, "s_mov_b32 %s, s33" % sWo]


def half(r, j):
    b = int(r[2:r.index(":")]) + 2 * j
    return "%s[%d:%d]" % (r[0], b, b + 1)


def reads(t):
    L = []
    sl = t % NS
    A = isA(t)
    for ni in range(8 if A else 4):
        for ks in range(2):
            for j in range(2):
                base = (vWrA + 8 * (sl >> 2) if A else vWrB + 4 * (sl >> 2)) + ni
                L.append("ds_read_b64_tr_b16 %s, v%d offset:%d" % (half(wreg(t, ni, ks, 4), j), base, (sl & 3) * 16384 + (ks * 32 + j * 16) * (256 if A else 128)))
    return L


def step(a, t, vm=None, tags="", post_bar=None, mem=None, at=None):
    A = isA(t)
    NI = 8 if A else 4
    M = []
    for mi in range(4 if A else 2):
        for ni in range(NI):
            d = v4(ACCA + 32 * mi + 4 * ni) if A else a4(aB + 16 * mi + 4 * ni)
            for n, ks in enumerate((0, 1) if ni % 2 == 0 else (1, 0)):
                M.append(mfma(d, wreg(t, ni, ks, 4), xf(t, mi, ks), "0" if (t in (T0, TA) and n == 0) else d))
    n = len(M)
    G = [[] for _ in range(n)]
    if t + 1 < TE:
        HB = envi("K3HB", 0)
        lo, hi = (TA, TB - 2) if HB == 1 else ((T0 + 2, TE - 2) if HB == 2 else (0, 0))
        if lo <= t < hi and (t - TA) % 2 == 1 and not tags and not post_bar:
            a("s_waitcnt lgkmcnt(0)")
        else:
            two = lo <= t + 1 < hi and (t + 1 - TA) % 2 == 1
            a(";@waitvm s%d%s lgkmcnt(0)" % ((t + (2 if two else 1)) % NS, tags))
            a("s_barrier ;@keep")
        if post_bar:
            post_bar()
        R = reads(t + 1)
        U = loads(t + 1 + D) if t + 1 + D < TE else []
        if t + 1 + D == TA:
            U[0] = TO_A + U[0]
        if t + 1 + D == TB:
            U[0] = TO_B + U[0]
        U = U + (mem or [])
        nr = len(R) // 2
        slots = [R[2 * i:2 * i + 2] for i in range(nr)]
        order = []
        for i in range(max(nr, len(U))):
            if i < len(U):
                order.append(U[i])
            if i < nr:
                order.append(slots[i])
        for i, u in enumerate(order):
            G[(i * (n - 2)) // len(order)] += u
    else:
        a("s_waitcnt lgkmcnt(0)")
    for g, u in (at or {}).items():
        G[g] += u
    for i in range(n):
        a(M[i])
        for y in G[i]:
            a(y)


def epilogue(a, isB, T):
    a("v_bfe_u32 v%d, v0, 4, 1" % T)
    a("v_lshrrev_b32 v%d, 5, v0" % (T + 1))
    a("v_lshl_or_b32 v%d, v%d, 1, v%d" % (T, T, T + 1))
    a("v_and_b32 v%d, 15, v0" % (T + 1))
    a("v_lshlrev_b32 v%d, %d, v%d" % (T + 1, 13 if isB else 12, T + 1))
    a("v_lshl_add_u32 v%d, v%d, 4, v%d" % (T, T, T + 1))
    if isB:
        a("s_and_b32 s3, %s, 1" % sWave)
        a("s_lshl_b32 s3, s3, 6")
        a("s_lshr_b32 s6, %s, 1" % sWave)
        a("s_add_u32 s3, s3, s6")
    else:
        a("s_lshl_b32 s3, %s, 6" % sWave)
    a("s_add_u32 s3, s3, %s" % (sMB if isB else sMA))
    a("s_lshl_b32 s3, s3, 12")
    a("s_lshl_b32 s6, %s, 1" % (sNB if isB else sNA))
    a("s_add_u32 s3, s3, s6")
    if isB:
        a("s_add_u32 s3, s3, 2048")
    else:
        a("s_mov_b32 s6, 0x00003f80")
        a("s_mov_b32 s7, 0x3f800000")
    for k in range(4):
        u = T + 4 + 4 * (k & 1)
        if isB:
            r = T + 12
            for e in range(8):
                a("v_accvgpr_read_b32 v%d, a%d" % (r + e, aB + 8 * k + e))
        else:
            r = ACCA + 32 * k
            for pn in range(3):
                for e in range(4):
                    src = PAY + 16 * pn + 4 * k + e
                    a("v_dot2_f32_bf16 v%d, v%d, s6, v%d" % (r + 2 * e, src, r + 2 * e))
                    a("v_dot2_f32_bf16 v%d, v%d, s7, v%d" % (r + 2 * e + 1, src, r + 2 * e + 1))
        a("v_cvt_pk_bf16_f32 v%d, v%d, v%d" % (u, r, r + 1))
        a("v_cvt_pk_bf16_f32 v%d, v%d, v%d" % (u + 1, r + 2, r + 3))
        a("v_cvt_pk_bf16_f32 v%d, v%d, v%d" % (u + 2, r + 4, r + 5))
        a("v_cvt_pk_bf16_f32 v%d, v%d, v%d" % (u + 3, r + 6, r + 7))
        a("v_permlane16_swap_b32 v%d, v%d" % (u, u + 2))
        a("v_permlane16_swap_b32 v%d, v%d" % (u + 1, u + 3))
        a("buffer_store_dwordx4 %s, v%d, s[16:19], s3 offen offset:%d %s" % (v4(u), T, (k & 1) * 64 if isB else 0, SF))
        if (k == 1 if isB else k < 3):
            a("s_add_u32 s3, s3, %d" % ((32 if isB else 16) * 4096))


def wdB(a, dst, T):
    a("s_lshl_b32 s3, %s, 4" % sWave)
    a("v_lshrrev_b32 v%d, 3, v0" % T)
    a("v_and_b32 v%d, 6, v%d" % (T + 1, T))
    a("v_and_b32 v%d, 7, v0" % (T + 2))
    a("v_xor_b32 v%d, v%d, v%d" % (T + 1, T + 1, T + 2))
    a("v_add_u32 v%d, s3, v%d" % (T, T))
    a("v_lshlrev_b32 v%d, 11, v%d" % (T, T))
    a("v_lshl_add_u32 v%d, v%d, 4, v%d" % (dst, T + 1, T))
    a("v_add_u32 v%d, %d, v%d" % (dst + 1, 8 * 2048 - 1024, dst))


def spin(a, name, back, vdst, vaddr, soff, allones):
    a.label(name)
    a("s_add_u32 s61, s61, 1")
    a("s_cmp_gt_u32 s61, %d" % envi("SPINMAX", 0x100000))
    a("s_cbranch_scc1 %s" % back)
    a("s_sleep 2")
    a("buffer_load_dword v%d, v%d, %s, %s offen sc1" % (vdst, vaddr, FS, soff))
    a("s_waitcnt vmcnt(0)")
    a("v_cmp_ne_u32 vcc, 1, v%d" % vdst)
    a("s_cbranch_vccnz %s" % name)
    a("s_branch %s" % back)


def poll_b(a):
    a("s_and_b32 s3, s2, 3")
    a("s_lshl_b32 s3, s3, 2")
    a("s_bfe_u32 s27, s2, 0x20003")
    a("s_add_u32 s27, s3, s27")
    a("s_lshl_b32 s43, s27, 8")
    a("s_add_u32 s43, s43, %d" % FLG_B)
    a("v_lshlrev_b32 v15, 2, v0")
    a("buffer_load_dword v7, v15, %s, s43 offen sc1 ;@vm pb" % FS)


def early(T, g):
    a = Col()
    a("s_mov_b32 s61, 0")
    a("s_bfe_u32 s3, s2, 0x10002")
    a("s_lshl_b32 s3, s3, 3")
    a("s_lshr_b32 s28, s2, 5")
    a("s_add_u32 s28, s3, s28")
    a("s_lshl_b32 %s, s27, 18" % sXa)
    a("s_lshl_b32 s3, %s, 12" % sWave)
    a("s_add_u32 %s, %s, s3" % (sXa, sXa))
    a("s_lshl_b32 %s, s28, 7" % sWo)
    a("s_lshl_b32 s42, %s, 11" % sWave)
    srd(a, 44, 4, 5, 4 * MB, WS_OB)
    a("s_mov_b32 s50, %d\ns_mov_b32 s51, 0x00020000" % (2 * MB))
    wdB(a, T + 3, T)
    post = [["v_cmp_ne_u32 vcc, 1, v7", "s_cbranch_vccnz Lk3_spinb%d ;@keep" % g, "Lk3_gotb%d: ;@keep" % g]]
    for st in range(T0, T0 + NE):
        for u in loads(st, T + 3):
            post.append(u)
    return a.atoms(1), post


def main(a, tl, publish):
    T = vT
    a("s_load_dwordx2 s[10:11], s[0:1], 40")
    a("s_load_dwordx2 s[14:15], s[0:1], 72")
    a("s_lshl_b32 %s, s27, 7" % sMB)
    a("s_lshl_b32 %s, s28, 6" % sNB)
    wdB(a, vWdB, T)
    for st in range(T0 + NE, T0 + D + 1):
        for u in loads(st):
            for x in u:
                a(x)
    a("v_lshrrev_b32 v%d, 2, v0" % T)
    a("v_and_b32 v%d, 1, v0" % (T + 2))
    a("v_bfe_u32 v%d, v0, 1, 1" % (T + 5))
    a("v_lshlrev_b32 v%d, 7, v%d" % (T + 1, T))
    a("v_lshl_add_u32 v%d, v%d, 3, v%d" % (T + 1, T + 2, T + 1))
    a("v_and_b32 v%d, 6, v%d" % (T + 4, T))
    for ni in range(4):
        a("v_add_u32 v%d, %d, v%d" % (T + 3, 2 * ni, T + 5))
        a("v_xor_b32 v%d, v%d, v%d" % (T + 3, T + 3, T + 4))
        a("v_lshl_add_u32 v%d, v%d, 4, v%d" % (vWrB + ni, T + 3, T + 1))
        a("v_add_u32 v%d, 0x10000, v%d" % (vWrB + 4 + ni, vWrB + ni))
    a(";@waitvm s%d" % (T0 % NS))
    a("s_barrier")
    tl.stamp(1)
    for x in reads(T0):
        a(x)
    a("s_and_b32 s40, s2, 3")
    a("s_bfe_u32 s36, s2, 0x30003")
    a("s_lshl_b32 %s, s36, 8" % sMA)
    a("s_bfe_u32 s3, s2, 0x10002")
    a("s_lshl_b32 s3, s3, 2")
    a("s_lshr_b32 s37, s2, 6")
    a("s_add_u32 s3, s3, s37")
    a("s_lshl_b32 s13, s3, 8")
    a("s_lshl_b32 %s, s3, 7" % sNA)
    a("s_lshl_b32 s3, s40, 5")
    a("s_add_u32 %s, %s, s3" % (sNA, sNA))
    a("s_lshl_b32 s41, %s, 12" % sWave)
    a("s_lshl_b32 s12, s36, 21")
    a("s_lshr_b32 s3, %s, 1" % sWave)
    a("s_lshl_b32 s3, s3, 20")
    a("s_add_u32 s12, s12, s3")
    a("s_and_b32 s3, %s, 1" % sWave)
    a("s_lshl_b32 s3, s3, 13")
    a("s_add_u32 s12, s12, s3")
    a("s_lshl_b32 s62, s36, 10")
    a("s_lshl_b32 s3, s40, 7")
    a("s_add_u32 s62, s62, s3")
    a("s_add_u32 s62, s62, %d" % FLG_T)
    a("s_bfe_u32 s3, s2, 0x10002")
    a("s_lshl_b32 s3, s3, 3")
    a("s_sub_u32 s39, 16, s3")
    a("s_lshl_b32 s38, s40, 4")
    a("s_add_u32 s3, s3, s38")
    a("s_lshl_b32 s3, s3, 14")
    a("s_add_u32 s12, s12, s3")
    a("s_lshl_b32 s3, s3, 3")
    a("s_add_u32 s13, s13, s3")
    a("s_mov_b32 s64, %d" % ((16384 - 16 * 16384) & 0xffffffff))
    a("s_mov_b32 s65, 16384")
    a("s_add_u32 s8, s4, %d" % WS_CTX)
    a("s_addc_u32 s9, s5, 0")
    a("s_lshl_b32 s56, s2, 16")
    a("s_lshl_b32 s38, %s, 14" % sWave)
    a("s_add_u32 s56, s56, s38")
    a("s_lshl_b32 s58, s2, 4")
    a("s_lshl_b32 s38, %s, 2" % sWave)
    a("s_add_u32 s58, s58, s38")
    a("s_add_u32 s58, s58, %d" % FLG)
    a("s_and_b32 s59, s58, 0xffffffcf")
    a("s_mov_b32 s61, 0")
    U = T + 8
    a("s_lshl_b32 s3, %s, 4" % sWave)
    a("v_lshrrev_b32 v%d, 4, v0" % U)
    a("v_and_b32 v%d, 15, v0" % (U + 2))
    for j in range(4):
        a("v_add_u32 v%d, %d, v%d" % (U + 1, 4 * (j & 1), U))
        a("v_lshlrev_b32 v%d, 1, v%d" % (U + 1, U + 1))
        a("v_xor_b32 v%d, v%d, v%d" % (U + 1, U + 1, U + 2))
        a("v_add_u32 v%d, s3, v%d" % (U + 3, U))
        a("v_lshlrev_b32 v%d, 11, v%d" % (U + 3, U + 3))
        a("v_lshl_add_u32 v%d, v%d, 4, v%d" % (U + 3, U + 1, U + 3))
        a("v_add_u32 v%d, %d, v%d" % (vWdA + j, 4 * j * 2048 - j * 1024, U + 3))
    a("v_lshlrev_b32 v%d, 8, v%d" % (T + 1, T))
    a("v_lshl_add_u32 v%d, v%d, 3, v%d" % (T + 1, T + 2, T + 1))
    a("v_and_b32 v%d, 7, v%d" % (T + 4, T))
    a("v_lshlrev_b32 v%d, 1, v%d" % (T + 4, T + 4))
    a("s_lshl_b32 s38, s40, 2")
    a("v_xor_b32 v%d, s38, v%d" % (T + 4, T + 4))
    for ni in range(8):
        a("v_add_u32 v%d, %d, v%d" % (T + 3, 2 * ni, T + 5))
        a("v_xor_b32 v%d, v%d, v%d" % (T + 3, T + 3, T + 4))
        a("v_lshl_add_u32 v%d, v%d, 4, v%d" % (vWrA + ni, T + 3, T + 1))
        a("v_add_u32 v%d, 0x10000, v%d" % (vWrA + 8 + ni, vWrA + ni))
    vP, vZ, vO1, vL4 = 252, 253, 254, 255
    a("v_mov_b32 v%d, 0" % vZ)
    a("v_mov_b32 v%d, 1" % vO1)
    a("v_and_b32 v%d, 31, v0" % vL4)
    a("v_lshlrev_b32 v%d, 2, v%d" % (vL4, vL4))
    a("v_lshrrev_b32 v%d, 5, v0" % vP)
    a("v_lshl_add_u32 v%d, v%d, 9, v%d" % (vL4, vP, vL4))
    a("s_waitcnt lgkmcnt(0)")
    srd(a, 16, 14, 15, 8 * MB)
    vF = vWrA

    def send(mi, pn):
        r = ACCA + 32 * mi + 8 * pn
        return (["v_cvt_pk_bf16_f32 v%d, v%d, v%d" % (r + e, r + 2 * e, r + 2 * e + 1) for e in range(4)],
                ["s_add_u32 s60, s56, %d" % (pn * 4096),
                 "buffer_store_dwordx4 %s, v%d, %s, s60 offen offset:%d sc1 ;@vm xs" % (v4(r), vLane, FS, mi * 1024)])

    def flag():
        a(";@waitvm xs")
        a("s_mov_b64 exec, 1")
        a("buffer_store_dword v%d, v%d, %s, s58 offen sc1" % (vO1, vZ, FS))
        a("s_mov_b64 exec, -1")

    def check(reg, name):
        def f():
            a(";@waitvm " + name)
            a("v_cmp_ne_u32 vcc, 1, v%d" % reg)
            a("s_cbranch_vccnz Lk3_spin%s ;@keep" % name)
            a.label("Lk3_got%s" % name, keep=True)
        return f

    def recv(pn):
        return [(["s_xor_b32 s60, s56, %d" % (pn << 16), "s_add_u32 s60, s60, %d" % (pn * 4096)] if mi == 0 else []) +
                ["buffer_load_dwordx4 %s, v%d, %s, s60 offen offset:%d sc1 ;@vm pay" % (v4(RCV + 16 * (pn - 1) + 4 * mi), vLane, FS, mi * 1024)] for mi in range(4)]
    TC = TA - 1 - D
    TPUB = T0 + envi("K3PUB", 0)
    TF, TP = TB + envi("K3TF", 1), TE - envi("K3TP", 2)
    assert TF < TP - 1
    t = T0
    while t < TE:
        a(";@wtphase %d" % (7 if t < TA else (8 if t < TB else 9)))
        if t == TA:
            tl.stamp(5)
        if t == TB:
            tl.stamp(2)
        kw = {}
        if t == TPUB:
            kw['post_bar'] = lambda: (a(";@waitvm cs"), publish(vZ, vO1))
        if t == TC - 1:
            kw['mem'] = [["buffer_load_dword v%d, v%d, %s, s62 offen sc1 ;@vm ft" % (vP, vL4, FS)]]
        if t == TC:
            kw['post_bar'] = check(vP, "ft")
        if t == TB - 1:
            kw['at'] = {}
            for mi in range(3):
                for pn in range(1, 4):
                    c, st = send(mi, pn)
                    g = 16 * (mi + 1) + 5 * pn - 3
                    kw['at'][g] = c[:2]
                    kw['at'][g + 1] = c[2:]
                    kw['at'][g + 3] = st
        if t == TB:
            kw['mem'] = [send(3, pn)[0] + send(3, pn)[1] for pn in range(1, 4)] + \
                [["v_and_b32 v%d, 3, v0" % (vF + 3), "v_lshlrev_b32 v%d, 4, v%d" % (vF + 3, vF + 3)]]
        if t == TF:
            kw['post_bar'] = flag
        if t == TP - 1:
            kw['mem'] = [["buffer_load_dword v%d, v%d, %s, s59 offen sc1 ;@vm fl" % (vF, vF + 3, FS)]]
        if t == TP:
            kw['post_bar'] = check(vF, "fl")
            kw['mem'] = recv(1) + recv(2) + recv(3)
        step(a, t, **kw)
        tl.stamp(100 + t)
        t += 1
    assert TPUB < TC
    tl.stamp(4)
    epilogue(a, True, vWrA)
    epilogue(a, False, vWrA)
    if tl.on:
        a("s_waitcnt vmcnt(0)")
    tl.stamp(3)
    tl.dump(vWrA, sWave)
    a("s_endpgm")
    for g in range(3 if 'noskip' in FL else 4):
        a.label("Lk3_spinb%d" % g)
        spin(a, "Lk3_spinb%d_" % g, "Lk3_gotb%d" % g, 7, 15, "s43", True)
    spin(a, "Lk3_spinft", "Lk3_gotft", vP, vL4, "s62", True)
    spin(a, "Lk3_spinfl", "Lk3_gotfl", vF, vF + 3, "s59", False)
```

```python
import os
import sys
HERE = os.path.dirname(os.path.abspath(__file__))
sys.path.insert(0, HERE)
from common import *

NAME = "concat_heads__compressed_kv_cla__sliding_local_dilated__prompt"
HEADER = """; Kernarg layout for this problem (96 bytes, ptrs only, base s[0:1]):
"""


def kdesc(name, nv, ns=102, acc=None):
    if acc is None:
        acc = (nv + 3) // 4 * 4
    return """.p2align 6
.amdhsa_kernel %s
  .amdhsa_next_free_vgpr %d
  .amdhsa_next_free_sgpr %d
  .amdhsa_accum_offset %d
  .amdhsa_group_segment_fixed_size 0
  .amdhsa_kernarg_size 96
  .amdhsa_user_sgpr_count 2
  .amdhsa_user_sgpr_kernarg_segment_ptr 1
  .amdhsa_system_sgpr_workgroup_id_x 1
.end_amdhsa_kernel
""" % (name, nv, ns, acc)


def kstart(name):
    return ".globl %s\n.p2align 8\n.type %s,@function\n%s:\n" % (name, name, name)


def main():
    import k1
    t, nv, acc, blk, lds = k1.gen()
    n = NAME + "_kernel"
    out = HEADER
    out += "; @launch grid=(256,1,1) block=(%d,1,1) lds=%d\n" % (blk, lds)
    out += '.amdgcn_target "amdgcn-amd-amdhsa--gfx950"\n.text\n'
    out += ".macro M d, a, b, c\nv_mfma_f32_16x16x32_bf16 \\d, \\a, \\b, \\c\n.endm\n"
    t = "\n".join(x.strip().replace("v_mfma_f32_16x16x32_bf16", "M") for x in t.split("\n"))
    out += kstart(n) + t
    out += '.section .rodata,"a"\n'
    out += kdesc(n, nv, acc=acc)
    dst = os.path.join(HERE, "..", NAME + ".s")
    if len(sys.argv) > 1:
        dst = sys.argv[1]
    open(dst, "w").write(out)


if __name__ == "__main__":
    main()
```

```python
import re

TRANS = ("v_exp_f32", "v_log_f32", "v_rcp_f32", "v_rsq_f32", "v_sqrt_f32", "v_sin_f32", "v_cos_f32")

_reg_re = re.compile(r"(?<![\w.])([vsa])(\d+)(?![\w])|(?<![\w.])([vsa])\[(\d+):(\d+)\]|\b(vcc|exec|m0|scc)\b")


def regs_of(text):
    out = []
    for m in _reg_re.finditer(text):
        if m.group(1):
            out.append((m.group(1), int(m.group(2))))
        elif m.group(3):
            for i in range(int(m.group(4)), int(m.group(5)) + 1):
                out.append((m.group(3), i))
        else:
            out.append((m.group(6), 0))
    return out


def split_ops(s):
    ops, depth, cur = [], 0, ""
    for ch in s:
        if ch == "[":
            depth += 1
        elif ch == "]":
            depth -= 1
        if ch == "," and depth == 0:
            ops.append(cur.strip())
            cur = ""
        else:
            cur += ch
    if cur.strip():
        ops.append(cur.strip())
    return ops


class Ins:
    __slots__ = ("text", "mn", "kind", "wr", "rd", "states", "label", "target", "passes",
                 "srcc", "dst", "trans", "dpp", "wide_store_data", "ab")

    def __init__(self, text):
        self.text = text
        self.label = None
        self.target = None
        self.wr = set()
        self.rd = set()
        self.states = 1
        self.kind = "other"
        self.passes = 0
        self.srcc = ()
        self.dst = ()
        self.ab = set()
        self.trans = False
        self.dpp = False
        self.wide_store_data = set()
        t = text.split(";")[0].strip()
        if t.endswith(":"):
            self.label = t[:-1]
            self.kind = "label"
            self.states = 0
            self.mn = ""
            return
        if not t or t.startswith("."):
            self.kind = "directive"
            self.states = 0
            self.mn = ""
            return
        parts = t.split(None, 1)
        mn = parts[0]
        self.mn = mn
        rest = parts[1] if len(parts) > 1 else ""
        ops = split_ops(rest)
        R = regs_of
        if mn == "s_nop":
            self.kind = "nop"
            self.states = int(ops[0], 0) + 1
        elif mn.startswith("s_cbranch") or mn == "s_branch":
            self.kind = "branch"
            self.target = ops[0]
            if "vcc" in mn:
                self.rd.add(("vcc", 0))
        elif mn.startswith("v_mfma"):
            self.kind = "mfma"
            self.passes = 8 if "32x32x16" in mn else (2 if "4x4x4" in mn else 4)
            self.dst = tuple(R(ops[0]))
            self.wr = set(self.dst)
            self.ab = set(R(ops[1])) | set(R(ops[2]))
            self.srcc = tuple(R(ops[3]))
            self.rd = self.ab | set(self.srcc)
        elif mn.startswith("v_"):
            self.kind = "valu"
            self.trans = any(mn.startswith(x) for x in TRANS)
            self.dpp = "dpp" in mn or "quad_perm" in t or "row_" in t
            if mn.startswith("v_permlane32_swap") or mn.startswith("v_permlane16_swap"):
                self.kind = "permlane"
                self.wr = set(R(ops[0])) | set(R(ops[1]))
                self.rd = set(self.wr)
            elif mn.startswith("v_add_co") or mn.startswith("v_addc_co") or mn.startswith("v_sub_co"):
                self.wr = set(R(ops[0])) | set(R(ops[1]))
                for o in ops[2:]:
                    self.rd |= set(R(o))
            else:
                self.wr = set(R(ops[0]))
                for o in ops[1:]:
                    self.rd |= set(R(o))
                if mn.startswith("v_fmac") or mn.startswith("v_pk_fmac") or mn.startswith("v_dot2c"):
                    self.rd |= self.wr
                if mn.startswith("v_cndmask") and len(ops) == 3:
                    self.rd.add(("vcc", 0))
                if mn.startswith("v_readfirstlane") or mn.startswith("v_readlane"):
                    self.kind = "readlane"
        elif mn.startswith("ds_"):
            self.kind = "ds"
            if mn.startswith("ds_read") or mn.startswith("ds_bpermute") or mn.startswith("ds_swizzle"):
                self.wr = set(R(ops[0]))
                for o in ops[1:]:
                    self.rd |= set(R(o))
            else:
                for o in ops:
                    self.rd |= set(R(o))
        elif mn.startswith("buffer_") or mn.startswith("global_"):
            self.kind = "vmem"
            is_lds = re.search(r"\blds\b", t) is not None or "load_lds" in mn
            if is_lds:
                self.kind = "ldsdma"
                for o in ops:
                    self.rd |= set(R(o))
                self.rd.add(("m0", 0))
            elif "load" in mn:
                self.wr = set(R(ops[0]))
                for o in ops[1:]:
                    self.rd |= set(R(o))
            else:
                for o in ops:
                    self.rd |= set(R(o))
                if "x4" in mn or "x3" in mn:
                    d = ops[0] if mn.startswith("buffer_") else ops[1]
                    self.wide_store_data = set(R(d))
        elif mn.startswith("s_"):
            self.kind = "salu"
            if mn.startswith("s_cmp") or mn.startswith("s_bitcmp") or mn in ("s_barrier", "s_waitcnt", "s_endpgm", "s_setprio", "s_sleep"):
                for o in ops:
                    self.rd |= set(R(o))
            elif ops:
                self.wr = set(R(ops[0]))
                for o in ops[1:]:
                    self.rd |= set(R(o))


VALUISH = ("valu", "permlane", "readlane")


def need(p, c):
    n = 0
    if p.kind in VALUISH:
        vw = {r for r in p.wr if r[0] in "va"}
        sw = {r for r in p.wr if r[0] in ("s", "vcc")}
        if vw:
            if c.kind == "mfma" and vw & c.rd:
                n = max(n, 2)
            if c.kind == "permlane" and vw & c.rd:
                n = max(n, 2)
            if c.kind == "valu" and c.dpp and vw & c.rd:
                n = max(n, 2)
            if c.kind == "readlane" and vw & c.rd:
                n = max(n, 1)
            if p.trans and c.kind in VALUISH and not c.trans and vw & (c.rd | c.wr):
                n = max(n, 1)
        if sw:
            if c.kind in VALUISH and sw & c.rd:
                n = max(n, 2)
            if c.kind in ("vmem", "ldsdma") and sw & c.rd:
                n = max(n, 5)
            if c.kind in ("salu", "branch") and sw & c.rd:
                n = max(n, 1)
    if p.kind == "valu" and p.mn.startswith("v_dot"):
        d = p.wr
        if d & (c.rd | c.wr):
            if c.mn == p.mn:
                ops = split_ops(c.text.split(";")[0].strip().split(None, 1)[1])
                ab = set(regs_of(ops[1])) | set(regs_of(ops[2]))
                if d & ab:
                    n = max(n, 3)
            else:
                n = max(n, 3)
    if p.kind == "mfma":
        d = p.wr
        if c.kind == "mfma":
            if d & c.ab:
                n = max(n, p.passes + 4)
            if d & set(c.srcc):
                if c.srcc == p.dst and c.passes == p.passes:
                    if p.passes == 2:
                        n = max(n, 2)
                else:
                    n = max(n, p.passes + 2)
            elif d & c.wr:
                n = max(n, p.passes + 4)
        elif c.kind in VALUISH + ("vmem", "ds", "ldsdma"):
            if d & (c.rd | c.wr):
                n = max(n, p.passes + 4)
        if c.kind in VALUISH and set(p.srcc) & c.wr:
            n = max(n, p.passes - 1)
    if p.kind == "salu" and ("m0", 0) in p.wr and c.kind == "ldsdma":
        n = max(n, 1)
    if p.wide_store_data and p.wide_store_data & c.wr:
        n = max(n, 2 if c.kind in VALUISH else 1)
    return n


WIN = 24


class Asm:
    def __init__(self):
        self.ins = []
        self.nlab = 0

    def __call__(self, text):
        for line in text.split("\n"):
            line = line.strip()
            if line:
                self.ins.append(Ins(line))

    def label(self, name, keep=False):
        self.ins.append(Ins(name + ":" + (" ;@keep" if keep else "")))

    _glab = [0]

    def newlabel(self, prefix="L"):
        Asm._glab[0] += 1
        return "%s_%d" % (prefix, Asm._glab[0])

    def _fix_linear(self):
        out = []
        for c in self.ins:
            if c.states > 0 and c.kind != "nop":
                dist = 0
                req = 0
                k = len(out) - 1
                cnt = 0
                while k >= 0 and cnt < WIN:
                    p = out[k]
                    if p.states > 0:
                        r = need(p, c) - dist
                        req = max(req, r)
                        dist += p.states
                        cnt += 1
                    k -= 1
                while req > 0:
                    n = min(req, 16)
                    out.append(Ins("s_nop %d" % (n - 1)))
                    req -= n
            out.append(c)
        self.ins = out

    def _fix_branches(self):
        changed = True
        while changed:
            changed = False
            lab = {x.label: i for i, x in enumerate(self.ins) if x.label}
            for j, b in enumerate(self.ins):
                if b.kind != "branch" or b.target not in lab:
                    continue
                i = lab[b.target]
                pre = [x for x in self.ins[max(0, j - 3 * WIN):j + 1] if x.states > 0][-WIN:]
                post = [x for x in self.ins[i:i + 3 * WIN] if x.states > 0][:WIN]
                worst = 0
                d_post = 0
                for c in post:
                    dist = d_post
                    for p in reversed(pre):
                        worst = max(worst, need(p, c) - dist)
                        dist += p.states
                    d_post += c.states
                if worst > 0:
                    self.ins.insert(j, Ins("s_nop %d" % (worst - 1)))
                    changed = True
                    break

    def _auto_lgkm(self, want=False):
        out = []
        pend = []
        for c in self.ins:
            if ";@setpend" in c.text:
                body = c.text.split(";@setpend")[1]
                pend = [set(regs_of(x)) for x in body.split("|") if x.strip()]
                continue
            need_only = None
            if ";@need" in c.text:
                need_only = set(regs_of(c.text.split(";@need")[1]))
            elif c.kind in ("label", "branch") or c.mn in ("s_barrier", "s_endpgm", "s_setpc_b64", "s_swappc_b64"):
                if ";@keep" not in c.text:
                    if pend:
                        out.append(Ins("s_waitcnt lgkmcnt(0)"))
                    pend = []
                out.append(c)
                continue
            if c.mn == "s_waitcnt":
                m = re.search(r"lgkmcnt\((\d+)\)", c.text)
                if m:
                    n = int(m.group(1))
                    pend = pend[max(0, len(pend) - n):] if n else []
                out.append(c)
                continue
            if c.mn.startswith("s_load") or c.mn.startswith("s_mem") or c.mn.startswith("s_buffer_load"):
                assert not pend or ";@spf" in c.text, "scalar memory op with LDS ops pending: " + c.text
            touch = need_only if need_only is not None else (c.rd | c.wr)
            last = -1
            for i, d in enumerate(pend):
                if d & touch:
                    last = i
            if last >= 0:
                n = len(pend) - 1 - last
                n = min(n, 15)
                out.append(Ins("s_waitcnt lgkmcnt(%d)" % n))
                pend = pend[len(pend) - n:] if n else []
            if need_only is not None:
                continue
            if c.kind == "ds":
                pend.append(set(c.wr))
            out.append(c)
        self.ins = out
        return pend

    def _resolve_vm(self):
        import collections
        ins = self.ins
        targets = collections.defaultdict(list)
        for i, c in enumerate(ins):
            if c.kind == "branch":
                targets[c.target].append(i)
        info = []
        for c in ins:
            isop = c.kind in ("vmem", "ldsdma") and ";@cond" not in c.text
            m = re.search(r";@vm (\S+)", c.text) if c.kind in ("vmem", "ldsdma") else None
            drain = (c.mn == "s_waitcnt" and "vmcnt(0)" in c.text) or c.text.startswith(";@vmdrain")
            stop = c.mn in ("s_branch", "s_endpgm")
            info.append((isop, m.group(1) if m else None, drain, stop))
        out = []
        for i, c in enumerate(ins):
            if not c.text.startswith(";@waitvm"):
                out.append(c)
                continue
            parts = c.text.split(None, 2)
            tags = set(parts[1].split(","))
            extra = parts[2] if len(parts) > 2 else ""
            best = 63
            dist = {i: 0}
            dq = collections.deque([i])
            while dq:
                j = dq.popleft()
                d = dist[j]
                if d >= best:
                    continue
                preds = []
                if j > 0 and not info[j - 1][3]:
                    preds.append(j - 1)
                if ins[j].label:
                    preds += targets.get(ins[j].label, [])
                assert j > 0, "no tagged op on a path to " + c.text
                for p in preds:
                    isop, tag, drain, _ = info[p]
                    if tag in tags:
                        best = min(best, d)
                        continue
                    if drain:
                        continue
                    nd = d + (1 if isop else 0)
                    if nd < dist.get(p, 99):
                        dist[p] = nd
                        if isop:
                            dq.append(p)
                        else:
                            dq.appendleft(p)
            out.append(Ins("s_waitcnt vmcnt(%d) %s" % (best, extra)))
        self.ins = out

    def _wt(self):
        out = []
        ph = 0
        for i, c in enumerate(self.ins):
            m = re.match(r";@wtphase (\d+)", c.text)
            if m:
                ph = int(m.group(1))
                continue
            if c.mn == "s_waitcnt" and "vmcnt" in c.text and i + 1 < len(self.ins) and self.ins[i + 1].mn == "s_barrier" and ph:
                out += [Ins("s_waitcnt lgkmcnt(0)"), Ins("s_memtime s[96:97]"), Ins("s_waitcnt lgkmcnt(0)"), c, Ins("s_memtime s[98:99]"), Ins("s_waitcnt lgkmcnt(0)"),
                        Ins("s_sub_u32 s96, s98, s96"), Ins("s_add_u32 s%d, s%d, s96" % (66 + 2 * ph, 66 + 2 * ph))]
                continue
            out.append(c)
            if c.mn == "s_barrier" and i > 0 and self.ins[i - 1].mn == "s_waitcnt" and "vmcnt" in self.ins[i - 1].text and ph:
                out += [Ins("s_memtime s[96:97]"), Ins("s_waitcnt lgkmcnt(0)"), Ins("s_sub_u32 s96, s96, s98"),
                        Ins("s_add_u32 s%d, s%d, s96" % (67 + 2 * ph, 67 + 2 * ph))]
        self.ins = out

    def _check_scc(self):
        W = ("s_lshl2", "s_add", "s_sub", "s_lsh", "s_ash", "s_and", "s_or", "s_xor", "s_min", "s_max", "s_bfe", "s_cmp", "s_bitcmp", "s_not")
        last = None
        for c in self.ins:
            if c.mn.startswith(("s_cselect", "s_cbranch_scc")):
                assert last and last.mn.startswith(("s_cmp", "s_bitcmp")), (c.text, last and last.text)
            if c.mn.startswith("s_addc"):
                assert last and last.mn == "s_add_u32", (c.text, last and last.text)
            if c.mn.startswith(W):
                last = c

    def finish(self, auto_lgkm=False):
        self._check_scc()
        self._resolve_vm()
        import os
        if 'wt' in os.environ.get("FL", "").split(","):
            self._wt()
        if auto_lgkm:
            self._auto_lgkm()
        self._fix_linear()
        self._fix_branches()
        s = []
        for x in self.ins:
            t = x.text.split(";@")[0].rstrip()
            if not t:
                continue
            if x.kind == "label":
                s.append(t)
            else:
                s.append("  " + t)
        return "\n".join(s) + "\n"


def interleave(main, fill, per=None):
    out = []
    nm = len(main)
    nf = len(fill)
    if nm == 0:
        return list(fill)
    k = 0
    for i, m in enumerate(main):
        out.append(m)
        tgt = (nf * (i + 1) + nm - 1) // nm if per is None else min(nf, per * (i + 1))
        while k < tgt:
            out.append(fill[k])
            k += 1
    out.extend(fill[k:])
    return out


def cost(ins):
    mn = ins.split(None, 1)[0]
    if any(mn.startswith(x) for x in TRANS):
        return 2.0
    if mn.startswith("s_"):
        return 0.5
    return 1.0


def weave(items, fill, lead=0.0):
    tot = sum(cost(x) for x in fill)
    out = []
    k = 0
    acc = 0.0
    n = len(items)
    while k < len(fill) and acc < lead * tot:
        out.append(fill[k]); acc += cost(fill[k]); k += 1
    base = acc
    for i, it in enumerate(items):
        out.extend(it)
        tgt = base + (tot - base) * (i + 1) / n
        while k < len(fill) and acc + cost(fill[k]) * 0.5 <= tgt:
            out.append(fill[k]); acc += cost(fill[k]); k += 1
    out.extend(fill[k:])
    return out


import struct as _struct


def f32bits(x):
    return _struct.unpack("<I", _struct.pack("<f", x))[0]


def srd(a, d, lo, hi, size, off=0):
    if off:
        a("s_add_u32 s%d, s%d, %d" % (d, lo, off))
        a("s_addc_u32 s%d, s%d, 0" % (d + 1, hi))
    else:
        a("s_mov_b32 s%d, s%d" % (d, lo))
        a("s_mov_b32 s%d, s%d" % (d + 1, hi))
    a("s_mov_b32 s%d, %d" % (d + 2, size))
    a("s_mov_b32 s%d, 0x00020000" % (d + 3))


def place(main, fill):
    by = {}
    for p, t in fill:
        by.setdefault(min(p, len(main) - 1), []).append(t)
    out = list(by.get(-1, []))
    for i, m in enumerate(main):
        out.append(m)
        out += by.get(i, [])
    return out


def v4(b):
    return "v[%d:%d]" % (b, b + 3)


def v2(b):
    return "v[%d:%d]" % (b, b + 1)


class Col:
    def __init__(self):
        self.L = []

    def __call__(self, text):
        for line in text.split("\n"):
            if line.strip():
                self.L.append(line.strip())

    def atoms(self, n=2):
        out = []
        glue = False
        for x in self.L:
            mn = x.split()[0]
            cons = mn.startswith("s_cselect") or mn.startswith("s_addc") or mn.startswith("v_cndmask")
            if out and (cons or glue or len(out[-1]) < n):
                out[-1].append(x)
            else:
                out.append([x])
            glue = mn.startswith("s_cmp") or mn.startswith("v_cmp")
        for i in range(1, len(out)):
            assert not out[i][0].split()[0].startswith(("s_addc", "s_cselect", "v_cndmask"))
        return out
```

```python
import math
from asmlib import Asm, Col, srd, v4, v2, f32bits
from common import *
import k2

vLane, vXd, vWd, vXr, vWr, vPF, vPFd, vT = 1, 2, 6, 10, 12, 20, 21, 24
ACC = 32
aACC7, aW, aX, aHOLD = 0, 32, 160, 192
sWave, sWm, sWn, sXo, sWo, sXend, sXre, sWend, sWre, sM0, sCnt, sLdx64, sM, sN = (
    "s20", "s21", "s22", "s23", "s24", "s25", "s26", "s27", "s28", "s29", "s30", "s31", "s52", "s53")
sPo, sPst, sPend, sPre = "s54", "s55", "s56", "s57"
XB, WB, SPARE = 0, 65536, 131072
SF = os.environ.get("K1SF", "sc1")
NSPS = envi("NSPS", 4)
NEARLY = envi("NEARLY", 14)
TARR = envi("TARR", 6)
PFD = envi("PFD", 4)


def a4(b):
    return "a[%d:%d]" % (b, b + 3)


def a2(b):
    return "a[%d:%d]" % (b, b + 1)


def acc(mi, ni):
    return v4(ACC + 4 * (8 * mi + ni)) if mi < 7 else a4(aACC7 + 4 * ni)


def wfr(buf, ni, hs):
    return aW + 64 * buf + 8 * ni + 4 * hs


def xfr(row, hs):
    return aX + 8 * (row % 4) + 4 * hs


def mfma(d, a_, b_, c):
    return "v_mfma_f32_16x16x32_bf16 %s, %s, %s, %s" % (d, a_, b_, c)


def xread(s, row):
    off = XB + s * 32768 + (row >> 2) * 16384 + (row & 3) * 2048
    return ["ds_read_b128 %s, v%d offset:%d" % (a4(xfr(row, hs)), vXr + hs, off) for hs in range(2)]


def wread(s, hs):
    L = []
    for ni in range(8):
        for j in range(2):
            L.append("ds_read_b64_tr_b16 %s, v%d offset:%d" % (a2(wfr(s, ni, hs) + 2 * j), vWr + ni, s * 32768 + hs * 16384 + j * 2048))
    return L


def dma_x(s, half):
    pre = ["s_add_u32 m0, %s, %d" % (sM0, XB + s * 32768 + half * 16384)]
    so = sXo
    if half:
        pre.append("s_add_u32 s3, %s, %s" % (sXo, sLdx64))
        so = "s3"
    ld = ["buffer_load_dwordx4 v%d, s[8:11], %s offen offset:%d lds ;@vm i%d%d" % (vXd + j, so, j * 1024, half, s) for j in range(4)]
    post = []
    if half:
        post = ["s_add_u32 %s, %s, 128" % (sXo, sXo), "s_cmp_eq_u32 %s, %s" % (sXo, sXend), "s_cselect_b32 %s, %s, %s" % (sXo, sXre, sXo)]
    return pre, ld, post


def dma_w(s, hs):
    pre = ["s_add_u32 m0, %s, %d" % (sM0, WB + s * 32768 + hs * 16384)]
    ld = ["buffer_load_dwordx4 v%d, s[12:15], %s offen offset:%d lds ;@vm i%d%d" % (vWd + j, sWo, j * 1024, hs, 1 - s) for j in range(4)]
    post = ["s_add_u32 %s, %s, %d" % (sWo, sWo, 32 * 8192)]
    if hs:
        post += ["s_cmp_eq_u32 %s, %s" % (sWo, sWend), "s_cselect_b32 %s, %s, %s" % (sWo, sWre, sWo),
                 "s_sub_u32 s6, s6, 1", "s_cmp_eq_u32 s6, 0", "s_cselect_b64 s[12:13], s[64:65], s[12:13]"]
    return pre, ld, post


def pf():
    return [["buffer_load_dword v%d, v%d, s[60:63], %s offen" % (vPFd, vPF, sPo), "s_add_u32 %s, %s, %d" % (sPo, sPo, MB)]]


FL2 = "fl3" not in FL
NSPF = envi("NSPF", 8)


def spf():
    L = ["s_buffer_load_dword s100, s[60:63], %s offset:%d ;@spf" % (sPo, 128 * i) for i in range(NSPF)]
    return [L[i:i + 2] for i in range(0, NSPF, 2)] + [["s_add_u32 %s, %s, %d" % (sPo, sPo, 512 * NSPF * 128)]]


def units(pre, ld, post):
    U = [pre + [ld[0]]] + [[x] for x in ld[1:]]
    if 'nodma' in FL:
        U = [pre]
    if post:
        U.append(post)
    return U


def step(a, s, swapped, first, I1, I2, vm1, vm2, wnext=True, xnext=True, extra=None, mem=None, sp=False):
    M = []
    for mi in range(8):
        for ni in range(8):
            for n, hs in enumerate((0, 1) if ni % 2 == 0 else (1, 0)):
                x, w, d = a4(xfr(mi, hs)), a4(wfr(s, ni, hs)), acc(mi, ni)
                c = "0" if (first and n == 0) else d
                M.append(mfma(d, x, w, c) if swapped else mfma(d, w, x, c))
    G = [[] for _ in range(128)]
    BX, BY = 2 * 16 + 7, 6 * 16 + 7
    nr = 'noreads' in FL
    for r in range(8):
        t = r + 2
        if t < 8:
            L = xread(s, t)
        else:
            L = xread(1 - s, t - 8) if xnext else []
        g = max(16 * r + 1, BX) if r == 2 else (max(16 * r + 1, BY) if r == 6 else 16 * r + 1)
        if not nr:
            G[g] += L
        G[16 * r + 15].append(";@need %s" % a4(xfr(r + 1, 1)))
    bar = lambda vm, tag: [("s_waitcnt vmcnt(%d) lgkmcnt(0)" % vm) if vm is not None else (";@waitvm %s lgkmcnt(0)" % tag)] + \
        ([] if 'nobar' in FL else ["s_barrier ;@keep"])
    G[BX] = bar(vm1, "i1%d" % s) + G[BX]
    G[BY] = bar(vm2, "i0%d" % (1 - s)) + G[BY]
    if wnext and not nr:
        L = wread(1 - s, 0)
        for i in range(8):
            G[3 + 4 * i] += L[2 * i:2 * i + 2]
        L = wread(1 - s, 1)
        for i in range(8):
            G[BX + 4 + 6 * i] += L[2 * i:2 * i + 2]
    if sp and 'nospf' not in FL:
        mem = dict(mem or {})
        for i, u in enumerate(spf()):
            mem[BX + 1 + i] = u + mem.get(BX + 1 + i, [])
    if mem:
        for g, L in sorted(mem.items()):
            while [y for y in G[g] if not y.startswith(";@need")]:
                g += 1
            G[g] = L + G[g]
    carry = a.carry
    a.carry = []
    free = [g for g in range(128) if not G[g]]
    def put(U, lo, hi):
        c = [g for g in free if lo <= g < hi]
        n = min(len(U), len(c))
        for i in range(n):
            g = c[(i * len(c)) // n]
            G[g] += U[i]
        for i in range(n):
            free.remove(c[(i * len(c)) // n])
        return U[n:]
    assert not put(carry, 0, BX - 2)
    assert not put(I1, BX + 1, BY - 2)
    k = (len(I2) * 2 + 4) // 5
    put(I2[:k], BY + 1, 127)
    a.carry = I2[k:]
    if extra:
        for g, L in extra.items():
            G[g] += L
    for i in range(128):
        a(M[i])
        for y in G[i]:
            a(y)
    a.nstep = getattr(a, 'nstep', 0) + 1
    a.tl.stamp(200 + a.nstep)


def tidy(U):
    if 'notidy' in FL:
        return U
    out = []
    for u in U:
        u = list(u)
        if out and any(x.startswith("buffer") for x in u):
            while u[0].startswith("s_"):
                out[-1].append(u.pop(0))
        if len(u) > 2 and all(x.startswith("s_") for x in u):
            c = Col()
            for x in u:
                c(x)
            A = c.atoms(1)
            out[-1] += A[0]
            out += A[1:2] + ([A[2] + A[3]] if len(A) > 3 else A[2:])
        else:
            out.append(u)
    return out


def std_I(s, withpf=False):
    if FL2:
        I1 = units(*dma_x(1 - s, 1)) + units(*dma_w(s, 1)) + (pf() if withpf else [])
        I2 = units(*dma_x(s, 0)) + units(*dma_w(1 - s, 0))
        return tidy(I1), tidy(I2)
    I1 = units(*dma_x(s, 0)) + units(*dma_w(1 - s, 0)) + (pf() if withpf else [])
    I2 = units(*dma_x(s, 1)) + units(*dma_w(1 - s, 1))
    return I1, I2


def dstep(a, swapped, first=False, withpf=False, sp=False):
    for s in range(2):
        I1, I2 = std_I(s, withpf)
        step(a, s, swapped, first and s == 0, I1, I2, None, None, sp=sp)


def P(n):
    return ACC + 8 * n if n < 28 else ACC + 8 * (n - 28) + 4


def cvt4(d, r0, r1):
    return ["v_cvt_pk_bf16_f32 v%d, v%d, v%d" % (d, r0, r0 + 1), "v_cvt_pk_bf16_f32 v%d, v%d, v%d" % (d + 1, r0 + 2, r0 + 3),
            "v_cvt_pk_bf16_f32 v%d, v%d, v%d" % (d + 2, r1, r1 + 1), "v_cvt_pk_bf16_f32 v%d, v%d, v%d" % (d + 3, r1 + 2, r1 + 3)]


def scale(r):
    return ["v_pk_mul_f32 %s, %s, s[4:5]" % (v2(r + e), v2(r + e)) for e in (0, 2)]


def accrd(t, ni):
    return ["v_accvgpr_read_b32 v%d, a%d" % (t + e, aACC7 + 4 * ni + e) for e in range(4)]


def pack(kind, grp, dst7=None):
    L = []
    if kind in 'qk':
        for ds in range(4):
            n = 4 * grp + ds
            if grp < 7:
                r0, r1 = ACC + 8 * n, ACC + 8 * n + 4
            else:
                r0, r1 = vT, vT + 4
                L += accrd(r0, 2 * ds) + accrd(r1, 2 * ds + 1)
            if kind == 'q':
                L += scale(r0) + scale(r1)
            L += cvt4(P(n), r0, r1)
    else:
        for ni in ((0, 4, 2, 6, 1, 5, 3, 7) if grp < 3 else (0, 4, 6, 2, 1, 3, 5, 7)):
            r0 = ACC + 4 * (16 * grp + ni)
            if grp < 3:
                r1 = r0 + 32
            else:
                r1 = vT + 4 * (ni & 1)
                L += accrd(r1, ni)
            L += cvt4(P(8 * grp + ni), r0, r1)
    return L


def pack_extra(kind):
    ex = {}
    if kind in 'qk':
        for mi in range(7):
            L = pack(kind, mi)
            n = 14 if kind == 'q' else 8
            for i, x in enumerate(L):
                ex.setdefault(min(127, 16 * (mi + 1) + 3 + (i * n) // len(L)), []).append(x)
    else:
        for m in range(3):
            L = pack(kind, m)
            for i, x in enumerate(L):
                ex.setdefault(32 * (m + 1) + 3 + (i * 20) // len(L), []).append(x)
    return ex


def out_base(kind):
    sh = 14 if kind == 'q' else 15
    L = ["s_lshr_b32 s3, %s, 7" % sN, "s_add_u32 s3, s3, %s" % sWn, "s_lshl_b32 s3, s3, 5", "s_lshr_b32 s19, %s, 6" % sM, "s_add_u32 s3, s3, s19",
         "s_lshl_b32 s19, %s, 1" % sWm, "s_add_u32 s3, s3, s19", "s_lshl_b32 s92, s3, %d" % sh]
    if kind == 'v':
        L.append("s_add_u32 s92, s92, 16384")
    L.append("s_add_u32 s93, s92, %d" % (1 << sh))
    off, size = (WS_Q, 16 * MB) if kind == 'q' else (WS_KV, 32 * MB)
    L += ["s_add_u32 s16, s50, %d" % off, "s_addc_u32 s17, s51, 0", "s_mov_b32 s18, %d" % size, "s_mov_b32 s19, 0x00020000"]
    if kind == 'q':
        c = f32bits((128 ** -0.5) * math.log2(math.e))
        L += ["s_mov_b32 s4, 0x%08x" % c, "s_mov_b32 s5, 0x%08x" % c]
    return L


def store(n, reg=None):
    return ["s_add_u32 s94, s%d, %d" % (92 + (n >> 4), ((n >> 2) & 3) * 4096),
            "buffer_store_dwordx4 %s, v%d, s[16:19], s94 offen offset:%d %s ;@vm st" % (v4(P(n) if reg is None else reg), vLane, (n & 3) * 1024, SF)]


NH = envi("NH", 16)


def held(lo, hi, g0=8, g1=120):
    L = [n for n in range(28 - NH + lo, 28 - NH + min(hi, NH))]
    return {g0 + (i * (g1 - g0)) // max(1, len(L)): [x.replace(v4(P(n)), a4(aHOLD + 4 * (n - 28 + NH))) for x in store(n)] for i, n in enumerate(L)}


def kv_seam(a):
    I1, I2 = std_I(0)
    ex = {}
    for i, x in enumerate(out_base('k')):
        ex.setdefault(60 + i // 2, []).append(x.replace("s3", "s95"))
    step(a, 0, False, False, I1, I2, None, None, extra=ex)
    nd = 28 - NH
    pos = {n: max(30 + 16 * (n >> 2), 30 + (n * min(7 * 28, 110 + 16 * ((nd - 1) >> 2) - 30 + 14)) // max(nd, 1)) for n in range(nd)}
    I1, I2 = std_I(1)
    ex = pack_extra('k')
    park = ["v_accvgpr_write_b32 a%d, v%d" % (aHOLD + 4 * (n - nd) + e, P(n) + e) for n in range(nd, 28) for e in range(4)]
    late = []
    for x in park:
        r = int(x.split("v")[-1])
        g = 16 * ((r - ACC) // 32 + 1) + 12 + ((r - ACC) % 32) // 8
        if g < 128:
            ex.setdefault(g, []).append(x)
        else:
            late.append(x)
    step(a, 1, False, False, I1, I2, None, None, extra=ex, mem={g: store(n) for n, g in pos.items() if g < 126})
    I1, I2 = std_I(0)
    mem = {max(g - 128, 0): store(n) for n, g in pos.items() if g >= 126}
    ex = {}
    for i, x in enumerate(late):
        ex.setdefault(i // 2, []).append(x)
    for ds in range(4):
        g = 20 + 24 * ds
        L = accrd(vT, 2 * ds) + accrd(vT + 4, 2 * ds + 1) + cvt4(vT, vT, vT + 4)
        for i, x in enumerate(L):
            ex.setdefault(g + i // 2, []).append(x)
        mem[g + 9] = store(28 + ds, vT)
    step(a, 0, True, True, I1, I2, None, None, extra=ex, mem=mem)
    I1, I2 = std_I(1)
    step(a, 1, True, False, I1, I2, None, None, mem=held(0, 4))


def tail(a, swapped):
    kind = 'v' if swapped else 'q'
    I1, I2 = std_I(0)
    step(a, 0, swapped, False, I1, I2, None, None, mem=held(12, 16) if swapped else None)
    I1, I2 = (std_I(1)[0], units(*dma_x(1, 0))) if FL2 else (units(*dma_x(1, 0)), units(*dma_x(1, 1)))
    step(a, 1, swapped, False, I1, I2, None, None)
    S = b_setup() + out_base(kind)
    ex = {}
    for i, x in enumerate(S):
        ex.setdefault((52 + (i * 48) // len(S)) if FL2 else (41 + (i * 58) // len(S)), []).append(x)
    step(a, 0, swapped, False, [], b_dma_x(0) + b_dma_w(0), None, None, extra=ex,
         mem={40 + 2 * i: u for i, u in enumerate(units(*dma_x(1, 1))[:4])} if FL2 else None)
    if swapped:
        pos = {n: (58 + 4 * n if n < 8 else 92 + 6 * (n - 8)) for n in range(NEARLY)}
    else:
        pos = {n: 36 + (88 * n) // 13 for n in range(NEARLY)}
    step(a, 1, swapped, False, b_dma_x(1) + b_dma_w(1), b_dma_x(2) + b_dma_w(2), None, 63, wnext=False, xnext=False, extra=pack_extra(kind),
         mem={g: store(n) for n, g in pos.items()})
    for x in pack(kind, 3 if swapped else 7):
        a(x)


def epilogue(a, kind):
    T = vT
    if kind == 'q':
        a("s_mov_b32 s3, 0x%08x" % f32bits((128 ** -0.5) * math.log2(math.e)))
        a("v_mov_b32 v%d, s3" % vXr)
    a("s_lshr_b32 s4, %s, 7" % sN)
    a("s_add_u32 s4, s4, %s" % sWn)
    a("s_lshl_b32 s4, s4, 5")
    a("s_lshr_b32 s5, %s, 6" % sM)
    a("s_add_u32 s4, s4, s5")
    a("s_lshl_b32 s5, %s, 1" % sWm)
    a("s_add_u32 s4, s4, s5")
    sh = 14 if kind == 'q' else 15
    a("s_lshl_b32 s4, s4, %d" % sh)
    k = 0

    def get(mi, ni, t):
        if mi < 7:
            return ACC + 4 * (8 * mi + ni)
        for e in range(4):
            a("v_accvgpr_read_b32 v%d, a%d" % (t + e, aACC7 + 4 * ni + e))
        return t
    if kind == 'v':
        pairs = [((mi, ni), (mi + 1, ni), (mi >> 2) * 32768 + 16384 + ((mi >> 1) & 1) * 8192 + ni * 1024) for mi in range(0, 8, 2) for ni in range(8)]
    else:
        pairs = [((mi, 2 * ds), (mi, 2 * ds + 1), (mi >> 2) * (1 << sh) + (mi & 3) * 4096 + ds * 1024) for mi in range(8) for ds in range(4)]
    last = None
    for p0, p1, off in pairs:
        r0 = get(p0[0], p0[1], ACC)
        r1 = get(p1[0], p1[1], ACC + 4)
        if kind == 'q':
            for r in (r0, r0 + 2, r1, r1 + 2):
                a("v_pk_mul_f32 %s, %s, %s op_sel_hi:[1,0]" % (v2(r), v2(r), v2(vXr)))
        u = T + 4 * (k % 2)
        k += 1
        a("v_cvt_pk_bf16_f32 v%d, v%d, v%d" % (u, r0, r0 + 1))
        a("v_cvt_pk_bf16_f32 v%d, v%d, v%d" % (u + 1, r0 + 2, r0 + 3))
        a("v_cvt_pk_bf16_f32 v%d, v%d, v%d" % (u + 2, r1, r1 + 1))
        a("v_cvt_pk_bf16_f32 v%d, v%d, v%d" % (u + 3, r1 + 2, r1 + 3))
        if last != off >> 12:
            a("s_add_u32 s5, s4, %d" % (off & ~4095))
            last = off >> 12
        a("buffer_store_dwordx4 %s, v%d, s[16:19], s5 offen offset:%d %s" % (v4(u), vLane, off & 4095, SF))


vBX, vBH, vBW = 2, 20, (6, 7, 8, 9, 21, 22)
vBXr, vBWr = 10, 14
aBACC, aBW, aBX = 68, 176, 224
STG = 98304
vST = 124
BXO = (131072, 0, 18432)
BWO = (65536, 98304, 36864)
sBX, sBH, sBW, sRB, sCP = "s23", "s24", "s25", "s26", "s27"
PCR = 6
BL = 3
PITCH = 400


def bacc(mi, i):
    return aBACC + 4 * (3 * mi + i)


def bxfr(t, row, hs):
    return aBX + 8 * ((9 * t + row) % 4) + 4 * hs


def bwfr(t, i, hs):
    return aBW + 24 * (t % 2) + 8 * i + 4 * hs


def b_ids(rb, cp):
    return ["s_and_b32 s3, s2, 1", "s_lshl_b32 s3, s3, 3", "s_bfe_u32 s4, s2, 0x30003", "s_add_u32 %s, s3, s4" % rb,
            "s_bfe_u32 s3, s2, 0x20001", "s_lshl_b32 s3, s3, 2", "s_lshr_b32 s4, s2, 6", "s_xor_b32 s4, s4, %d" % envi("CPX", 2), "s_add_u32 %s, s3, s4" % cp]


def b_setup():
    T = vT
    L = []
    a = L.append
    L += b_ids(sRB, sCP)
    a("s_lshl_b32 %s, %s, 18" % (sBX, sRB))
    a("s_sub_u32 %s, %s, 32768" % (sBH, sBX))
    a("s_max_i32 %s, %s, 0" % (sBH, sBH))
    a("s_lshl_b32 %s, %s, 7" % (sBW, sCP))
    a("s_mov_b64 s[8:9], s[44:45]")
    a("s_mov_b32 s10, %d" % (4 * MB))
    a("s_mov_b64 s[12:13], s[46:47]")
    a("s_mov_b32 s14, %d" % (6 * MB))
    a("s_mov_b64 s[36:37], s[90:91]")
    a("s_mov_b32 s38, 256")
    a("s_mov_b32 s39, 0x00020000")
    a("s_lshl_b32 s28, %s, 9" % sWave)
    a("s_mul_i32 s30, %s, 6144" % sWave)
    a("s_lshl_b32 s3, %s, 5" % sWave)
    a("v_lshrrev_b32 v%d, 3, v0" % T)
    a("v_and_b32 v%d, 7, v0" % (T + 1))
    a("v_add_u32 v%d, s3, v%d" % (T + 4, T))
    for j in range(4):
        a("v_add_u32 v%d, %d, v%d" % (T + 2, 8 * j, T + 4))
        a("v_bfe_u32 v%d, v%d, 1, 3" % (T + 3, T + 2))
        a("v_xor_b32 v%d, v%d, v%d" % (T + 3, T + 3, T + 1))
        a("v_lshlrev_b32 v%d, 11, v%d" % (T + 2, T + 2))
        a("v_lshl_add_u32 v%d, v%d, 4, v%d" % (T + 2, T + 3, T + 2))
        a("v_subrev_u32 v%d, %d, v%d" % (vBX + j, j * 1024, T + 2))
    a("s_lshl_b32 s3, %s, 2" % sWave)
    a("v_lshrrev_b32 v%d, 5, v0" % (T + 2))
    a("v_add_u32 v%d, s3, v%d" % (T + 2, T + 2))
    a("v_bfe_u32 v%d, v0, 2, 3" % (T + 5))
    for i, d in enumerate((vBH, 23)):
        if i:
            a("v_add_u32 v%d, 2, v%d" % (T + 2, T + 2))
        a("v_bfe_u32 v%d, v%d, 1, 3" % (T + 3, T + 2))
        a("v_xor_b32 v%d, v%d, v%d" % (T + 3, T + 3, T + 5))
        a("v_lshlrev_b32 v%d, 4, v%d" % (T + 3, T + 3))
        a("v_and_b32 v%d, 3, v0" % (T + 6))
        a("v_lshl_add_u32 v%d, v%d, 2, v%d" % (T + 3, T + 6, T + 3))
        a("v_lshl_add_u32 v%d, v%d, 11, v%d" % (d, T + 2, T + 3))
    a("v_subrev_u32 v23, 256, v23")
    a("s_mul_i32 s3, %s, 48" % sWave)
    a("v_add_u32 v%d, s3, v%d" % (T + 4, T))
    for j in range(6):
        a("v_add_u32 v%d, %d, v%d" % (T + 2, 8 * j, T + 4))
        a("v_mul_u32_u24 v%d, 0xaaab, v%d" % (T + 3, T + 2))
        a("v_lshrrev_b32 v%d, 17, v%d" % (T + 3, T + 3))
        a("v_lshrrev_b32 v%d, 1, v%d" % (T + 5, T + 3))
        a("v_and_b32 v%d, 4, v%d" % (T + 5, T + 5))
        a("v_and_or_b32 v%d, v%d, 2, v%d" % (T + 3, T + 3, T + 5))
        a("v_xor_b32 v%d, v%d, v%d" % (T + 3, T + 3, T + 1))
        a("v_lshlrev_b32 v%d, 11, v%d" % (T + 2, T + 2))
        a("v_lshl_add_u32 v%d, v%d, 4, v%d" % (T + 2, T + 3, T + 2))
        a("v_subrev_u32 v%d, %d, v%d" % (vBW[j], (j & 3) * 1024, T + 2))
    return L


def b_dma_x(t):
    st = t % 3
    U = [["s_add_u32 m0, s28, %d" % BXO[st], "buffer_load_dword v%d, s[8:11], %s offen lds ;@vm bx%d" % (vBH, sBH, t)],
         ["buffer_load_dword v23, s[8:11], %s offen offset:256 lds ;@vm bx%d" % (sBH, t)]]
    for j in range(4):
        U.append((["s_add_u32 m0, %s, %d" % (sM0, BXO[st] + 2048)] if j == 0 else []) +
                 ["buffer_load_dwordx4 v%d, s[8:11], %s offen offset:%d lds ;@vm bx%d" % (vBX + j, sBX, j * 1024, t)])
    U[-1] += ["s_add_u32 %s, %s, 128" % (sBX, sBX)]
    U[1] += ["s_add_u32 %s, %s, 128" % (sBH, sBH)]
    return U


def b_dma_w(t):
    st = t % 3
    U = []
    for j in range(6):
        U.append((["s_add_u32 m0, s30, %d" % (BWO[st] + (j >> 2) * 4096)] if j % 4 == 0 else []) +
                 ["buffer_load_dwordx4 v%d, s[12:15], %s offen offset:%d lds ;@vm bw%d" % (vBW[j], sBW, (j & 3) * 1024, t)])
    U[-1] += ["s_add_u32 %s, %s, %d" % (sBW, sBW, 64 * 6144)]
    return U


def b_xread(t, row):
    st = t % 3
    return ["ds_read_b128 %s, v%d offset:%d" % (a4(bxfr(t, row, hs)), vBXr + (2 if st == 0 else 0) + hs, (0 if st == 0 else BXO[st]) + row * 2048) for hs in range(2)]


def b_wread(t):
    st = t % 3
    L = []
    for hs in range(2):
        for i in range(3):
            for j in range(2):
                off = (0 if st == 1 else BWO[st] - BWO[2]) + (hs * 32 + j * 4) * 384
                L.append("ds_read_b64_tr_b16 %s, v%d offset:%d" % (a2(bwfr(t, i, hs) + 2 * j), vBWr + (3 if st == 1 else 0) + i, off))
    return L


def b_stage_out(mi):
    L = []
    for i in range(3):
        t = vT + 4 * (i % 2)
        L += ["v_accvgpr_read_b32 v%d, a%d" % (t + e, bacc(mi, i) + e) for e in range(4)]
        L += ["v_cvt_pk_bf16_f32 v%d, v%d, v%d" % (t, t, t + 1), "v_cvt_pk_bf16_f32 v%d, v%d, v%d" % (t + 1, t + 2, t + 3),
              "ds_write_b64 v%d, %s offset:%d" % (vST, v2(t), mi * 16 * PITCH + i * 32)]
    return L


def b_step(a, t, stores, valu=None, late=None, post_bar=None):
    M = []
    for mi in range(9):
        for i in range(3):
            for n, hs in enumerate((0, 1) if (3 * mi + i) % 2 == 0 else (1, 0)):
                d = a4(bacc(mi, i))
                M.append(mfma(d, a4(bwfr(t, i, hs)), a4(bxfr(t, mi, hs)), "0" if (t == 0 and n == 0) else d))
    G = [[] for _ in range(54)]
    BB = 6 * (9 - BL) + 4
    for r in range(9):
        q = r + BL
        if q < 9:
            G[6 * r] += b_xread(t, q)
        elif t < 15:
            G[max(6 * r, BB)] += b_xread(t + 1, q - 9)
        if r < 8 or t < 15:
            G[6 * r + 5].append(";@need %s" % a4(bxfr(t, r + 1, 1) if r < 8 else bxfr(t + 1, 0, 1)))
    if t < 15:
        tags = "bx%d" % (t + 1) + (",bw%d" % (t + 2) if t + 2 < 16 else "")
        post = []
        if t == TARR:
            tags += ",st"
            post = ["s_cmp_lg_u32 s101, 0", "s_cbranch_scc1 Lk1_arr ;@keep", "v_mov_b32 v127, 1", "s_and_b32 s41, s2, 128",
                    "s_mov_b64 exec, 1", "buffer_atomic_add v127, off, s[36:39], s41 sc1 ;@cond", "s_mov_b64 exec, -1", "Lk1_arr: ;@keep"]
        G[BB] = [";@waitvm %s lgkmcnt(0)" % tags, "s_barrier ;@keep"] + G[BB] + post + (post_bar or [])
        L = b_wread(t + 1)
        for i in range(6):
            G[2 + 6 * i] += L[2 * i:2 * i + 2]
    carry = a.carry
    I = [] if 'stlast' in FL else list(stores)
    if t + 3 < 16:
        I += b_dma_x(t + 3)
    if t + 4 < 16:
        I += b_dma_w(t + 4)
    if 'stlast' in FL:
        I += list(stores)
    I = tidy(I) + (late or [])
    free = [g for g in range(54) if not G[g] or G[g][0].startswith(";@need")]

    def put(U, lo, hi):
        c = [g for g in free if lo <= g < hi]
        assert len(U) <= len(c), (len(U), len(c))
        pos = [c[(i * len(c)) // len(U)] for i in range(len(U))]
        for g, u in zip(pos, U):
            G[g] = u + G[g]
            free.remove(g)
    put(carry, 0, (BB - 1) if t < 15 else 54)
    k = min(len(I), 4 if t < 14 else 7)
    put(I[:k], BB + 1, 54)
    a.carry = I[k:]
    if valu:
        lo, hi, U = valu
        for i, u in enumerate(U):
            G[lo + (i * (hi - lo)) // len(U)] += u
    if t == 15:
        G[BB] = ["s_waitcnt lgkmcnt(0)", "s_barrier ;@keep"] + G[BB]
        for mi in range(7):
            L = b_stage_out(mi)
            g0 = 6 * (mi + 2) if mi != 5 else BB + 1
            n = 6 if mi != 5 else 7
            for i in range(n):
                G[g0 + i] += L[(i * 21) // n:((i + 1) * 21) // n]
    for i in range(54):
        a(M[i])
        for y in G[i]:
            a(y)


def b_job(a, tl):
    T = vT
    a("v_and_b32 v%d, 15, v0" % T)
    a("v_lshlrev_b32 v%d, 7, v%d" % (T, T))
    a("v_bfe_u32 v%d, v0, 1, 3" % (T + 1))
    a("v_lshrrev_b32 v%d, 4, v0" % (T + 2))
    a("v_xor_b32 v%d, v%d, v%d" % (T + 1, T + 1, T + 2))
    a("v_lshl_add_u32 v%d, v%d, 4, v%d" % (vBXr, T + 1, T))
    a("v_xor_b32 v%d, 64, v%d" % (vBXr + 1, vBXr))
    a("v_add_u32 v%d, %d, v%d" % (vBXr + 2, BXO[0], vBXr))
    a("v_add_u32 v%d, %d, v%d" % (vBXr + 3, BXO[0], vBXr + 1))
    a("v_bfe_u32 v%d, v0, 2, 2" % T)
    a("v_lshl_add_u32 v%d, v%d, 3, v%d" % (T + 5, T + 2, T))
    a("v_mul_u32_u24 v%d, 384, v%d" % (T + 1, T + 5))
    a("v_and_b32 v%d, 1, v0" % (T + 3))
    a("v_lshl_add_u32 v%d, v%d, 3, v%d" % (T + 1, T + 3, T + 1))
    a("v_add_u32 v%d, %d, v%d" % (T + 1, BWO[2], T + 1))
    a("v_lshrrev_b32 v%d, 1, v%d" % (T, T + 5))
    a("v_and_b32 v%d, 4, v%d" % (T, T))
    a("v_and_or_b32 v%d, v%d, 2, v%d" % (T, T + 5, T))
    a("v_bfe_u32 v%d, v0, 1, 1" % (T + 2))
    a("s_mul_i32 s4, %s, 3" % sWave)
    for i in range(3):
        a("s_add_u32 s3, s4, %d" % i)
        a("s_and_b32 s5, s3, 3")
        a("s_lshl_b32 s5, s5, 1")
        a("s_lshr_b32 s3, s3, 2")
        a("s_lshl_b32 s3, s3, 7")
        a("v_add_u32 v%d, s5, v%d" % (T + 3, T + 2))
        a("v_xor_b32 v%d, v%d, v%d" % (T + 3, T + 3, T))
        a("v_lshl_add_u32 v%d, v%d, 4, v%d" % (T + 3, T + 3, T + 1))
        a("v_add_u32 v%d, s3, v%d" % (vBWr + i, T + 3))
        a("v_add_u32 v%d, %d, v%d" % (vBWr + 3 + i, BWO[1] - BWO[2], vBWr + i))
    a("s_barrier")
    tl.stamp(8)
    for x in b_wread(0):
        a(x)
    for r in range(BL):
        for x in b_xread(0, r):
            a(x)
    a("s_waitcnt lgkmcnt(0)")
    a("s_barrier")
    a.carry = a.carry + b_dma_w(3)
    vQa, vKa, vVa = 120, 121, 122
    MA, MB_, MA0, ONE = 144, 148, 152, 156
    QF, KF, VF, SS, OO, LL, MX = 32, 48, 68, 88, 32, 120, 136
    NEG = 0xf149f2ca
    T = 128
    c_ = Col()
    c_("v_and_b32 v%d, 15, v0" % T)
    c_("v_mul_u32_u24 v%d, %d, v%d" % (T, PITCH, T))
    c_("v_lshrrev_b32 v%d, 4, v0" % (T + 1))
    c_("v_lshl_add_u32 v%d, v%d, 3, v%d" % (T, T + 1, T))
    c_("s_mul_i32 s3, %s, 96" % sWave)
    c_("s_add_u32 s3, s3, %d" % STG)
    c_("v_add_u32 v%d, s3, v%d" % (vST, T))
    c_("v_and_b32 v%d, 15, v0" % T)
    c_("v_lshrrev_b32 v%d, 4, v0" % (T + 1))
    c_("s_add_u32 s3, %s, 16" % sWm)
    c_("v_lshl_add_u32 v%d, v%d, 1, s3" % (T + 2, T))
    c_("s_lshl_b32 s4, %s, 6" % sWn)
    c_("s_add_u32 s4, s4, %d" % STG)
    c_("v_mul_u32_u24 v%d, %d, v%d" % (vQa, PITCH, T + 2))
    c_("v_lshl_add_u32 v%d, v%d, 4, v%d" % (vQa, T + 1, vQa))
    c_("v_add_u32 v%d, s4, v%d" % (vQa, vQa))
    c_("v_subrev_u32 v%d, 32, v%d" % (T + 2, T + 2))
    c_("v_max_i32 v%d, 0, v%d" % (T + 2, T + 2))
    c_("v_mul_u32_u24 v%d, %d, v%d" % (vKa, PITCH, T + 2))
    c_("v_lshl_add_u32 v%d, v%d, 4, v%d" % (vKa, T + 1, vKa))
    c_("v_add_u32 v%d, s4, v%d" % (vKa, vKa))
    c_("v_bfe_u32 v%d, v0, 2, 2" % (T + 3))
    c_("v_lshl_add_u32 v%d, v%d, 2, v%d" % (T + 3, T + 1, T + 3))
    c_("v_lshl_add_u32 v%d, v%d, 1, s3" % (T + 3, T + 3))
    c_("v_and_b32 v%d, 3, v0" % (T + 4))
    c_("v_lshlrev_b32 v%d, 3, v%d" % (T + 4, T + 4))
    c_("v_add_u32 v%d, s4, v%d" % (T + 4, T + 4))
    c_("v_mad_u32_u24 v%d, v%d, s5, v%d" % (vVa, T + 3, T + 4) if False else "s_movk_i32 s5, %d" % PITCH)
    c_("v_mad_u32_u24 v%d, v%d, s5, v%d" % (vVa, T + 3, T + 4))
    c_("v_subrev_u32 v%d, 32, v%d" % (T + 3, T + 3))
    c_("v_max_i32 v%d, 0, v%d" % (T + 3, T + 3))
    c_("v_mad_u32_u24 v%d, v%d, s5, v%d" % (vVa + 1, T + 3, T + 4))
    c_("v_lshlrev_b32 v%d, 2, v%d" % (T + 1, T + 1))
    c_("v_sub_u32 v%d, v%d, v%d" % (T, T, T + 1))
    c_("v_mov_b32 v%d, 0x%08x" % (T + 1, NEG))
    c_("s_cmp_eq_u32 %s, 0" % sRB)
    c_("s_cselect_b32 s3, 0x%08x, 0" % NEG)
    for r in range(4):
        c_("v_cmp_lt_i32 vcc, %d, v%d" % (r - 9, T))
        c_("v_cndmask_b32 v%d, 0, v%d, vcc" % (MA + r, T + 1))
        c_("v_subrev_u32 v%d, %d, v%d" % (T + 2, r, T))
        c_("v_cmp_lt_u32 vcc, 7, v%d" % (T + 2))
        c_("v_cndmask_b32 v%d, 0, v%d, vcc" % (MB_ + r, T + 1))
        c_("v_min_f32 v%d, s3, v%d" % (MA0 + r, MA + r))
        c_("v_mov_b32 v%d, 0x3f803f80" % (ONE + r))
    srd(c_, 16, 50, 51, 4 * MB, WS_OB)
    c_("s_lshl_b32 s3, %s, 18" % sRB)
    c_("s_lshl_b32 s4, %s, 14" % sCP)
    c_("s_add_u32 s3, s3, s4")
    c_("s_lshl_b32 s4, %s, 13" % sWm)
    c_("s_add_u32 s3, s3, s4")
    c_("s_lshl_b32 s4, %s, 10" % sWn)
    c_("s_add_u32 s6, s3, s4")
    c = (32 ** -0.5) * math.log2(math.e)
    c_("s_mov_b32 s7, 0x%08x" % f32bits(c))
    c_("s_lshl_b32 s65, %s, 8" % sRB)
    c_("s_lshl_b32 s3, %s, 4" % sCP)
    c_("s_add_u32 s65, s65, s3")
    c_("s_lshl_b32 s3, s101, 2")
    c_("s_add_u32 s65, s65, s3")
    c_("s_add_u32 s65, s65, %d" % FLG_B)
    c_("s_mov_b32 s40, 0")
    c_("v_mov_b32 v119, 0")
    c_("s_mov_b64 s[4:5], s[50:51]")
    k2.early_q(c_)
    A1 = c_.atoms(2)
    c_ = Col()
    k2.early(c_)
    A2 = c_.atoms(2)
    LQ, L1, L2 = k2.early_loads()
    h = len(A1) // 2
    TQ = envi("TQ", 12)
    for t in range(16):
        kw = {}
        if t in (8, 13):
            z = ["v_mov_b32 v%d, 0" % r for r in range(k2.OV + (0 if t == 8 else 48), k2.OV + (48 if t == 8 else 96))]
            kw['valu'] = (0, 54, [z[i:i + 2] for i in range(0, 48, 2)])
        if t == 9:
            kw['valu'] = (0, 54, A1[:h])
        if t == 10:
            kw['valu'] = (0, 38, A1[h:])
        if t == TQ - 1:
            kw['late'] = [["buffer_load_dword v125, v119, s[36:39], 0 offen sc1"]]
        if t == TQ:
            kw['post_bar'] = [";@waitvm pq", "v_cmp_gt_u32 vcc, 0x80, v125", "s_cbranch_vccnz Lk1_spinq ;@keep", "Lk1_gotq: ;@keep"]
            kw['late'] = LQ[:8]
        if t == TQ + 1:
            kw['late'] = LQ[8:]
        if t == 13:
            kw['late'] = kw.get('late', []) + [["buffer_load_dword v126, v119, s[36:39], 0 offen offset:128 sc1 ;@vm pc"]]
            kw['latefirst'] = True
        if t == 14:
            kw['valu'] = (0, 38, A2)
            kw['post_bar'] = [";@waitvm pc", "v_cmp_gt_u32 vcc, 0x80, v126", "s_cbranch_vccnz Lk1_spin ;@keep", "Lk1_got: ;@keep"]
            kw['late'] = L1
        kw.pop('latefirst', None)
        a(";@wtphase %d" % (4 if t < 9 else 5))
        b_step(a, t, a.bstores[t], **kw)
        tl.stamp(20 + t)
    a("s_mov_b64 s[44:45], s[42:43]")
    assert not a.carry
    tl.stamp(9)
    for mi in (7, 8):
        for x in b_stage_out(mi):
            a(x)
    a("s_waitcnt lgkmcnt(0)")
    a("s_barrier")
    n0 = len(a.ins)
    a("ds_read_b128 %s, v%d offset:128" % (v4(KF), vKa))
    for q in range(4):
        a("ds_read_b128 %s, v%d offset:%d" % (v4(QF + 4 * q), vQa, q * 32 * PITCH))
        a("ds_read_b128 %s, v%d offset:%d" % (v4(KF + 4 + 4 * q), vQa, q * 32 * PITCH + 128))
    for f in range(2):
        a("ds_read_b64_tr_b16 %s, v%d offset:%d" % (v2(VF + 10 * f), vVa + 1, 256 + 32 * f))
        for q in range(4):
            a("ds_read_b64_tr_b16 %s, v%d offset:%d" % (v2(VF + 10 * f + 2 + 2 * q), vVa, q * 32 * PITCH + 256 + 32 * f))
    for r in range(k2.aO, k2.aO + 48):
        a("v_accvgpr_write_b32 a%d, 0" % r)
    for q in range(4):
        a(mfma(v4(SS + 8 * q), v4(KF + 4 * q), v4(QF + 4 * q), v4(MA0 if q == 0 else MA)))
        a(mfma(v4(SS + 8 * q + 4), v4(KF + 4 * q + 4), v4(QF + 4 * q), v4(MB_)))
    for q in range(4):
        s_, m = SS + 8 * q, MX + q
        a("v_max3_f32 v%d, v%d, v%d, v%d" % (m, s_, s_ + 1, s_ + 2))
        a("v_max3_f32 v%d, v%d, v%d, v%d" % (m, m, s_ + 3, s_ + 4))
        a("v_max3_f32 v%d, v%d, v%d, v%d" % (m, m, s_ + 5, s_ + 6))
        a("v_max_f32 v%d, v%d, v%d" % (m, m, s_ + 7))
    for sw in ("v_permlane16_swap_b32", "v_permlane32_swap_b32"):
        for q in range(4):
            a("v_mov_b32 v%d, v%d" % (MX + 4 + q, MX + q))
        for q in range(4):
            a("%s v%d, v%d" % (sw, MX + q, MX + 4 + q))
        for q in range(4):
            a("v_max_f32 v%d, v%d, v%d" % (MX + q, MX + q, MX + 4 + q))
    for q in range(4):
        a("v_mul_f32 v%d, s7, v%d" % (MX + q, MX + q))
    for q in range(4):
        s_ = SS + 8 * q
        for e in range(8):
            a("v_fma_f32 v%d, v%d, s7, -v%d" % (s_ + e, s_ + e, MX + q))
        for e in range(8):
            a("v_exp_f32 v%d, v%d" % (s_ + e, s_ + e))
    for q in range(4):
        s_ = SS + 8 * q
        for e in range(4):
            a("v_cvt_pk_bf16_f32 v%d, v%d, v%d" % (s_ + e, s_ + 2 * e, s_ + 2 * e + 1))
    for q in range(4):
        a(mfma(v4(LL + 4 * q), v4(ONE), v4(SS + 8 * q), "0"))
        for f in range(2):
            a(mfma(v4(OO + 8 * q + 4 * f), v4(VF + 10 * f + 2 * q), v4(SS + 8 * q), "0"))
    for q in range(4):
        a("v_rcp_f32 v%d, v%d" % (LL + 4 * q, LL + 4 * q))
    for q in range(4):
        o = OO + 8 * q
        for e in range(0, 8, 2):
            a("v_pk_mul_f32 %s, %s, %s op_sel_hi:[1,0]" % (v2(o + e), v2(o + e), v2(LL + 4 * q)))
        for e in range(4):
            a("v_cvt_pk_bf16_f32 v%d, v%d, v%d" % (o + e, o + 2 * e, o + 2 * e + 1))
        a("s_add_u32 s3, s6, %d" % (q * 2048))
        a("buffer_store_dwordx4 %s, v%d, s[16:19], s3 offen sc1 ;@vm ob" % (v4(o), vLane))
    from asmlib import Ins
    body = a.ins[n0:]
    del a.ins[n0:]
    lo, hi = 20, len(body) - 45
    assert NEARLY + NSPS * (TARR - 1) >= 32 and TARR <= 9
    for i, x in enumerate(body):
        a.ins.append(x)
        if lo <= i < hi:
            for k in range(((i - lo) * len(L2)) // (hi - lo), ((i - lo + 1) * len(L2)) // (hi - lo)):
                a.ins += [Ins(y) for y in L2[k]]


def gen():
    a = Asm()
    a.carry = []
    a.bstores = [[store(n) for n in range(NEARLY + NSPS * t, min(32, NEARLY + NSPS * (t + 1)))] for t in range(16)]
    tl = TL(a, 0, 50, 'tl' in FL)
    a.tl = tl
    T = vT
    a("s_cmp_lt_u32 s2, 256")
    a("s_cbranch_scc1 Lk1_go")
    a("s_endpgm")
    a.label("Lk1_go")
    tl.early()
    a("s_load_dwordx16 s[32:47], s[0:1], 0")
    a("s_load_dwordx2 s[48:49], s[0:1], 64")
    a("s_load_dwordx2 s[50:51], s[0:1], 88")
    a("s_load_dwordx2 s[90:91], s[0:1], 80")
    a("v_lshrrev_b32 v%d, 6, v0" % T)
    a("v_readfirstlane_b32 %s, v%d" % (sWave, T))
    a("v_and_b32 v0, 63, v0")
    a("v_lshlrev_b32 v%d, 4, v0" % vLane)
    a("s_mov_b32 s101, %s" % sWave)
    a("s_lshr_b32 %s, %s, 1" % (sWm, sWave))
    a("s_and_b32 %s, %s, 1" % (sWn, sWave))
    a("s_lshl_b32 %s, %s, 12" % (sM0, sWave))
    a("s_and_b32 s3, s2, 1")
    a("s_lshl_b32 s3, s3, 2")
    a("s_bfe_u32 s6, s2, 0x20003")
    a("s_add_u32 s3, s3, s6")
    a("s_lshl_b32 %s, s3, 8" % sM)
    a("s_bfe_u32 s3, s2, 0x20001")
    a("s_lshl_b32 s3, s3, 2")
    a("s_bfe_u32 s7, s2, 0x20005")
    a("s_add_u32 s3, s3, s7")
    a("s_lshl_b32 %s, s3, 8" % sN)
    a("s_cmp_lt_u32 s2, 128")
    a("s_cselect_b32 s5, 11, 10")
    a("s_lshl_b32 s3, %s, 3" % sWave)
    a("v_lshrrev_b32 v%d, 5, v0" % T)
    a("v_add_u32 v%d, s3, v%d" % (T, T))
    a("v_and_b32 v%d, 31, v0" % (T + 1))
    for j in range(4):
        a("v_add_u32 v%d, %d, v%d" % (T + 2, 2 * j, T))
        a("v_and_b32 v%d, 3, v%d" % (T + 3, T + 2))
        a("v_lshlrev_b32 v%d, 1, v%d" % (T + 3, T + 3))
        a("v_and_or_b32 v%d, v%d, 8, v%d" % (T + 3, T + 2, T + 3))
        a("v_xor_b32 v%d, v%d, v%d" % (T + 3, T + 3, T + 1))
        a("v_lshlrev_b32 v%d, 13, v%d" % (T + 2, T + 2))
        a("v_lshl_add_u32 v%d, v%d, 4, v%d" % (T + 2, T + 3, T + 2))
        a("v_subrev_u32 v%d, %d, v%d" % (vWd + j, j * 1024, T + 2))
    a("s_lshl_b32 %s, %s, s5" % (sXo, sM))
    a("s_lshl_b32 %s, 64, s5" % sLdx64)
    a("s_mov_b32 %s, %s" % (sXre, sXo))
    a("s_lshl_b32 %s, %s, 1" % (sWo, sN))
    a("s_mov_b32 %s, %s" % (sWre, sWo))
    a("s_lshl_b32 s3, 1, s5")
    a("s_add_u32 %s, %s, s3" % (sXend, sXo))
    a("s_lshl_b32 s3, s3, 12")
    a("s_add_u32 %s, %s, s3" % (sWend, sWo))
    a("s_bfe_u32 s3, s2, 0x20001")
    a("s_and_b32 s4, s2, 1")
    a("s_lshl_b32 s4, s4, 1")
    a("s_add_u32 s3, s3, s4")
    a("s_and_b32 s3, s3, %d" % (0 if 'norot' in FL else 3))
    a("s_sub_u32 s4, s5, 2")
    a("s_lshl_b32 s3, s3, s4")
    a("s_add_u32 %s, %s, s3" % (sXo, sXo))
    a("s_lshl_b32 s3, s3, 12")
    a("s_add_u32 %s, %s, s3" % (sWo, sWo))
    a("s_mov_b32 s95, s6")
    a("s_cmp_lt_u32 s2, 128")
    a("s_cselect_b32 s6, -1, 8")
    a("s_waitcnt lgkmcnt(0)")
    a("s_cmp_lt_u32 s2, 128")
    a("s_cselect_b64 s[8:9], s[32:33], s[34:35]")
    a("s_mov_b32 s10, %d" % (2 * MB))
    a("s_cselect_b32 s10, %d, s10" % (4 * MB))
    a("s_mov_b32 s11, 0x00020000")
    a("s_cselect_b64 s[12:13], s[36:37], s[38:39]")
    a("s_mov_b32 s14, %d" % (4 * MB))
    a("s_cselect_b32 s14, %d, s14" % (8 * MB))
    a("s_mov_b32 s15, 0x00020000")
    a("s_mov_b64 s[64:65], s[40:41]")

    def now(pre, ld, post):
        for x in pre + ["s_nop 0"] + ([] if 'nodma' in FL else ld) + post:
            a(x)
    now(*dma_w(0, 0))
    now(*dma_w(0, 1))
    a("s_lshl_b32 s3, %s, 7" % sWm)
    a("s_lshl_b32 s4, %s, 5" % sWn)
    a("s_add_u32 s3, s3, s4")
    a("v_lshrrev_b32 v%d, 3, v0" % T)
    a("v_add_u32 v%d, s3, v%d" % (T, T))
    a("v_and_b32 v%d, 7, v0" % (T + 1))
    for j in range(4):
        a("v_add_u32 v%d, %d, v%d" % (T + 2, 8 * j, T))
        a("v_bfe_u32 v%d, v%d, 1, 3" % (T + 3, T + 2))
        a("v_xor_b32 v%d, v%d, v%d" % (T + 3, T + 3, T + 1))
        a("v_lshlrev_b32 v%d, s5, v%d" % (T + 2, T + 2))
        a("v_lshl_add_u32 v%d, v%d, 4, v%d" % (T + 2, T + 3, T + 2))
        a("v_subrev_u32 v%d, %d, v%d" % (vXd + j, j * 1024, T + 2))
    now(*[[y.replace("@vm i00", "@vm p0") for y in z] for z in dma_x(0, 0)])
    tl.stamp(7)
    srd(a, 16, 50, 51, FLG_END - FLG, WS_XCH + FLG)
    for r in range(4):
        a("v_mov_b32 v%d, 0" % (T + r))
    a("s_lshl_b32 s3, s2, 4")
    a("buffer_store_dwordx4 %s, v%d, s[16:19], s3 offen sc1 ;@zero" % (v4(T), T))
    a("s_and_b32 s3, s2, 7")
    a("s_lshr_b32 s4, s2, 6")
    a("s_lshl_b32 s4, s4, 3")
    a("s_add_u32 s3, s3, s4")
    a("s_lshl_b32 s3, s3, 4")
    a("s_add_u32 s3, s3, %d" % (FLG_T - FLG))
    a("s_bfe_u32 s4, s2, 0x30003")
    a("s_lshl_b32 s4, s4, 9")
    a("s_add_u32 s92, s3, s4")
    a("s_sub_u32 s4, %d, s4" % (15 * 512))
    a("s_add_u32 s93, s3, s4")
    a("buffer_store_dwordx4 %s, v%d, s[16:19], s92 offen sc1 ;@zero" % (v4(T), T))
    a("buffer_store_dwordx4 %s, v%d, s[16:19], s93 offen sc1 ;@zero" % (v4(T), T))
    for x in b_ids("s92", "s93"):
        a(x)
    a("s_lshl_b32 s92, s92, 8")
    a("s_lshl_b32 s93, s93, 4")
    a("s_add_u32 s92, s92, s93")
    a("s_add_u32 s92, s92, %d" % (FLG_B - FLG))
    a("buffer_store_dwordx4 %s, v%d, s[16:19], s92 offen sc1 ;@zero" % (v4(T), T))
    a("v_lshlrev_b32 v%d, 7, v0" % vPF)
    a("s_lshl_b32 %s, s2, 13" % sPo)
    a("s_mov_b64 s[60:61], s[40:41]")
    a("s_mov_b32 s62, %d" % (4 * MB if 'wuv' in FL else 0))
    a("s_cmp_eq_u32 %s, 1" % sWave)
    a("s_cselect_b64 s[60:61], s[46:47], s[60:61]")
    a("s_cselect_b32 s62, %d, s62" % (6 * MB))
    a("s_cmp_eq_u32 %s, 2" % sWave)
    a("s_cselect_b64 s[60:61], s[44:45], s[60:61]")
    a("s_cselect_b32 s62, %d, s62" % (4 * MB))
    a("s_cmp_eq_u32 %s, 3" % sWave)
    a("s_cselect_b32 s62, 0, s62")
    a("s_mov_b32 s63, 0x00020000")
    D0, D1, D2 = [int(x) for x in os.environ.get("WD", "0,6,6").split(",")]
    a("s_mov_b32 s3, %d" % (D0 * MB))
    a("s_cmp_eq_u32 %s, 1" % sWave)
    a("s_cselect_b32 s3, %d, s3" % (D1 * MB))
    a("s_cmp_eq_u32 %s, 2" % sWave)
    a("s_cselect_b32 s3, %d, s3" % (D2 * MB))
    a("s_sub_u32 %s, %s, s3" % (sPo, sPo))
    a.label("Lc0", keep=True)
    now(*[[y.replace("@vm i00", "@vm p1") for y in z] for z in dma_w(1, 0)])
    a("s_lshl_b32 s4, %s, 13" % sWm)
    a("v_and_b32 v%d, 15, v0" % T)
    a("v_lshlrev_b32 v%d, 7, v%d" % (T, T))
    a("v_add_u32 v%d, s4, v%d" % (T, T))
    a("v_bfe_u32 v%d, v0, 1, 3" % (T + 1))
    a("v_lshrrev_b32 v%d, 4, v0" % (T + 2))
    a("v_xor_b32 v%d, v%d, v%d" % (T + 1, T + 1, T + 2))
    a("v_lshl_add_u32 v%d, v%d, 4, v%d" % (vXr, T + 1, T))
    a("v_xor_b32 v%d, 64, v%d" % (vXr + 1, vXr))
    a("v_bfe_u32 v%d, v0, 2, 2" % T)
    a("v_lshl_add_u32 v%d, v%d, 3, v%d" % (T + 5, T + 2, T))
    a("v_lshlrev_b32 v%d, 9, v%d" % (T + 1, T + 5))
    a("v_and_b32 v%d, 1, v0" % (T + 3))
    a("v_lshl_add_u32 v%d, v%d, 3, v%d" % (T + 1, T + 3, T + 1))
    a("v_add_u32 v%d, %d, v%d" % (T + 1, WB, T + 1))
    a("v_lshlrev_b32 v%d, 1, v%d" % (T, T))
    a("v_and_or_b32 v%d, v%d, 8, v%d" % (T, T + 5, T))
    a("v_bfe_u32 v%d, v0, 1, 1" % (T + 2))
    a("s_lshl_b32 s4, %s, 4" % sWn)
    for ni in range(8):
        a("s_add_u32 s3, s4, %d" % (2 * ni))
        a("v_add_u32 v%d, s3, v%d" % (T + 3, T + 2))
        a("v_xor_b32 v%d, v%d, v%d" % (T + 3, T + 3, T))
        a("v_lshl_add_u32 v%d, v%d, 4, v%d" % (vWr + ni, T + 3, T + 1))
    npf = 4 if 'notouch' in FL else 5
    a(";@waitvm p0")
    a("s_barrier")
    tl.stamp(1)
    for x in wread(0, 0) + wread(0, 1) + xread(0, 0) + xread(0, 1):
        a(x)
    now(*dma_x(0, 1))
    now(*dma_w(1, 1))
    a("s_barrier")
    code_touch(a, "Lc1", "Lc3", T, vPFd, 92)
    a.carry = units(*dma_x(1, 0)) + units(*dma_w(0, 0)) + ([] if FL2 else units(*dma_x(1, 1)) + units(*dma_w(0, 1)))
    carry0 = list(a.carry)
    a.label("Lc1", keep=True)
    a("s_cmp_lt_u32 s2, 128")
    a("s_cbranch_scc0 Lk1_kv")
    a(";@wtphase 1")
    dstep(a, False, first=True, withpf=True)
    a("s_mov_b32 %s, 5" % sCnt)
    a.label("Lk1_ql", keep=True)
    dstep(a, False, withpf=True)
    a("s_sub_u32 %s, %s, 1" % (sCnt, sCnt))
    a("s_cmp_lg_u32 %s, 0" % sCnt)
    a("s_cbranch_scc1 Lk1_ql ;@keep")
    tail(a, False)
    tl.stamp(2)
    a("s_branch Lk1_b")
    for nm, reg, off in (("", 126, 128), ("q", 125, 0)):
        a.label("Lk1_spin" + nm)
        a("s_add_u32 s40, s40, 1")
        a("s_cmp_gt_u32 s40, %d" % envi("SPINMAX", 0x100000))
        a("s_cbranch_scc1 Lk1_got" + nm)
        a("s_sleep 2")
        a("buffer_load_dword v%d, v119, s[36:39], 0 offen offset:%d sc1 ;@cond" % (reg, off))
        a("s_waitcnt vmcnt(0)")
        a("v_cmp_gt_u32 vcc, 0x80, v%d" % reg)
        a("s_cbranch_vccnz Lk1_spin" + nm)
        a("s_branch Lk1_got" + nm)
    a.label("Lk1_kv")
    a.carry = carry0
    a("s_mov_b64 s[60:61], s[40:41]")
    a("s_mov_b32 s62, %d" % (4 * MB))
    a("s_and_b32 s3, s2, 127")
    a("s_lshl_b32 s3, s3, 2")
    a("s_add_u32 s3, s3, %s" % sWave)
    a("s_mul_i32 %s, s3, %d" % (sPo, NSPF * 128))
    dstep(a, False, first=True, sp=True)
    a("s_mov_b32 %s, 2" % sCnt)
    a.label("Lk1_kl", keep=True)
    dstep(a, False, sp=True)
    a("s_sub_u32 %s, %s, 1" % (sCnt, sCnt))
    a("s_cmp_lg_u32 %s, 0" % sCnt)
    a("s_cbranch_scc1 Lk1_kl ;@keep")
    tl.stamp(4)
    a(";@wtphase 2")
    kv_seam(a)
    tl.stamp(5)
    a(";@wtphase 3")
    for s_ in range(2):
        I1, I2 = std_I(s_)
        step(a, s_, True, False, I1, I2, None, None, mem=held(4 + 4 * s_, 8 + 4 * s_))
    tail(a, True)
    tl.stamp(2)
    a.label("Lk1_b")
    tl.stamp(6)
    b_job(a, tl)
    tl.stamp(10)
    tl.lo = 4
    tl.dump(vT, "s101")
    n1 = len(a.ins)

    def publish_b(vZ, vOne):
        a("s_mov_b64 exec, 1")
        a("buffer_store_dword v%d, v%d, s[52:55], s65 offen sc1" % (vOne, vZ))
        a("s_mov_b64 exec, -1")
    a(";@wtphase 6")
    a.label("Lc2")
    k2.main(a, publish_b)
    a.label("Lc3")
    for i, c in enumerate(a.ins[:n1]):
        if c.wide_store_data and ';@zero' not in c.text:
            left = set(c.wide_store_data)
            for p_ in reversed(a.ins[:i]):
                hit = left & p_.wr
                if hit:
                    assert p_.mn.startswith("v_cvt_pk") or p_.mn.startswith("v_accvgpr_write"), (c.text, p_.text)
                    left -= hit
                    if not left:
                        break
    for i, c in enumerate(a.ins[:n1]):
        if c.mn == "v_accvgpr_write_b32" and c.rd and min(r[1] for r in c.wr) >= aHOLD:
            for p_ in reversed(a.ins[:i]):
                if c.rd & p_.wr:
                    assert p_.mn.startswith("v_cvt_pk"), (c.text, p_.text)
                    break
    return a.finish(auto_lgkm=True), 512, 256, 256, 163840
```

```python
from asmlib import Asm, srd, v4, v2, f32bits
from common import *
import k3

vLane, vRd, vNEG, vT = 1, 2, 4, 8
TRI, CUP, CDI, CLO = 16, 20, 24, 28
S0, S1, OV = 32, 96, 160
aQ, aO, aL, aONES, aFR = 0, 64, 96, 112, 116
NFR = 16
aQ2 = aFR + 4 * NFR
NA = aQ2 + 64
SB = (S0, S1)
SCR = 131072
LEAD = 4
sHead, sP, sWave, sU, sG, sK, sV, sWrapK, sBase, sM0, sCnt, sFlag, sRT = (
    "s20", "s21", "s22", "s23", "s24", "s25", "s26", "s27", "s28", "s29", "s30", "s60", "s31")
LO_BITS = (127 - 60) << 23
SPAN = (120 << 23)
SF = "sc1"
SUM4 = "sum4" in FL
BAR1 = True
SHARE = "noshare" not in FL
SKIP = "noskip" not in FL
vRdV = 5
sD = "s42"


def a4(b):
    return "a[%d:%d]" % (b, b + 3)


def S(b, kb, qb):
    return SB[b] + 4 * (4 * kb + qb)


def Oop(db, qb):
    return v4(OV + 4 * (4 * db + qb)) if db < 6 else a4(aO + 4 * (4 * (db - 6) + qb))


def fr(f):
    return a4(aFR + 4 * (f % NFR))


def mfma(d, a_, b_, c):
    return "v_mfma_f32_16x16x32_bf16 %s, %s, %s, %s" % (d, a_, b_, c)


DBX = [0]


def rd(f, par):
    if f < 16:
        off = f * 1024
    else:
        db, j = ((f - 16) >> 1) ^ DBX[0], f & 1
        off = 32768 + (j * 8 + db) * 1024
    return "ds_read_b128 %s, v%d offset:%d" % (fr(f), (vRd if f < 16 else vRdV) + par, off)


def live(ty, kb, qb):
    return ty == 'N' or (ty == 'T' and kb <= qb)


def soft(b, j, ty='N'):
    E, C = [], []
    for qb in range(4):
        for h in range(2):
            r = S(b, 2 * j + h, qb)
            E += ["v_exp_f32 v%d, v%d" % (r + i, r + i) for i in range(4)]
            d = S(b, 2 * j, qb) + 2 * h
            C += ["v_cvt_pk_bf16_f32 v%d, v%d, v%d" % (d, r, r + 1), "v_cvt_pk_bf16_f32 v%d, v%d, v%d" % (d + 1, r + 2, r + 3)]
            if not live(ty, 2 * j + h, qb):
                E[-4:] = [""] * 4
                C[-2:] = ["v_mov_b32 v%d, 0" % d, "v_mov_b32 v%d, 0" % (d + 1)] if live(ty, 2 * j, qb) else ["", ""]
    if 'noexp' in FL:
        E = [x.replace("v_exp_f32", "v_mov_b32") for x in E]
    return E, C


def soft_plain(a, b, j, ty='N'):
    E, C = soft(b, j, ty)
    for g in range(8):
        for x in E[4 * g:4 * g + 4]:
            a(x)
        if g:
            for x in C[2 * g - 2:2 * g]:
                a(x)
    for x in C[14:]:
        a(x)


def dma(isV, slot, g1=True):
    s = sV if isV else sK
    wr, bs = ("s62", "s63") if isV else (sWrapK, sBase)
    m0 = ["s_add_u32 m0, %s, %d" % (sM0, slot * 32768 + h * 4096) for h in range(2)]
    pre = ["s_add_u32 s32, %s, 4096" % s]
    ld = ["buffer_load_dwordx4 v%d, s[12:15], %s offen offset:%d sc1 lds" % (vLane, "s32" if j >= 4 else s, (j & 3) * 1024) + " ;@vm kv%d" % slot for j in range(8)]
    post = ["s_add_u32 %s, %s, 32768" % (s, s), "s_cmp_eq_u32 %s, %s" % (s, wr), "s_cselect_b32 %s, %s, %s" % (s, bs, s),
            "s_cselect_b32 %s, -1, %s" % (wr, wr)]
    if SHARE and g1:
        w2, b2 = ("s58", "s59") if isV else ("s56", "s57")
        post = post[:3] + ["s_cselect_b32 %s, %s, %s" % (wr, w2, wr), "s_cselect_b32 %s, %s, %s" % (bs, b2, bs), "s_cselect_b32 %s, -1, %s" % (w2, w2)]
    if 'nodma' in FL:
        ld = ["s_nop 0"] * 8
    return m0, pre, ld, post


def qloads(blk_sreg, aQ=aQ):
    P = ["s_lshl_b32 s33, %s, 7" % sHead, "s_lshl_b32 s34, %s, 3" % blk_sreg, "s_add_u32 s33, s33, s34",
         "s_lshl_b32 s34, %s, 2" % sU, "s_add_u32 s33, s33, s34", "s_lshl_b32 s33, s33, 12"]
    L = []
    for qb in range(4):
        for ds in range(4):
            L.append("buffer_load_dwordx4 %s, v%d, s[8:11], s33 offen offset:%d sc1" % (a4(aQ + 16 * qb + 4 * ds), vLane, ds * 1024))
        if qb < 3:
            L.append("s_add_u32 s33, s33, 4096")
    return P, L


def phase(a, M, f0, par_same, par_next, nxt0, E, C, D, vm, first_need, extraM=None, extra=None, do_next=True, pre_u=None, post_u=None, DL=None, wr_u=None, noread=False):
    E = list(E) if E else []
    C = list(C) if C else []
    if 'novalu' in FL:
        E, C = [], []
    nE = [0]
    nC = [0]

    def e():
        if E:
            nE[0] += 1
            return [E.pop(0)]
        return []

    def c(n=1):
        out = []
        while n and C and 2 * (nC[0] + 1) <= nE[0]:
            out.append(C.pop(0))
            nC[0] += 1
            n -= 1
        return out

    def rr(m):
        if 'noreads' in FL:
            return []
        if m < 8:
            return [] if noread else [rd(f0 + 2 * m, par_same), rd(f0 + 2 * m + 1, par_same)]
        if not do_next:
            return []
        return [rd(nxt0 + 2 * (m - 8), par_next), rd(nxt0 + 2 * (m - 8) + 1, par_next)]

    def w(u):
        if u < 8 and first_need[u] is not None and not noread:
            return [";@need %s" % fr(f0 + first_need[u])]
        return []
    m0, pre, ld, post = D if D else ([None, None], [], ["" for _ in range(8)], [])
    ld = list(ld)
    X = list(extra) if extra else []

    def d():
        r = [ld.pop(0)] if D else []
        return r

    def x(n):
        return X.pop(0) if X else []
    for y in w(0):
        a(y)
    if D:
        a(m0[0])
    DL = list(DL) if DL else []
    for u in range(8):
        if BAR1 and f0 == 0 and vm is None:
            gaps = [e(), rr(u + LEAD), e(), DL.pop(0), e(), c(2), e(), DL.pop(0) + (c(1) if u == 7 else []) + w(u + 1)]
        elif BAR1:
            bar = [";@waitvm %s lgkmcnt(0)" % vm, "s_barrier ;@keep"]
            if u < 4:
                gaps = [e(), rr(u + LEAD), e(), c(1), e(), x(2), e(), c(1) + w(u + 1)]
            elif u == 4:
                gaps = [e(), x(2), e(), c(1), e(), x(2), e(), c(1) + w(5)]
            elif u == 5:
                gaps = [e(), [], e(), c(1), e(), bar + rr(8), e(), c(1)]
            else:
                gaps = [e(), rr(9 if u == 6 else 11), e(), c(1), e(), rr(10) if u == 6 else [], e(), c(1)]
        elif u < 4:
            gaps = [e(), rr(u + LEAD), e(), d() + (pre if u == 0 else []), e(), c(2), e(), d() + ([m0[1]] if (u == 1 and D) else []) + w(u + 1)]
        elif u == 4:
            gaps = [e(), post, e(), c(2), e(), x(3), e(), c(1) + w(5)]
        elif u == 5:
            bar = [(";@waitvm %s lgkmcnt(0)" % vm) if isinstance(vm, str) else ("s_waitcnt vmcnt(%d) lgkmcnt(0)" % vm)] + \
                ([] if 'nobar' in FL else ["s_barrier ;@keep"])
            gaps = [e(), x(2), e(), c(1), e(), bar + rr(8) + rr(9), e(), c(1) + w(6)]
        else:
            gaps = [e(), rr(u + LEAD), e(), c(1), e(), x(2), e(), c(2) + w(u + 1)]
        for i in range(8):
            g = 8 * u + i
            if pre_u and g < 44:
                gaps[i] = gaps[i] + [y for k in range((g * len(pre_u)) // 44, ((g + 1) * len(pre_u)) // 44) for y in pre_u[k]]
            if post_u and g >= 45:
                gaps[i] = gaps[i] + [y for k in range(((g - 45) * len(post_u)) // 19, ((g - 44) * len(post_u)) // 19) for y in post_u[k]]
            if wr_u and g >= 34 and g % 2 == 0:
                gaps[i] = [wr_u.pop(0)] + gaps[i]
            a(M[8 * u + i])
            for y in gaps[i]:
                a(y)
        if extraM and u < len(extraM):
            for y in extraM[u]:
                a(y)
                for z in x(2):
                    a(z)
    for y in wr_u or []:
        a(y)
    assert not E and not C and not X, (len(E), len(C), len(X))


def qk_mfmas(nb, masked, aQ=aQ, ty='N'):
    M = []
    for kb in range(4):
        for qb in range(4):
            d = v4(S(nb, kb, qb))
            order = range(4) if qb % 2 == 0 else range(3, -1, -1)
            for n, ds in enumerate(order):
                if n:
                    c = d
                elif masked:
                    c = v4(CLO if kb < qb else (CDI if kb == qb else CUP))
                else:
                    c = "0"
                if ty == 'T' and kb == qb and n == 0:
                    c = v4(TRI)
                M.append(mfma(d, fr(4 * kb + ds), a4(aQ + 16 * qb + 4 * ds), c) if live(ty, kb, qb) else "")
    return M


QK_NEED = [3, None, 7, None, 11, None, 15, None]
PV_NEED = [1, 3, 5, 7, 9, 11, 13, 15]


def qk_phase(a, par, masked, q, tq='N', tp='N'):
    nb = 1 - par
    E, C = soft(par, 1, tp)
    if BAR1:
        DL = []
        for isV in (False, True):
            m0, pre, ld, post = dma(isV, 2 * nb + (1 if isV else 0))
            if isV:
                pre = [y.replace("s32", "s43") for y in pre]
                ld = [y.replace("s32", "s43") for y in ld]
                DL[-1] += [m0[0]]
            else:
                a(m0[0])
            U = [[y] for y in ld]
            U[0] += pre
            U[3] += [m0[1]]
            DL += U
        phase(a, qk_mfmas(nb, masked, q, tq), 0, par, par, 16, E, C, None, None, QK_NEED, DL=DL, noread=(tq == 'Z'), do_next=(tp != 'Z'))
        return
    phase(a, qk_mfmas(nb, masked, q), 0, par, par, 16, E, C, dma(True, 2 * nb + 1), "kv%d" % (2 * par + 1), QK_NEED)


def pv_phase(a, par, e0=True, vm=None, extra=None, nxt=True, dodma=True, first=False, pre_u=None, post_u=None, g1=False, wr_u=None, tq='N', tp='N'):
    M = []
    for dd in range(8):
        db = dd ^ DBX[0]
        for qb in range(4):
            for n, j in enumerate((0, 1) if qb % 2 == 0 else (1, 0)):
                M.append(mfma(Oop(db, qb), fr(16 + 2 * dd + j), v4(S(par, 2 * j, qb)), "0" if (first and n == 0) else Oop(db, qb))
                         if live(tp, 2 * j, qb) else "")
    sums = [[mfma(a4(aL + 4 * qb), a4(aONES), v4(S(par, 2 * j, qb)), "0" if (first and j == 0) else a4(aL + 4 * qb)) if live(tp, 2 * j, qb) else ""
             for j in range(2)] for qb in range(4)]
    if SUM4:
        seq = [(qb, j, h) for j in range(2) for h in range(2) for qb in range(4)]
        small = ["v_mfma_f32_4x4x4_16b_bf16 %s, a[%d:%d], %s, %s" % (a4(aL + 4 * qb), aONES, aONES + 1, v2(S(par, 2 * j, qb) + 2 * h),
                                                                   "0" if (first and j == 0 and h == 0) else a4(aL + 4 * qb)) for qb, j, h in seq]
        pos = [int(x) for x in os.environ.get("S4POS", "1,5").split(",")]
        for u in range(8):
            for k in range(2):
                M[8 * u + pos[k]] += "\n" + small[2 * u + k]
        sums = None
    E, C = soft(1 - par, 0, tq) if e0 else (None, None)
    if BAR1:
        if dodma:
            P = dma(False, 0, g1)[3] + dma(True, 0, g1)[3]
            extra = [P[i:i + 2] for i in range(0, len(P), 2)]
            if SHARE and g1:
                extra += [kflip(par), [], [], [], [], [], vflip(par)]
            vm = "kv%d,kv%d" % (2 - 2 * par, 3 - 2 * par)
        dodma = False
    phase(a, M, 16, par, 1 - par, 0, E, C, dma(False, 2 * par) if dodma else None, vm or "kv%d" % (2 - 2 * par), PV_NEED, extraM=sums, extra=extra, do_next=nxt, pre_u=pre_u, post_u=post_u, wr_u=wr_u, noread=(tp == 'Z'))


def kflip(par):
    return ["s_sub_u32 s33, %s, 1" % sD, "s_cmp_le_u32 s33, 1", "s_cselect_b32 s33, 0x4000, 0", "v_add_u32 v%d, s33, v%d" % (vRd + par, vRd + par)]


def vflip(par):
    return ["s_cmp_le_u32 %s, 1" % sD, "s_cselect_b32 s33, 0x4000, 0", "v_add_u32 v%d, s33, v%d" % (vRdV + par, vRdV + par), "s_sub_u32 %s, %s, 1" % (sD, sD)]


def set_mask(a, delta):
    a("s_lshl_b32 s33, %s, 6" % sU)
    a("s_add_i32 s33, s33, %s" % delta)
    a("s_cmp_gt_i32 s33, 0")
    a("s_cselect_b32 s34, 0, 0xf149f2ca")
    a("s_cmp_lt_i32 s33, 0")
    a("s_cselect_b32 s33, 0xf149f2ca, 0")
    for r in range(4):
        a("v_mov_b32 v%d, s34" % (CUP + r))
    for r in range(4):
        a("v_mov_b32 v%d, s33" % (CLO + r))
    for r in range(4):
        a("v_med3_f32 v%d, v%d, v%d, v%d" % (CDI + r, TRI + r, CUP, CLO))


def body(a, par, masked=None, q=aQ, first=False, g1=False, tq='N', tp='N'):
    if masked is not None:
        set_mask(a, masked)
    qk_phase(a, par, masked is not None, q, tq, tp)
    pv_phase(a, par, first=first, g1=g1, tq=tq, tp=tp)


def fin(a, first, g, idx, tp='N'):
    DBX[0] = 4 * (1 - g)
    k3.poll_b(a)
    for f in range(2 * LEAD if tp != 'Z' else 0):
        a(rd(16 + f, 0))
    a("s_lshl_b32 s33, %s, 14" % sU)
    a("s_add_u32 s34, s33, %d" % (98304 + 32768 * g))
    a("s_add_u32 s33, s33, %d" % (98304 + 32768 * (1 - g)))
    a("v_add_u32 v%d, s34, v%d" % (vRd, vLane))
    a("v_add_u32 v%d, s33, v%d" % (vRd + 1, vLane))
    soft_plain(a, 0, 1, tp)
    pre_u, post_u = k3.early(S1, idx)
    W = ["ds_write_b128 v%d, %s offset:%d" % (vRd, Oop(4 * (1 - g) + (q >> 2), q & 3), q * 1024) for q in range(16)]
    pv_phase(a, 0, e0=False, vm="pb", nxt=False, dodma=False, first=first, pre_u=pre_u, post_u=post_u, wr_u=W, tp=tp)
    DBX[0] = 0


def merge(a, g):
    a("s_lshl_b32 s33, %s, 10" % sWave)
    a("s_add_u32 s33, s33, 28672")
    a("s_xor_b32 s34, s33, 2048")
    a("v_add_u32 v%d, s33, v%d" % (vT + 6, vLane))
    a("v_add_u32 v%d, s34, v%d" % (vT + 7, vLane))
    read_l(a, CUP)
    a("ds_write_b128 v%d, %s" % (vT + 6, v4(CUP)))
    a("s_waitcnt lgkmcnt(0)")
    a("s_barrier")
    a("ds_read_b128 %s, v%d" % (v4(CLO), vT + 7))
    for q in range(16):
        a("ds_read_b128 %s, v%d offset:%d" % (v4(S0 + 4 * q), vRd + 1, q * 1024))
    for qb in range(4):
        a("v_add_f32 v%d, v%d, v%d" % (CUP + qb, CUP + qb, CLO + qb))
    a("s_sub_u32 s35, 15, %s" % sP)
    finalize(a, "s35", [2 * g, 2 * g + 1], 2, [CUP + q for q in range(4)], add_from=S0)


PEND = ";@setpend " + " | ".join(fr(f) for f in range(2 * LEAD))


def finalize(a, blk_sreg, ilist, flagbit, lsrc, add_from=None):
    vR, vC, vA = vT, vT + 4, vT + 6
    for qb in range(4):
        a("v_rcp_f32 v%d, v%d" % (vR + qb, lsrc[qb]))
    if flagbit is not None:
        for qb in range(4):
            a("v_subrev_u32 v%d, 0x%08x, v%d" % (lsrc[qb], LO_BITS, lsrc[qb]))
        a("v_max_u32 v%d, v%d, v%d" % (vC, lsrc[0], lsrc[1]))
        a("v_max3_u32 v%d, v%d, v%d, v%d" % (vC, vC, lsrc[2], lsrc[3]))
        a("s_mov_b32 s64, 0x207")
    a("s_lshl_b32 s33, %s, 20" % blk_sreg)
    a("s_lshl_b32 s34, %s, 15" % sHead)
    a("s_add_u32 s33, s33, s34")
    a("s_lshl_b32 s34, %s, 13" % sU)
    a("s_add_u32 s36, s33, s34")
    a("s_add_u32 s37, s36, 4096")
    a("s_add_u32 s38, s36, 16384")
    a("s_add_u32 s39, s36, 20480")
    dst = {}
    free = []
    chk = []
    sto = []
    for n, i in enumerate(ilist):
        for qb in range(4):
            src = []
            for h in range(2):
                db = 2 * i + h
                if db < 6:
                    r = OV + 4 * (4 * db + qb)
                else:
                    r = free.pop(0)
                    for e in range(4):
                        a("v_accvgpr_read_b32 v%d, a%d" % (r + e, aO + 4 * (4 * (db - 6) + qb) + e))
                if add_from is not None:
                    p = add_from + 4 * (4 * (2 * n + h) + qb)
                    for e in (0, 2):
                        a("v_pk_add_f32 %s, %s, %s" % (v2(r + e), v2(r + e), v2(p + e)))
                    free.append(p)
                src.append(r)
            if chk:
                a(chk.pop())
                a(sto.pop())
            for r in src:
                for e in (0, 2):
                    rp = vR + (qb & ~1)
                    a("v_pk_mul_f32 %s, %s, %s op_sel:[0,%d] op_sel_hi:[1,%d]" % (v2(r + e), v2(r + e), v2(rp), qb & 1, qb & 1))
            d = src[0]
            for h in range(2):
                a("v_cvt_pk_bf16_f32 v%d, v%d, v%d" % (d + 2 * h, src[h], src[h] + 1))
                a("v_cvt_pk_bf16_f32 v%d, v%d, v%d" % (d + 2 * h + 1, src[h] + 2, src[h] + 3))
            free.append(src[1])
            dst[(i, qb)] = d
            if flagbit is not None:
                chk.append(mfma(v4(CDI), a4(aONES), v4(d), v4(CDI) if dst.keys() != {(i, qb)} else "0"))
                sto.append("buffer_store_dwordx4 %s, v%d, s[16:19], s%d offen offset:%d %s" % (v4(dst[(i, qb)]), vLane, 36 + 2 * (i >> 1) + (qb >> 1), (qb & 1) * 2048 + (i & 1) * 1024, SF + " ;@vm cs"))
    if flagbit is not None:
        a(chk.pop())
        a(sto.pop())
        a("v_cmp_lt_u32 vcc, 0x%08x, v%d" % (SPAN if 'forceslow' not in FL else 0, vC))
        a("v_cmp_class_f32 s[40:41], v%d, s64" % CDI)
        a("s_or_b64 vcc, vcc, s[40:41]")
        a("s_cmp_lg_u64 vcc, 0")
        a("s_cselect_b32 s33, %d, 0" % flagbit)
        a("s_or_b32 %s, %s, s33" % (sFlag, sFlag))
        return
    for i in ilist:
        Ls = a.newlabel("Lss")
        a("s_bitcmp1_b32 s61, %d" % i)
        a("s_cbranch_scc0 %s" % Ls)
        for qb in range(4):
            a("buffer_store_dwordx4 %s, v%d, s[16:19], s%d offen offset:%d %s" % (v4(dst[(i, qb)]), vLane, 36 + 2 * (i >> 1) + (qb >> 1), (qb & 1) * 2048 + (i & 1) * 1024, SF + " ;@vm cs"))
        a.label(Ls)


def zero_acc(a):
    for r in range(aO, aO + 48):
        a("v_accvgpr_write_b32 a%d, 0" % r)
    for r in range(OV, OV + 96):
        a("v_mov_b32 v%d, 0" % r)


def read_l(a, dst, reduce=True):
    for qb in range(4):
        a("v_accvgpr_read_b32 v%d, a%d" % (dst + qb, aL + 4 * qb))
    if SUM4 and reduce:
        for sw in ("v_permlane16_swap_b32", "v_permlane32_swap_b32"):
            for q in range(4):
                a("v_mov_b32 v%d, v%d" % (CLO + q, dst + q))
            for q in range(4):
                a("%s v%d, v%d" % (sw, dst + q, CLO + q))
            for q in range(4):
                a("v_add_f32 v%d, v%d, v%d" % (dst + q, dst + q, CLO + q))


def slow_path(a):
    frs = [v4(S1 + 4 * i) for i in range(16)]
    vM, vAl, t, u = vT, vT + 4, vT + 5, vT + 6
    a("s_waitcnt vmcnt(0)")
    P, L = qloads("s56")
    for x in P + L:
        a(x)
    zero_acc(a)
    for qb in range(4):
        a("v_mov_b32 v%d, v%d" % (vM + qb, vNEG))
    a("s_lshl_b32 s57, %s, 20" % sHead)
    a("s_lshl_b32 s58, s56, 7")
    a("s_lshl_b32 s59, s56, 1")
    a("s_add_u32 s59, s59, 2")
    Lp = a.newlabel("Lslow")
    a.label(Lp)
    for f in range(16):
        if f % 4 == 0:
            a("s_add_u32 s35, s57, %d" % (f * 1024))
        a("buffer_load_dwordx4 %s, v%d, s[12:15], s35 offen offset:%d sc1" % (frs[f], vLane, (f % 4) * 1024))
    set_mask(a, "s58")
    a("s_waitcnt vmcnt(0)")
    for kb in range(4):
        for qb in range(4):
            d = v4(S(0, kb, qb))
            for ds in range(4):
                c = d if ds else v4(CLO if kb < qb else (CDI if kb == qb else CUP))
                a(mfma(d, frs[4 * kb + ds], a4(aQ + 16 * qb + 4 * ds), c))
    a("s_nop 7")
    for f in range(16):
        if f % 4 == 0:
            a("s_add_u32 s35, s57, %d" % (16384 + f * 1024))
        a("buffer_load_dwordx4 %s, v%d, s[12:15], s35 offen offset:%d sc1" % (frs[f], vLane, (f % 4) * 1024))
    for qb in range(4):
        regs = [S(0, kb, qb) + r for kb in range(4) for r in range(4)]
        a("v_max3_f32 v%d, v%d, v%d, v%d" % (t, regs[0], regs[1], vM + qb))
        for i in range(2, 16, 2):
            a("v_max3_f32 v%d, v%d, v%d, v%d" % (t, t, regs[i], regs[i + 1]))
        a("v_mov_b32 v%d, v%d" % (u, t))
        a("v_permlane16_swap_b32 v%d, v%d" % (t, u))
        a("v_max_f32 v%d, v%d, v%d" % (t, t, u))
        a("v_mov_b32 v%d, v%d" % (u, t))
        a("v_permlane32_swap_b32 v%d, v%d" % (t, u))
        a("v_max_f32 v%d, v%d, v%d" % (t, t, u))
        a("v_sub_f32 v%d, v%d, v%d" % (vAl, vM + qb, t))
        a("v_exp_f32 v%d, v%d" % (vAl, vAl))
        a("v_mov_b32 v%d, v%d" % (vM + qb, t))
        for r in regs:
            a("v_sub_f32 v%d, v%d, v%d" % (r, r, t))
        for db in range(6):
            for e in range(4):
                r = OV + 4 * (4 * db + qb) + e
                a("v_mul_f32 v%d, v%d, v%d" % (r, r, vAl))
        for r in [aO + 4 * (4 * dd + qb) + e for dd in range(2) for e in range(4)] + [aL + 4 * qb + e for e in range(4)]:
            a("v_accvgpr_read_b32 v%d, a%d" % (u, r))
            a("v_mul_f32 v%d, v%d, v%d" % (u, u, vAl))
            a("v_accvgpr_write_b32 a%d, v%d" % (r, u))
    fl = FL.copy()
    FL.discard('noexp')
    for j in range(2):
        soft_plain(a, 0, j)
    FL.update(fl)
    a("s_waitcnt vmcnt(0)")
    for j in range(2):
        for qb in range(4):
            a(mfma(a4(aL + 4 * qb), a4(aONES), v4(S(0, 2 * j, qb)), a4(aL + 4 * qb)))
        for db in range(8):
            for qb in range(4):
                a(mfma(Oop(db, qb), frs[8 * j + db], v4(S(0, 2 * j, qb)), Oop(db, qb)))
    a("s_nop 7")
    a("s_add_u32 s57, s57, 32768")
    a("s_sub_u32 s58, s58, 64")
    a("s_sub_u32 s59, s59, 1")
    a("s_cmp_lg_u32 s59, 0")
    a("s_cbranch_scc1 %s" % Lp)
    read_l(a, CUP, False)
    finalize(a, "s56", range(4), None, [CUP + q for q in range(4)])


def dma_now(a, isV, slot):
    m0, pre, ld, post = dma(isV, slot)
    for x in [m0[0]] + pre + ld[:4] + [m0[1], "s_nop 0"] + ld[4:] + post:
        a(x)


def early_q(a):
    a("s_and_b32 %s, s2, 7" % sHead)
    a("s_lshr_b32 s33, s2, 6")
    a("s_lshl_b32 s33, s33, 3")
    a("s_add_u32 %s, %s, s33" % (sHead, sHead))
    a("s_bfe_u32 %s, s2, 0x30003" % sP)
    a("s_sub_u32 s35, 15, %s" % sP)
    a("s_cmp_lt_u32 s101, 2")
    a("s_cselect_b32 s35, %s, s35" % sP)
    a("s_lshl_b32 s33, %s, 7" % sHead)
    a("s_lshl_b32 s34, s35, 3")
    a("s_add_u32 s33, s33, s34")
    a("s_and_b32 s34, s101, 1")
    a("s_lshl_b32 s34, s34, 2")
    a("s_add_u32 s33, s33, s34")
    a("s_lshl_b32 s64, s33, 12")
    srd(a, 44, 4, 5, 16 * MB, WS_Q)


def early(a):
    a("s_mov_b32 %s, s101" % sWave)
    a("s_and_b32 %s, %s, 1" % (sU, sWave))
    a("s_lshr_b32 %s, %s, 1" % (sG, sWave))
    a("s_lshl_b32 s33, %s, 14" % sG)
    a("s_lshl_b32 s34, %s, 13" % sU)
    a("s_add_u32 %s, s33, s34" % sM0)
    a("s_lshl_b32 %s, %s, 20" % (sBase, sHead))
    a("s_add_u32 %s, %s, s34" % (sBase, sBase))
    a("s_mov_b32 %s, %s" % (sK, sBase))
    a("s_lshl_b32 s33, %s, 16" % sP)
    a("s_add_u32 s34, %s, s33" % sBase)
    a("s_add_u32 s34, s34, 65536")
    a("s_add_u32 s32, %s, %d" % (sBase, 15 * 32768))
    a("s_sub_u32 s33, s32, s33")
    a("s_add_u32 s33, s33, %d" % (15 * 32768))
    a("s_cmp_eq_u32 %s, 0" % sG)
    a("s_cselect_b32 %s, s34, s32" % sWrapK)
    a("s_cselect_b32 %s, s32, s33" % sBase)
    if SHARE:
        a("s_mov_b32 s56, %s" % sWrapK)
        a("s_mov_b32 s57, %s" % sBase)
        a("s_min_u32 s34, s34, s32")
        a("s_cmp_eq_u32 s34, s32")
        a("s_cselect_b32 s33, s33, s34")
        a("s_or_b32 s34, s34, 0x40000000")
        a("s_or_b32 s32, %s, 0x40000000" % sK)
        a("s_cmp_eq_u32 %s, 1" % sG)
        a("s_cselect_b32 %s, s32, %s" % (sK, sK))
        a("s_cselect_b32 %s, s34, %s" % (sWrapK, sWrapK))
        a("s_cselect_b32 %s, s33, %s" % (sBase, sBase))
        a("s_cselect_b32 s56, s56, -1")
        a("s_add_u32 s58, s56, 16384")
        a("s_add_u32 s59, s57, 16384")
    a("s_add_u32 %s, %s, 16384" % (sV, sK))
    a("s_add_u32 s62, %s, 16384" % sWrapK)
    a("s_add_u32 s63, %s, 16384" % sBase)
    a("s_lshl_b32 %s, %s, 7" % (sRT, sP))
    a("s_cmp_eq_u32 %s, 0" % sG)
    a("s_cselect_b32 %s, %s, 960" % (sRT, sRT))
    a("s_mov_b32 %s, 0" % sFlag)
    srd(a, 12, 4, 5, 32 * MB, WS_KV)
    srd(a, 8, 4, 5, 16 * MB, WS_Q)


def dma_units(isV, slot, tag):
    m0, pre, ld, post = dma(isV, slot)
    return [[m0[0]] + pre + [ld[0]], [ld[1]], [ld[2]], [ld[3]], [m0[1], "s_nop 0", ld[4]], [ld[5]], [ld[6]], [ld[7]], post]


def early_loads():
    P, L = qloads("s35")
    Q = []
    for x in L:
        x = x.replace("s33", "s64").replace("s[8:11]", "s[44:47]")
        if x.startswith("s_"):
            Q[-1].append(x)
        else:
            Q.append([x + " ;@vm q0"])
    return Q, dma_units(False, 2, "k0"), dma_units(False, 0, "k1") + dma_units(True, 1, "v0")


def main(a, publish_b):
    tl = TL(a, 1, 4, 'tl' in FL)
    tl.early()
    srd(a, 16, 4, 5, 16 * MB, WS_CTX)
    srd(a, 52, 4, 5, FLG_END, WS_XCH)
    a("s_mov_b32 s46, %d\ns_mov_b32 s47, 0x00020000\ns_mov_b32 s50, %d\ns_mov_b32 s51, 0x00020000" % (8 * MB, 2 * MB))
    a("s_lshl_b32 s33, %s, 14" % sG)
    a("v_add_u32 v%d, %s, v%d" % (vRd, "0" if SHARE else "s33", vLane))
    a("v_add_u32 v%d, 0x10000, v%d" % (vRd + 1, vRd))
    a("v_mov_b32 v%d, v%d" % (vRdV, vRd))
    a("v_mov_b32 v%d, v%d" % (vRdV + 1, vRd + 1))
    a("v_and_b32 v%d, 15, v0" % vT)
    a("v_bfe_u32 v%d, v0, 4, 2" % (vT + 1))
    a("v_lshlrev_b32 v%d, 2, v%d" % (vT + 1, vT + 1))
    a("v_sub_u32 v%d, v%d, v%d" % (vT, vT, vT + 1))
    a("v_mov_b32 v%d, 0xf149f2ca" % vNEG)
    for r in range(4):
        a("v_cmp_gt_i32 vcc, %d, v%d" % (r, vT))
        a("v_cndmask_b32 v%d, 0, v%d, vcc" % (TRI + r, vNEG))
    a("v_mov_b32 v%d, 0x3f803f80" % vT)
    for i in range(4):
        a("v_accvgpr_write_b32 a%d, v%d" % (aONES + i, vT))
    set_mask(a, sRT)
    a("v_mov_b32 v%d, 0" % (vT + 4))
    a("v_mov_b32 v%d, 1" % (vT + 5))
    a("s_barrier")
    tl.stamp(1, vT + 2, sWave)
    for f in range(2 * LEAD):
        a(rd(f, 1))
    phase(a, qk_mfmas(0, True), 0, 1, 0, 0, None, None, None, "kv0,kv1" if BAR1 else "kv0", QK_NEED)
    publish_b(vT + 4, vT + 5)
    if not BAR1:
        dma_now(a, False, 2)
    soft_plain(a, 0, 0)
    a("s_cmp_eq_u32 %s, 1" % sG)
    a("s_cbranch_scc1 Lk2_g1 ;@keep")
    a("s_mov_b32 %s, %s" % (sCnt, sP))
    a("s_cmp_eq_u32 %s, 0" % sP)
    a("s_cbranch_scc1 Lk2_m2 ;@keep")
    a.label("Lk2_l1", keep=True)
    body(a, 0)
    a("s_sub_u32 %s, %s, 1" % (sCnt, sCnt))
    a("s_cmp_eq_u32 %s, 0" % sCnt)
    a("s_cbranch_scc1 Lk2_m1 ;@keep")
    body(a, 1)
    a("s_branch Lk2_l1 ;@keep")
    P, QL = qloads("s35", aQ2)

    def q2():
        a("s_sub_u32 s35, 15, %s" % sP)
        for x in P + QL:
            a(x + (" ;@vm q2" if x.startswith("buffer") else ""))
    if SKIP:
        a.label("Lk2_m1", keep=True)
        a("s_cmp_eq_u32 %s, 1" % sU)
        a("s_cbranch_scc1 Lk2_m1b ;@keep")
        body(a, 1, tq='T')
        a.label("Lk2_m2a", keep=True)
        q2()
        body(a, 0, tq='Z', tp='T')
        a(";@waitvm q2")
        body(a, 1, q=aQ2, tp='Z')
        a("s_branch Lk2_ea ;@keep")
        a.label("Lk2_m2", keep=True)
        a(PEND)
        a("s_cmp_eq_u32 %s, 0" % sU)
        a("s_cbranch_scc1 Lk2_m2a ;@keep")
        a("s_branch Lk2_m2b ;@keep")
        a.label("Lk2_m1b", keep=True)
        a(PEND)
        body(a, 1)
        a.label("Lk2_m2b", keep=True)
        q2()
        body(a, 0, tq='T')
        a(";@waitvm q2")
        body(a, 1, q=aQ2, tp='T')
        a.label("Lk2_ea", keep=True)
    else:
        a.label("Lk2_m1", keep=True)
        body(a, 1, masked="0")
        a.label("Lk2_m2", keep=True)
        q2()
        body(a, 0, masked="-64")
        a(";@waitvm q2")
        body(a, 1, q=aQ2)
    tl.stamp(4, vT + 2, sWave)
    read_l(a, CUP)
    finalize(a, sP, range(4), 1, [CUP + q for q in range(4)])
    tl.stamp(5, vT + 2, sWave)
    a(PEND)
    a("s_sub_u32 %s, 7, %s" % (sCnt, sP))
    a("s_cmp_lg_u32 %s, 0" % sCnt)
    a("s_cbranch_scc1 Lk2_b0 ;@keep")
    fin(a, True, 0, 0)
    a("s_branch Lk2_merge")
    a.label("Lk2_b0", keep=True)
    a(PEND)
    body(a, 0, q=aQ2, first=True)
    a("s_branch Lk2_l2b ;@keep")
    a.label("Lk2_l2", keep=True)
    body(a, 0, q=aQ2)
    a.label("Lk2_l2b", keep=True)
    body(a, 1, q=aQ2)
    a("s_sub_u32 %s, %s, 1" % (sCnt, sCnt))
    a("s_cmp_lg_u32 %s, 0" % sCnt)
    a("s_cbranch_scc1 Lk2_l2 ;@keep")
    fin(a, False, 0, 1)
    a.label("Lk2_merge")
    tl.stamp(2, vT + 2, sWave)
    merge(a, 0)
    a("s_branch Lk2_chk")
    if 'k2nowarm' not in FL:
        a.label("Lk2_wm")
        a("s_lshl_b32 s33, s2, 1")
        a("s_add_u32 s33, s33, %s" % sU)
        a("s_lshl_b32 s34, s33, 12")
        a("s_lshl_b32 s33, s33, 14")
        a("v_lshlrev_b32 v%d, 3, v%d" % (vT, vLane))
        a("v_lshlrev_b32 v%d, 2, v%d" % (vT + 1, vLane))
        a("buffer_load_dword a244, v%d, s[44:47], s33 offen ;@cond" % vT)
        a("s_add_u32 s33, s33, 8192")
        a("buffer_load_dword a245, v%d, s[44:47], s33 offen ;@cond" % vT)
        a("buffer_load_dword a246, v%d, s[48:51], s34 offen ;@cond" % (vT + 1))
        a("s_branch Lk2_l3b")
    a.label("Lk2_g1", keep=True)
    a(PEND)
    tl.stamp(20)
    a(PEND)
    a("s_mov_b32 %s, 7" % sCnt)
    a("s_bfe_u32 s65, s2, 0x20003")
    a("s_add_u32 s65, s65, 2")
    if SHARE:
        a("s_lshl_b32 %s, %s, 1" % (sD, sP))
        a("s_min_u32 %s, %s, 13" % (sD, sD))
        a("s_add_u32 %s, %s, 2" % (sD, sD))
        for y in kflip(1):
            a(y)
        a("s_sub_u32 %s, %s, 1" % (sD, sD))
    a.label("Lk2_l3", keep=True)
    if 'k2nowarm' not in FL:
        a("s_cmp_eq_u32 %s, s65" % sCnt)
        a("s_cbranch_scc1 Lk2_wm ;@keep")
        a.label("Lk2_l3b", keep=True)
    body(a, 0, g1=True)
    body(a, 1, g1=True)
    a("s_sub_u32 %s, %s, 1" % (sCnt, sCnt))
    a("s_cmp_lg_u32 %s, 0" % sCnt)
    a("s_cbranch_scc1 Lk2_l3 ;@keep")
    tl.stamp(21)
    if SKIP:
        a("s_cmp_eq_u32 %s, 1" % sU)
        a("s_cbranch_scc1 Lk2_g1b ;@keep")
        body(a, 0, g1=True, tq='T')
        body(a, 1, g1=True, tq='Z', tp='T')
        fin(a, False, 1, 3, 'Z')
        a("s_branch Lk2_mg1")
        a.label("Lk2_g1b", keep=True)
        a(PEND)
        body(a, 0, g1=True)
        body(a, 1, g1=True, tq='T')
        fin(a, False, 1, 2, 'T')
        a.label("Lk2_mg1")
    else:
        body(a, 0, masked="0", g1=True)
        body(a, 1, masked="-64", g1=True)
        tl.stamp(22)
        fin(a, False, 1, 2)
    tl.stamp(2, vT + 2, sWave)
    merge(a, 1)
    a.label("Lk2_chk")
    a("s_cmp_eq_u32 %s, 0" % sFlag)
    a("s_cbranch_scc1 Lk2_done")
    a("s_sub_u32 s56, 15, %s" % sP)
    a("s_lshl_b32 s33, %s, 1" % sG)
    a("s_lshl_b32 s61, 3, s33")
    a("s_and_b32 s34, %s, 2" % sFlag)
    a("s_bitcmp1_b32 %s, 0" % sFlag)
    a("s_cselect_b32 s56, %s, s56" % sP)
    a("s_cselect_b32 s61, 15, s61")
    a("s_cselect_b32 %s, s34, 0" % sFlag)
    slow_path(a)
    a("s_branch Lk2_chk")
    a.label("Lk2_done")
    tl.stamp(6, vT + 2, sWave)
    tl.dump(vT + 2, sWave, envi("TLW", 0))
    a("s_lshl_b32 s33, %s, 4" % sHead)
    a("s_add_u32 s33, s33, %d" % FLG_T)
    a("s_sub_u32 s34, 15, %s" % sP)
    a("s_lshl_b32 s34, s34, 9")
    a("s_add_u32 s92, s33, s34")
    a("s_lshl_b32 s34, %s, 2" % sWave)
    a("s_add_u32 s92, s92, s34")
    a("s_lshl_b32 s34, %s, 9" % sP)
    a("s_add_u32 s93, s33, s34")
    a("s_lshl_b32 s34, %s, 3" % sU)
    a("s_add_u32 s93, s93, s34")
    a("s_cmp_eq_u32 %s, 0" % sG)
    a("s_cselect_b32 s93, s93, s92")
    a("s_cselect_b32 s94, 4, 0")
    a("s_add_u32 s94, s94, s93")

    def publish(vZ, vOne):
        a("s_mov_b64 exec, 1")
        for so in ("s92", "s93", "s94"):
            a("buffer_store_dword v%d, v%d, %s, %s offen sc1" % (vOne, vZ, k3.FS, so))
        a("s_mov_b64 exec, -1")
    tl3 = TL(a, 2, 4, 'tl' in FL)
    tl3.early()
    k3.main(a, tl3, publish)
```

```python
from asmlib import Asm, Col, srd, v4, v2
from common import *

vLane, vWdA, vWdB, vWrA, vWrB = 1, 2, 6, 8, 24
ACCA, WF = 32, 160
aB, aW1, aX = 0, 32, 96
NX = 5
vT = 232
RCV = PAY = 192
NS = 8
D = 3
NE = 2
T0 = 1
N1 = envi("K3N1", 7)
NAS = 16
TA, TB, TE = T0 + N1, T0 + N1 + NAS, T0 + 16 + NAS
sWave, sXa, sWo, sCnt = "s101", "s25", "s26", "s28"
sMA, sNA, sMB, sNB = "s29", "s30", "s21", "s22"
SF = os.environ.get("K3SF", "")
XS, WS_, FS = "s[44:47]", "s[48:51]", "s[52:55]"


def isA(t):
    return TA <= t < TB


def a4(b):
    return "a[%d:%d]" % (b, b + 3)


def mfma(d, a_, b_, c):
    return "v_mfma_f32_16x16x32_bf16 %s, %s, %s, %s" % (d, a_, b_, c)


def xf(t, mi, ks):
    return a4(aX + 32 * ((t + 3 - T0) % NX) + 8 * mi + 4 * ks)


def wreg(t, ni, ks, n):
    r = 8 * ni + 4 * ks
    return ("a[%d:%d]" % (aW1 + r, aW1 + r + n - 1)) if t % 2 else ("v[%d:%d]" % (WF + r, WF + r + n - 1))


def loads(t, wd=vWdB):
    tag = " ;@vm s%d" % (t % NS)
    if isA(t):
        U = [(["s_add_u32 m0, s41, %d" % ((t % NS) * 16384)] if j == 0 else []) +
             ["buffer_load_dwordx4 v%d, %s, %s offen offset:%d lds%s" % (vWdA + j, WS_, sWo, j * 1024, tag)] for j in range(4)]
    else:
        U = [(["s_add_u32 m0, s42, %d" % ((t % NS) * 16384)] if j == 0 else []) +
             ["buffer_load_dwordx4 v%d, %s, %s offen offset:%d lds%s" % (wd + j, WS_, sWo, j * 1024, tag)] for j in range(2)]
    U += [["buffer_load_dwordx4 %s, v%d, %s, %s offen offset:%d sc1%s" % (xf(t, j >> 1, j & 1), vLane, XS, sXa, j * 1024, tag)] for j in range(4)]
    if isA(t):
        U += [(["s_add_u32 s63, %s, 4096" % sXa] if j == 4 else []) +
              ["buffer_load_dwordx4 %s, v%d, %s, s63 offen offset:%d sc1%s" % (xf(t, j >> 1, j & 1), vLane, XS, (j - 4) * 1024, tag)] for j in range(4, 8)]
    if isA(t):
        U.append(["s_sub_u32 s39, s39, 1", "s_cmp_eq_u32 s39, 0", "s_cselect_b32 s3, s64, s65"])
        U.append(["s_add_u32 %s, %s, s3" % (sXa, sXa), "s_lshl_b32 s3, s3, 3", "s_add_u32 %s, %s, s3" % (sWo, sWo)])
    else:
        U.append(["s_add_u32 %s, %s, 16384" % (sXa, sXa), "s_add_u32 %s, %s, %d" % (sWo, sWo, 64 * 2048)])
    return U


TO_A = ["s_mov_b32 s32, %s" % sXa, "s_mov_b32 s33, %s" % sWo, "s_mov_b64 s[34:35], s[44:45]", "s_mov_b64 s[36:37], s[48:49]",
        "s_mov_b64 s[44:45], s[8:9]", "s_mov_b32 s46, %d" % (16 * MB), "s_mov_b64 s[48:49], s[10:11]", "s_mov_b32 s50, %d" % (8 * MB),
        "s_mov_b32 %s, s12" % sXa, "s_mov_b32 %s, s13" % sWo]
TO_B = ["s_mov_b64 s[44:45], s[34:35]", "s_mov_b32 s46, %d" % (4 * MB), "s_mov_b64 s[48:49], s[36:37]", "s_mov_b32 s50, %d" % (2 * MB),
        "s_mov_b32 %s, s32" % sXa, "s_mov_b32 %s, s33" % sWo]


def half(r, j):
    b = int(r[2:r.index(":")]) + 2 * j
    return "%s[%d:%d]" % (r[0], b, b + 1)


def reads(t):
    L = []
    sl = t % NS
    A = isA(t)
    for ni in range(8 if A else 4):
        for ks in range(2):
            for j in range(2):
                base = (vWrA + 8 * (sl >> 2) if A else vWrB + 4 * (sl >> 2)) + ni
                L.append("ds_read_b64_tr_b16 %s, v%d offset:%d" % (half(wreg(t, ni, ks, 4), j), base, (sl & 3) * 16384 + (ks * 32 + j * 16) * (256 if A else 128)))
    return L


def step(a, t, vm=None, tags="", post_bar=None, mem=None, at=None):
    A = isA(t)
    NI = 8 if A else 4
    M = []
    for mi in range(4 if A else 2):
        for ni in range(NI):
            d = v4(ACCA + 32 * mi + 4 * ni) if A else a4(aB + 16 * mi + 4 * ni)
            for n, ks in enumerate((0, 1) if ni % 2 == 0 else (1, 0)):
                M.append(mfma(d, wreg(t, ni, ks, 4), xf(t, mi, ks), "0" if (t in (T0, TA) and n == 0) else d))
    n = len(M)
    G = [[] for _ in range(n)]
    if t + 1 < TE:
        HB = envi("K3HB", 0)
        lo, hi = (TA, TB - 2) if HB == 1 else ((T0 + 2, TE - 2) if HB == 2 else (0, 0))
        if lo <= t < hi and (t - TA) % 2 == 1 and not tags and not post_bar:
            a("s_waitcnt lgkmcnt(0)")
        else:
            two = lo <= t + 1 < hi and (t + 1 - TA) % 2 == 1
            a(";@waitvm s%d%s lgkmcnt(0)" % ((t + (2 if two else 1)) % NS, tags))
            a("s_barrier ;@keep")
        if post_bar:
            post_bar()
        R = reads(t + 1)
        U = loads(t + 1 + D) if t + 1 + D < TE else []
        if t + 1 + D == TA:
            U[0] = TO_A + U[0]
        if t + 1 + D == TB:
            U[0] = TO_B + U[0]
        U = U + (mem or [])
        nr = len(R) // 2
        slots = [R[2 * i:2 * i + 2] for i in range(nr)]
        order = []
        for i in range(max(nr, len(U))):
            if i < len(U):
                order.append(U[i])
            if i < nr:
                order.append(slots[i])
        for i, u in enumerate(order):
            G[(i * (n - 2)) // len(order)] += u
    else:
        a("s_waitcnt lgkmcnt(0)")
    for g, u in (at or {}).items():
        G[g] += u
    for i in range(n):
        a(M[i])
        for y in G[i]:
            a(y)


def epilogue(a, isB, T):
    a("v_bfe_u32 v%d, v0, 4, 1" % T)
    a("v_lshrrev_b32 v%d, 5, v0" % (T + 1))
    a("v_lshl_or_b32 v%d, v%d, 1, v%d" % (T, T, T + 1))
    a("v_and_b32 v%d, 15, v0" % (T + 1))
    a("v_lshlrev_b32 v%d, %d, v%d" % (T + 1, 13 if isB else 12, T + 1))
    a("v_lshl_add_u32 v%d, v%d, 4, v%d" % (T, T, T + 1))
    if isB:
        a("s_and_b32 s3, %s, 1" % sWave)
        a("s_lshl_b32 s3, s3, 6")
        a("s_lshr_b32 s6, %s, 1" % sWave)
        a("s_add_u32 s3, s3, s6")
    else:
        a("s_lshl_b32 s3, %s, 6" % sWave)
    a("s_add_u32 s3, s3, %s" % (sMB if isB else sMA))
    a("s_lshl_b32 s3, s3, 12")
    a("s_lshl_b32 s6, %s, 1" % (sNB if isB else sNA))
    a("s_add_u32 s3, s3, s6")
    if isB:
        a("s_add_u32 s3, s3, 2048")
    else:
        a("s_mov_b32 s6, 0x00003f80")
        a("s_mov_b32 s7, 0x3f800000")
    for k in range(4):
        u = T + 4 + 4 * (k & 1)
        if isB:
            r = T + 12
            for e in range(8):
                a("v_accvgpr_read_b32 v%d, a%d" % (r + e, aB + 8 * k + e))
        else:
            r = ACCA + 32 * k
            for pn in range(3):
                for e in range(4):
                    src = PAY + 16 * pn + 4 * k + e
                    a("v_dot2_f32_bf16 v%d, v%d, s6, v%d" % (r + 2 * e, src, r + 2 * e))
                    a("v_dot2_f32_bf16 v%d, v%d, s7, v%d" % (r + 2 * e + 1, src, r + 2 * e + 1))
        a("v_cvt_pk_bf16_f32 v%d, v%d, v%d" % (u, r, r + 1))
        a("v_cvt_pk_bf16_f32 v%d, v%d, v%d" % (u + 1, r + 2, r + 3))
        a("v_cvt_pk_bf16_f32 v%d, v%d, v%d" % (u + 2, r + 4, r + 5))
        a("v_cvt_pk_bf16_f32 v%d, v%d, v%d" % (u + 3, r + 6, r + 7))
        a("v_permlane16_swap_b32 v%d, v%d" % (u, u + 2))
        a("v_permlane16_swap_b32 v%d, v%d" % (u + 1, u + 3))
        a("buffer_store_dwordx4 %s, v%d, s[16:19], s3 offen offset:%d %s" % (v4(u), T, (k & 1) * 64 if isB else 0, SF))
        if (k == 1 if isB else k < 3):
            a("s_add_u32 s3, s3, %d" % ((32 if isB else 16) * 4096))


def wdB(a, dst, T):
    a("s_lshl_b32 s3, %s, 4" % sWave)
    a("v_lshrrev_b32 v%d, 3, v0" % T)
    a("v_and_b32 v%d, 6, v%d" % (T + 1, T))
    a("v_and_b32 v%d, 7, v0" % (T + 2))
    a("v_xor_b32 v%d, v%d, v%d" % (T + 1, T + 1, T + 2))
    a("v_add_u32 v%d, s3, v%d" % (T, T))
    a("v_lshlrev_b32 v%d, 11, v%d" % (T, T))
    a("v_lshl_add_u32 v%d, v%d, 4, v%d" % (dst, T + 1, T))
    a("v_add_u32 v%d, %d, v%d" % (dst + 1, 8 * 2048 - 1024, dst))


def spin(a, name, back, vdst, vaddr, soff, allones):
    a.label(name)
    a("s_add_u32 s61, s61, 1")
    a("s_cmp_gt_u32 s61, %d" % envi("SPINMAX", 0x100000))
    a("s_cbranch_scc1 %s" % back)
    a("s_sleep 2")
    a("buffer_load_dword v%d, v%d, %s, %s offen sc1" % (vdst, vaddr, FS, soff))
    a("s_waitcnt vmcnt(0)")
    a("v_cmp_ne_u32 vcc, 1, v%d" % vdst)
    a("s_cbranch_vccnz %s" % name)
    a("s_branch %s" % back)


def poll_b(a):
    a("s_and_b32 s3, s2, 3")
    a("s_lshl_b32 s3, s3, 2")
    a("s_bfe_u32 s27, s2, 0x20003")
    a("s_add_u32 s27, s3, s27")
    a("s_lshl_b32 s43, s27, 8")
    a("s_add_u32 s43, s43, %d" % FLG_B)
    a("v_lshlrev_b32 v15, 2, v0")
    a("buffer_load_dword v7, v15, %s, s43 offen sc1 ;@vm pb" % FS)


def early(T, g):
    a = Col()
    a("s_mov_b32 s61, 0")
    a("s_bfe_u32 s3, s2, 0x10002")
    a("s_lshl_b32 s3, s3, 3")
    a("s_lshr_b32 s28, s2, 5")
    a("s_add_u32 s28, s3, s28")
    a("s_lshl_b32 %s, s27, 18" % sXa)
    a("s_lshl_b32 s3, %s, 12" % sWave)
    a("s_add_u32 %s, %s, s3" % (sXa, sXa))
    a("s_lshl_b32 %s, s28, 7" % sWo)
    a("s_lshl_b32 s42, %s, 11" % sWave)
    srd(a, 44, 4, 5, 4 * MB, WS_OB)
    a("s_mov_b32 s50, %d\ns_mov_b32 s51, 0x00020000" % (2 * MB))
    wdB(a, T + 3, T)
    post = [["v_cmp_ne_u32 vcc, 1, v7", "s_cbranch_vccnz Lk3_spinb%d ;@keep" % g, "Lk3_gotb%d: ;@keep" % g]]
    for st in range(T0, T0 + NE):
        for u in loads(st, T + 3):
            post.append(u)
    return a.atoms(1), post


def main(a, tl, publish):
    T = vT
    a("s_load_dwordx2 s[10:11], s[0:1], 40")
    a("s_load_dwordx2 s[14:15], s[0:1], 72")
    a("s_lshl_b32 %s, s27, 7" % sMB)
    a("s_lshl_b32 %s, s28, 6" % sNB)
    wdB(a, vWdB, T)
    for st in range(T0 + NE, T0 + D + 1):
        for u in loads(st):
            for x in u:
                a(x)
    a("v_lshrrev_b32 v%d, 2, v0" % T)
    a("v_and_b32 v%d, 1, v0" % (T + 2))
    a("v_bfe_u32 v%d, v0, 1, 1" % (T + 5))
    a("v_lshlrev_b32 v%d, 7, v%d" % (T + 1, T))
    a("v_lshl_add_u32 v%d, v%d, 3, v%d" % (T + 1, T + 2, T + 1))
    a("v_and_b32 v%d, 6, v%d" % (T + 4, T))
    for ni in range(4):
        a("v_add_u32 v%d, %d, v%d" % (T + 3, 2 * ni, T + 5))
        a("v_xor_b32 v%d, v%d, v%d" % (T + 3, T + 3, T + 4))
        a("v_lshl_add_u32 v%d, v%d, 4, v%d" % (vWrB + ni, T + 3, T + 1))
        a("v_add_u32 v%d, 0x10000, v%d" % (vWrB + 4 + ni, vWrB + ni))
    a(";@waitvm s%d" % (T0 % NS))
    a("s_barrier")
    tl.stamp(1)
    for x in reads(T0):
        a(x)
    a("s_and_b32 s40, s2, 3")
    a("s_bfe_u32 s36, s2, 0x30003")
    a("s_lshl_b32 %s, s36, 8" % sMA)
    a("s_bfe_u32 s3, s2, 0x10002")
    a("s_lshl_b32 s3, s3, 2")
    a("s_lshr_b32 s37, s2, 6")
    a("s_add_u32 s3, s3, s37")
    a("s_lshl_b32 s13, s3, 8")
    a("s_lshl_b32 %s, s3, 7" % sNA)
    a("s_lshl_b32 s3, s40, 5")
    a("s_add_u32 %s, %s, s3" % (sNA, sNA))
    a("s_lshl_b32 s41, %s, 12" % sWave)
    a("s_lshl_b32 s12, s36, 21")
    a("s_lshr_b32 s3, %s, 1" % sWave)
    a("s_lshl_b32 s3, s3, 20")
    a("s_add_u32 s12, s12, s3")
    a("s_and_b32 s3, %s, 1" % sWave)
    a("s_lshl_b32 s3, s3, 13")
    a("s_add_u32 s12, s12, s3")
    a("s_lshl_b32 s62, s36, 10")
    a("s_lshl_b32 s3, s40, 7")
    a("s_add_u32 s62, s62, s3")
    a("s_add_u32 s62, s62, %d" % FLG_T)
    a("s_bfe_u32 s3, s2, 0x10002")
    a("s_lshl_b32 s3, s3, 3")
    a("s_sub_u32 s39, 16, s3")
    a("s_lshl_b32 s38, s40, 4")
    a("s_add_u32 s3, s3, s38")
    a("s_lshl_b32 s3, s3, 14")
    a("s_add_u32 s12, s12, s3")
    a("s_lshl_b32 s3, s3, 3")
    a("s_add_u32 s13, s13, s3")
    a("s_mov_b32 s64, %d" % ((16384 - 16 * 16384) & 0xffffffff))
    a("s_mov_b32 s65, 16384")
    a("s_add_u32 s8, s4, %d" % WS_CTX)
    a("s_addc_u32 s9, s5, 0")
    a("s_lshl_b32 s56, s2, 16")
    a("s_lshl_b32 s38, %s, 14" % sWave)
    a("s_add_u32 s56, s56, s38")
    a("s_lshl_b32 s58, s2, 4")
    a("s_lshl_b32 s38, %s, 2" % sWave)
    a("s_add_u32 s58, s58, s38")
    a("s_add_u32 s58, s58, %d" % FLG)
    a("s_and_b32 s59, s58, 0xffffffcf")
    a("s_mov_b32 s61, 0")
    U = T + 8
    a("s_lshl_b32 s3, %s, 4" % sWave)
    a("v_lshrrev_b32 v%d, 4, v0" % U)
    a("v_and_b32 v%d, 15, v0" % (U + 2))
    for j in range(4):
        a("v_add_u32 v%d, %d, v%d" % (U + 1, 4 * (j & 1), U))
        a("v_lshlrev_b32 v%d, 1, v%d" % (U + 1, U + 1))
        a("v_xor_b32 v%d, v%d, v%d" % (U + 1, U + 1, U + 2))
        a("v_add_u32 v%d, s3, v%d" % (U + 3, U))
        a("v_lshlrev_b32 v%d, 11, v%d" % (U + 3, U + 3))
        a("v_lshl_add_u32 v%d, v%d, 4, v%d" % (U + 3, U + 1, U + 3))
        a("v_add_u32 v%d, %d, v%d" % (vWdA + j, 4 * j * 2048 - j * 1024, U + 3))
    a("v_lshlrev_b32 v%d, 8, v%d" % (T + 1, T))
    a("v_lshl_add_u32 v%d, v%d, 3, v%d" % (T + 1, T + 2, T + 1))
    a("v_and_b32 v%d, 7, v%d" % (T + 4, T))
    a("v_lshlrev_b32 v%d, 1, v%d" % (T + 4, T + 4))
    a("s_lshl_b32 s38, s40, 2")
    a("v_xor_b32 v%d, s38, v%d" % (T + 4, T + 4))
    for ni in range(8):
        a("v_add_u32 v%d, %d, v%d" % (T + 3, 2 * ni, T + 5))
        a("v_xor_b32 v%d, v%d, v%d" % (T + 3, T + 3, T + 4))
        a("v_lshl_add_u32 v%d, v%d, 4, v%d" % (vWrA + ni, T + 3, T + 1))
        a("v_add_u32 v%d, 0x10000, v%d" % (vWrA + 8 + ni, vWrA + ni))
    vP, vZ, vO1, vL4 = 252, 253, 254, 255
    a("v_mov_b32 v%d, 0" % vZ)
    a("v_mov_b32 v%d, 1" % vO1)
    a("v_and_b32 v%d, 31, v0" % vL4)
    a("v_lshlrev_b32 v%d, 2, v%d" % (vL4, vL4))
    a("v_lshrrev_b32 v%d, 5, v0" % vP)
    a("v_lshl_add_u32 v%d, v%d, 9, v%d" % (vL4, vP, vL4))
    a("s_waitcnt lgkmcnt(0)")
    srd(a, 16, 14, 15, 8 * MB)
    vF = vWrA

    def send(mi, pn):
        r = ACCA + 32 * mi + 8 * pn
        return (["v_cvt_pk_bf16_f32 v%d, v%d, v%d" % (r + e, r + 2 * e, r + 2 * e + 1) for e in range(4)],
                ["s_add_u32 s60, s56, %d" % (pn * 4096),
                 "buffer_store_dwordx4 %s, v%d, %s, s60 offen offset:%d sc1 ;@vm xs" % (v4(r), vLane, FS, mi * 1024)])

    def flag():
        a(";@waitvm xs")
        a("s_mov_b64 exec, 1")
        a("buffer_store_dword v%d, v%d, %s, s58 offen sc1" % (vO1, vZ, FS))
        a("s_mov_b64 exec, -1")

    def check(reg, name):
        def f():
            a(";@waitvm " + name)
            a("v_cmp_ne_u32 vcc, 1, v%d" % reg)
            a("s_cbranch_vccnz Lk3_spin%s ;@keep" % name)
            a.label("Lk3_got%s" % name, keep=True)
        return f

    def recv(pn):
        return [(["s_xor_b32 s60, s56, %d" % (pn << 16), "s_add_u32 s60, s60, %d" % (pn * 4096)] if mi == 0 else []) +
                ["buffer_load_dwordx4 %s, v%d, %s, s60 offen offset:%d sc1 ;@vm pay" % (v4(RCV + 16 * (pn - 1) + 4 * mi), vLane, FS, mi * 1024)] for mi in range(4)]
    TC = TA - 1 - D
    TPUB = T0 + envi("K3PUB", 0)
    TF, TP = TB + envi("K3TF", 1), TE - envi("K3TP", 2)
    assert TF < TP - 1
    t = T0
    while t < TE:
        a(";@wtphase %d" % (7 if t < TA else (8 if t < TB else 9)))
        if t == TA:
            tl.stamp(5)
        if t == TB:
            tl.stamp(2)
        kw = {}
        if t == TPUB:
            kw['post_bar'] = lambda: (a(";@waitvm cs"), publish(vZ, vO1))
        if t == TC - 1:
            kw['mem'] = [["buffer_load_dword v%d, v%d, %s, s62 offen sc1 ;@vm ft" % (vP, vL4, FS)]]
        if t == TC:
            kw['post_bar'] = check(vP, "ft")
        if t == TB - 1:
            kw['at'] = {}
            for mi in range(3):
                for pn in range(1, 4):
                    c, st = send(mi, pn)
                    g = 16 * (mi + 1) + 5 * pn - 3
                    kw['at'][g] = c[:2]
                    kw['at'][g + 1] = c[2:]
                    kw['at'][g + 3] = st
        if t == TB:
            kw['mem'] = [send(3, pn)[0] + send(3, pn)[1] for pn in range(1, 4)] + \
                [["v_and_b32 v%d, 3, v0" % (vF + 3), "v_lshlrev_b32 v%d, 4, v%d" % (vF + 3, vF + 3)]]
        if t == TF:
            kw['post_bar'] = flag
        if t == TP - 1:
            kw['mem'] = [["buffer_load_dword v%d, v%d, %s, s59 offen sc1 ;@vm fl" % (vF, vF + 3, FS)]]
        if t == TP:
            kw['post_bar'] = check(vF, "fl")
            kw['mem'] = recv(1) + recv(2) + recv(3)
        step(a, t, **kw)
        tl.stamp(100 + t)
        t += 1
    assert TPUB < TC
    tl.stamp(4)
    epilogue(a, True, vWrA)
    epilogue(a, False, vWrA)
    if tl.on:
        a("s_waitcnt vmcnt(0)")
    tl.stamp(3)
    tl.dump(vWrA, sWave)
    a("s_endpgm")
    for g in range(3 if 'noskip' in FL else 4):
        a.label("Lk3_spinb%d" % g)
        spin(a, "Lk3_spinb%d_" % g, "Lk3_gotb%d" % g, 7, 15, "s43", True)
    spin(a, "Lk3_spinft", "Lk3_gotft", vP, vL4, "s62", True)
    spin(a, "Lk3_spinfl", "Lk3_gotfl", vF, vF + 3, "s59", False)
```

```python
import os
import sys
HERE = os.path.dirname(os.path.abspath(__file__))
sys.path.insert(0, HERE)
from common import *

NAME = "concat_heads__compressed_kv_cla__sliding_local_dilated__prompt"
HEADER = """; Kernarg layout for this problem (96 bytes, ptrs only, base s[0:1]):
"""


def kdesc(name, nv, ns=102, acc=None):
    if acc is None:
        acc = (nv + 3) // 4 * 4
    return """.p2align 6
.amdhsa_kernel %s
  .amdhsa_next_free_vgpr %d
  .amdhsa_next_free_sgpr %d
  .amdhsa_accum_offset %d
  .amdhsa_group_segment_fixed_size 0
  .amdhsa_kernarg_size 96
  .amdhsa_user_sgpr_count 2
  .amdhsa_user_sgpr_kernarg_segment_ptr 1
  .amdhsa_system_sgpr_workgroup_id_x 1
.end_amdhsa_kernel
""" % (name, nv, ns, acc)


def kstart(name):
    return ".globl %s\n.p2align 8\n.type %s,@function\n%s:\n" % (name, name, name)


def main():
    import k1
    t, nv, acc, blk, lds = k1.gen()
    n = NAME + "_kernel"
    out = HEADER
    out += "; @launch grid=(256,1,1) block=(%d,1,1) lds=%d\n" % (blk, lds)
    out += '.amdgcn_target "amdgcn-amd-amdhsa--gfx950"\n.text\n'
    out += ".macro M d, a, b, c\nv_mfma_f32_16x16x32_bf16 \\d, \\a, \\b, \\c\n.endm\n"
    t = "\n".join(x.strip().replace("v_mfma_f32_16x16x32_bf16", "M") for x in t.split("\n"))
    out += kstart(n) + t
    out += '.section .rodata,"a"\n'
    out += kdesc(n, nv, acc=acc)
    dst = os.path.join(HERE, "..", NAME + ".s")
    if len(sys.argv) > 1:
        dst = sys.argv[1]
    open(dst, "w").write(out)


if __name__ == "__main__":
    main()
```

```python
import math
from asmlib import Asm, Col, srd, v4, v2, f32bits
from common import *
import k2

vLane, vXd, vWd, vXr, vWr, vPF, vPFd, vT = 1, 2, 6, 10, 12, 20, 21, 24
ACC = 32
aACC7, aW, aX, aHOLD = 0, 32, 160, 192
sWave, sWm, sWn, sXo, sWo, sXend, sXre, sWend, sWre, sM0, sCnt, sLdx64, sM, sN = (
    "s20", "s21", "s22", "s23", "s24", "s25", "s26", "s27", "s28", "s29", "s30", "s31", "s52", "s53")
sPo, sPst, sPend, sPre = "s54", "s55", "s56", "s57"
XB, WB, SPARE = 0, 65536, 131072
SF = os.environ.get("K1SF", "sc1")
NSPS = envi("NSPS", 4)
NEARLY = envi("NEARLY", 14)
TARR = envi("TARR", 6)
PFD = envi("PFD", 4)


def a4(b):
    return "a[%d:%d]" % (b, b + 3)


def a2(b):
    return "a[%d:%d]" % (b, b + 1)


def acc(mi, ni):
    return v4(ACC + 4 * (8 * mi + ni)) if mi < 7 else a4(aACC7 + 4 * ni)


def wfr(buf, ni, hs):
    return aW + 64 * buf + 8 * ni + 4 * hs


def xfr(row, hs):
    return aX + 8 * (row % 4) + 4 * hs


def mfma(d, a_, b_, c):
    return "v_mfma_f32_16x16x32_bf16 %s, %s, %s, %s" % (d, a_, b_, c)


def xread(s, row):
    off = XB + s * 32768 + (row >> 2) * 16384 + (row & 3) * 2048
    return ["ds_read_b128 %s, v%d offset:%d" % (a4(xfr(row, hs)), vXr + hs, off) for hs in range(2)]


def wread(s, hs):
    L = []
    for ni in range(8):
        for j in range(2):
            L.append("ds_read_b64_tr_b16 %s, v%d offset:%d" % (a2(wfr(s, ni, hs) + 2 * j), vWr + ni, s * 32768 + hs * 16384 + j * 2048))
    return L


def dma_x(s, half):
    pre = ["s_add_u32 m0, %s, %d" % (sM0, XB + s * 32768 + half * 16384)]
    so = sXo
    if half:
        pre.append("s_add_u32 s3, %s, %s" % (sXo, sLdx64))
        so = "s3"
    ld = ["buffer_load_dwordx4 v%d, s[8:11], %s offen offset:%d lds ;@vm i%d%d" % (vXd + j, so, j * 1024, half, s) for j in range(4)]
    post = []
    if half:
        post = ["s_add_u32 %s, %s, 128" % (sXo, sXo), "s_cmp_eq_u32 %s, %s" % (sXo, sXend), "s_cselect_b32 %s, %s, %s" % (sXo, sXre, sXo)]
    return pre, ld, post


def dma_w(s, hs):
    pre = ["s_add_u32 m0, %s, %d" % (sM0, WB + s * 32768 + hs * 16384)]
    ld = ["buffer_load_dwordx4 v%d, s[12:15], %s offen offset:%d lds ;@vm i%d%d" % (vWd + j, sWo, j * 1024, hs, 1 - s) for j in range(4)]
    post = ["s_add_u32 %s, %s, %d" % (sWo, sWo, 32 * 8192)]
    if hs:
        post += ["s_cmp_eq_u32 %s, %s" % (sWo, sWend), "s_cselect_b32 %s, %s, %s" % (sWo, sWre, sWo),
                 "s_sub_u32 s6, s6, 1", "s_cmp_eq_u32 s6, 0", "s_cselect_b64 s[12:13], s[64:65], s[12:13]"]
    return pre, ld, post


def pf():
    return [["buffer_load_dword v%d, v%d, s[60:63], %s offen" % (vPFd, vPF, sPo), "s_add_u32 %s, %s, %d" % (sPo, sPo, MB)]]


FL2 = "fl3" not in FL
NSPF = envi("NSPF", 8)


def spf():
    L = ["s_buffer_load_dword s100, s[60:63], %s offset:%d ;@spf" % (sPo, 128 * i) for i in range(NSPF)]
    return [L[i:i + 2] for i in range(0, NSPF, 2)] + [["s_add_u32 %s, %s, %d" % (sPo, sPo, 512 * NSPF * 128)]]


def units(pre, ld, post):
    U = [pre + [ld[0]]] + [[x] for x in ld[1:]]
    if 'nodma' in FL:
        U = [pre]
    if post:
        U.append(post)
    return U


def step(a, s, swapped, first, I1, I2, vm1, vm2, wnext=True, xnext=True, extra=None, mem=None, sp=False):
    M = []
    for mi in range(8):
        for ni in range(8):
            for n, hs in enumerate((0, 1) if ni % 2 == 0 else (1, 0)):
                x, w, d = a4(xfr(mi, hs)), a4(wfr(s, ni, hs)), acc(mi, ni)
                c = "0" if (first and n == 0) else d
                M.append(mfma(d, x, w, c) if swapped else mfma(d, w, x, c))
    G = [[] for _ in range(128)]
    BX, BY = 2 * 16 + 7, 6 * 16 + 7
    nr = 'noreads' in FL
    for r in range(8):
        t = r + 2
        if t < 8:
            L = xread(s, t)
        else:
            L = xread(1 - s, t - 8) if xnext else []
        g = max(16 * r + 1, BX) if r == 2 else (max(16 * r + 1, BY) if r == 6 else 16 * r + 1)
        if not nr:
            G[g] += L
        G[16 * r + 15].append(";@need %s" % a4(xfr(r + 1, 1)))
    bar = lambda vm, tag: [("s_waitcnt vmcnt(%d) lgkmcnt(0)" % vm) if vm is not None else (";@waitvm %s lgkmcnt(0)" % tag)] + \
        ([] if 'nobar' in FL else ["s_barrier ;@keep"])
    G[BX] = bar(vm1, "i1%d" % s) + G[BX]
    G[BY] = bar(vm2, "i0%d" % (1 - s)) + G[BY]
    if wnext and not nr:
        L = wread(1 - s, 0)
        for i in range(8):
            G[3 + 4 * i] += L[2 * i:2 * i + 2]
        L = wread(1 - s, 1)
        for i in range(8):
            G[BX + 4 + 6 * i] += L[2 * i:2 * i + 2]
    if sp and 'nospf' not in FL:
        mem = dict(mem or {})
        for i, u in enumerate(spf()):
            mem[BX + 1 + i] = u + mem.get(BX + 1 + i, [])
    if mem:
        for g, L in sorted(mem.items()):
            while [y for y in G[g] if not y.startswith(";@need")]:
                g += 1
            G[g] = L + G[g]
    carry = a.carry
    a.carry = []
    free = [g for g in range(128) if not G[g]]
    def put(U, lo, hi):
        c = [g for g in free if lo <= g < hi]
        n = min(len(U), len(c))
        for i in range(n):
            g = c[(i * len(c)) // n]
            G[g] += U[i]
        for i in range(n):
            free.remove(c[(i * len(c)) // n])
        return U[n:]
    assert not put(carry, 0, BX - 2)
    assert not put(I1, BX + 1, BY - 2)
    k = (len(I2) * 2 + 4) // 5
    put(I2[:k], BY + 1, 127)
    a.carry = I2[k:]
    if extra:
        for g, L in extra.items():
            G[g] += L
    for i in range(128):
        a(M[i])
        for y in G[i]:
            a(y)
    a.nstep = getattr(a, 'nstep', 0) + 1
    a.tl.stamp(200 + a.nstep)


def tidy(U):
    if 'notidy' in FL:
        return U
    out = []
    for u in U:
        u = list(u)
        if out and any(x.startswith("buffer") for x in u):
            while u[0].startswith("s_"):
                out[-1].append(u.pop(0))
        if len(u) > 2 and all(x.startswith("s_") for x in u):
            c = Col()
            for x in u:
                c(x)
            A = c.atoms(1)
            out[-1] += A[0]
            out += A[1:2] + ([A[2] + A[3]] if len(A) > 3 else A[2:])
        else:
            out.append(u)
    return out


def std_I(s, withpf=False):
    if FL2:
        I1 = units(*dma_x(1 - s, 1)) + units(*dma_w(s, 1)) + (pf() if withpf else [])
        I2 = units(*dma_x(s, 0)) + units(*dma_w(1 - s, 0))
        return tidy(I1), tidy(I2)
    I1 = units(*dma_x(s, 0)) + units(*dma_w(1 - s, 0)) + (pf() if withpf else [])
    I2 = units(*dma_x(s, 1)) + units(*dma_w(1 - s, 1))
    return I1, I2


def dstep(a, swapped, first=False, withpf=False, sp=False, mem=(None, None)):
    for s in range(2):
        I1, I2 = std_I(s, withpf)
        step(a, s, swapped, first and s == 0, I1, I2, None, None, sp=sp, mem=mem[s])


def P(n):
    return ACC + 8 * n if n < 28 else ACC + 8 * (n - 28) + 4


def cvt4(d, r0, r1):
    return ["v_cvt_pk_bf16_f32 v%d, v%d, v%d" % (d, r0, r0 + 1), "v_cvt_pk_bf16_f32 v%d, v%d, v%d" % (d + 1, r0 + 2, r0 + 3),
            "v_cvt_pk_bf16_f32 v%d, v%d, v%d" % (d + 2, r1, r1 + 1), "v_cvt_pk_bf16_f32 v%d, v%d, v%d" % (d + 3, r1 + 2, r1 + 3)]


def scale(r):
    return ["v_pk_mul_f32 %s, %s, s[4:5]" % (v2(r + e), v2(r + e)) for e in (0, 2)]


def accrd(t, ni):
    return ["v_accvgpr_read_b32 v%d, a%d" % (t + e, aACC7 + 4 * ni + e) for e in range(4)]


def pack(kind, grp, dst7=None):
    L = []
    if kind in 'qk':
        for ds in range(4):
            n = 4 * grp + ds
            if grp < 7:
                r0, r1 = ACC + 8 * n, ACC + 8 * n + 4
            else:
                r0, r1 = vT, vT + 4
                L += accrd(r0, 2 * ds) + accrd(r1, 2 * ds + 1)
            if kind == 'q':
                L += scale(r0) + scale(r1)
            L += cvt4(P(n), r0, r1)
    else:
        for ni in ((0, 4, 2, 6, 1, 5, 3, 7) if grp < 3 else (0, 4, 6, 2, 1, 3, 5, 7)):
            r0 = ACC + 4 * (16 * grp + ni)
            if grp < 3:
                r1 = r0 + 32
            else:
                r1 = vT + 4 * (ni & 1)
                L += accrd(r1, ni)
            L += cvt4(P(8 * grp + ni), r0, r1)
    return L


def pack_extra(kind):
    ex = {}
    if kind in 'qk':
        for mi in range(7):
            L = pack(kind, mi)
            n = 14 if kind == 'q' else 8
            for i, x in enumerate(L):
                ex.setdefault(min(127, 16 * (mi + 1) + 3 + (i * n) // len(L)), []).append(x)
    else:
        for m in range(3):
            L = pack(kind, m)
            for i, x in enumerate(L):
                ex.setdefault(32 * (m + 1) + 3 + (i * 20) // len(L), []).append(x)
    return ex


def out_base(kind):
    sh = 14 if kind == 'q' else 15
    L = ["s_lshr_b32 s3, %s, 7" % sN, "s_add_u32 s3, s3, %s" % sWn, "s_lshl_b32 s3, s3, 5", "s_lshr_b32 s19, %s, 6" % sM, "s_add_u32 s3, s3, s19",
         "s_lshl_b32 s19, %s, 1" % sWm, "s_add_u32 s3, s3, s19", "s_lshl_b32 s92, s3, %d" % sh]
    if kind == 'v':
        L.append("s_add_u32 s92, s92, 16384")
    L.append("s_add_u32 s93, s92, %d" % (1 << sh))
    off, size = (WS_Q, 16 * MB) if kind == 'q' else (WS_KV, 32 * MB)
    L += ["s_add_u32 s16, s50, %d" % off, "s_addc_u32 s17, s51, 0", "s_mov_b32 s18, %d" % size, "s_mov_b32 s19, 0x00020000"]
    if kind == 'q':
        c = f32bits((128 ** -0.5) * math.log2(math.e))
        L += ["s_mov_b32 s4, 0x%08x" % c, "s_mov_b32 s5, 0x%08x" % c]
    return L


def store(n, reg=None):
    return ["s_add_u32 s94, s%d, %d" % (92 + (n >> 4), ((n >> 2) & 3) * 4096),
            "buffer_store_dwordx4 %s, v%d, s[16:19], s94 offen offset:%d %s ;@vm st" % (v4(P(n) if reg is None else reg), vLane, (n & 3) * 1024, SF)]


NH = envi("NH", 16)


def held(lo, hi, g0=8, g1=120):
    L = [n for n in range(28 - NH + lo, 28 - NH + min(hi, NH))]
    return {g0 + (i * (g1 - g0)) // max(1, len(L)): [x.replace(v4(P(n)), a4(aHOLD + 4 * (n - 28 + NH))) for x in store(n)] for i, n in enumerate(L)}


def kv_seam(a):
    I1, I2 = std_I(0)
    ex = {}
    for i, x in enumerate(out_base('k')):
        ex.setdefault(60 + i // 2, []).append(x.replace("s3", "s95"))
    step(a, 0, False, False, I1, I2, None, None, extra=ex)
    nd = 28 - NH
    pos = {n: max(30 + 16 * (n >> 2), 30 + (n * min(7 * 28, 110 + 16 * ((nd - 1) >> 2) - 30 + 14)) // max(nd, 1)) for n in range(nd)}
    I1, I2 = std_I(1)
    ex = pack_extra('k')
    park = ["v_accvgpr_write_b32 a%d, v%d" % (aHOLD + 4 * (n - nd) + e, P(n) + e) for n in range(nd, 28) for e in range(4)]
    late = []
    for x in park:
        r = int(x.split("v")[-1])
        g = 16 * ((r - ACC) // 32 + 1) + 12 + ((r - ACC) % 32) // 8
        if g < 128:
            ex.setdefault(g, []).append(x)
        else:
            late.append(x)
    step(a, 1, False, False, I1, I2, None, None, extra=ex, mem={g: store(n) for n, g in pos.items() if g < 126})
    I1, I2 = std_I(0)
    mem = {max(g - 128, 0): store(n) for n, g in pos.items() if g >= 126}
    ex = {}
    for i, x in enumerate(late):
        ex.setdefault(i // 2, []).append(x)
    for ds in range(4):
        g = 20 + 24 * ds
        L = accrd(vT, 2 * ds) + accrd(vT + 4, 2 * ds + 1) + cvt4(vT, vT, vT + 4)
        for i, x in enumerate(L):
            ex.setdefault(g + i // 2, []).append(x)
        mem[g + 9] = store(28 + ds, vT)
    step(a, 0, True, True, I1, I2, None, None, extra=ex, mem=mem)
    I1, I2 = std_I(1)
    step(a, 1, True, False, I1, I2, None, None, mem=held(0, 4))


def tail(a, swapped):
    kind = 'v' if swapped else 'q'
    I1, I2 = std_I(0)
    step(a, 0, swapped, False, I1, I2, None, None, mem=held(12, 16) if swapped else None)
    I1, I2 = (std_I(1)[0], units(*dma_x(1, 0))) if FL2 else (units(*dma_x(1, 0)), units(*dma_x(1, 1)))
    step(a, 1, swapped, False, I1, I2, None, None)
    S = b_setup() + out_base(kind)
    ex = {}
    for i, x in enumerate(S):
        ex.setdefault((52 + (i * 48) // len(S)) if FL2 else (41 + (i * 58) // len(S)), []).append(x)
    step(a, 0, swapped, False, [], b_dma_x(0) + b_dma_w(0), None, None, extra=ex,
         mem={40 + 2 * i: u for i, u in enumerate(units(*dma_x(1, 1))[:4])} if FL2 else None)
    if swapped:
        pos = {n: (58 + 4 * n if n < 8 else 92 + 6 * (n - 8)) for n in range(NEARLY)}
    else:
        pos = {n: 36 + (88 * n) // 13 for n in range(NEARLY)}
    step(a, 1, swapped, False, b_dma_x(1) + b_dma_w(1), b_dma_x(2) + b_dma_w(2), None, 63, wnext=False, xnext=False, extra=pack_extra(kind),
         mem={g: store(n) for n, g in pos.items()})
    for x in pack(kind, 3 if swapped else 7):
        a(x)


def epilogue(a, kind):
    T = vT
    if kind == 'q':
        a("s_mov_b32 s3, 0x%08x" % f32bits((128 ** -0.5) * math.log2(math.e)))
        a("v_mov_b32 v%d, s3" % vXr)
    a("s_lshr_b32 s4, %s, 7" % sN)
    a("s_add_u32 s4, s4, %s" % sWn)
    a("s_lshl_b32 s4, s4, 5")
    a("s_lshr_b32 s5, %s, 6" % sM)
    a("s_add_u32 s4, s4, s5")
    a("s_lshl_b32 s5, %s, 1" % sWm)
    a("s_add_u32 s4, s4, s5")
    sh = 14 if kind == 'q' else 15
    a("s_lshl_b32 s4, s4, %d" % sh)
    k = 0

    def get(mi, ni, t):
        if mi < 7:
            return ACC + 4 * (8 * mi + ni)
        for e in range(4):
            a("v_accvgpr_read_b32 v%d, a%d" % (t + e, aACC7 + 4 * ni + e))
        return t
    if kind == 'v':
        pairs = [((mi, ni), (mi + 1, ni), (mi >> 2) * 32768 + 16384 + ((mi >> 1) & 1) * 8192 + ni * 1024) for mi in range(0, 8, 2) for ni in range(8)]
    else:
        pairs = [((mi, 2 * ds), (mi, 2 * ds + 1), (mi >> 2) * (1 << sh) + (mi & 3) * 4096 + ds * 1024) for mi in range(8) for ds in range(4)]
    last = None
    for p0, p1, off in pairs:
        r0 = get(p0[0], p0[1], ACC)
        r1 = get(p1[0], p1[1], ACC + 4)
        if kind == 'q':
            for r in (r0, r0 + 2, r1, r1 + 2):
                a("v_pk_mul_f32 %s, %s, %s op_sel_hi:[1,0]" % (v2(r), v2(r), v2(vXr)))
        u = T + 4 * (k % 2)
        k += 1
        a("v_cvt_pk_bf16_f32 v%d, v%d, v%d" % (u, r0, r0 + 1))
        a("v_cvt_pk_bf16_f32 v%d, v%d, v%d" % (u + 1, r0 + 2, r0 + 3))
        a("v_cvt_pk_bf16_f32 v%d, v%d, v%d" % (u + 2, r1, r1 + 1))
        a("v_cvt_pk_bf16_f32 v%d, v%d, v%d" % (u + 3, r1 + 2, r1 + 3))
        if last != off >> 12:
            a("s_add_u32 s5, s4, %d" % (off & ~4095))
            last = off >> 12
        a("buffer_store_dwordx4 %s, v%d, s[16:19], s5 offen offset:%d %s" % (v4(u), vLane, off & 4095, SF))


vBX, vBH, vBW = 2, 20, (6, 7, 8, 9, 21, 22)
vBXr, vBWr = 10, 14
aBACC, aBW, aBX = 68, 176, 224
STG = 98304
vST = 124
BXO = (131072, 0, 18432)
BWO = (65536, 98304, 36864)
sBX, sBH, sBW, sRB, sCP = "s23", "s24", "s25", "s26", "s27"
PCR = 6
BL = 3
PITCH = 400


def bacc(mi, i):
    return aBACC + 4 * (3 * mi + i)


def bxfr(t, row, hs):
    return aBX + 8 * ((9 * t + row) % 4) + 4 * hs


def bwfr(t, i, hs):
    return aBW + 24 * (t % 2) + 8 * i + 4 * hs


def b_ids(rb, cp):
    return ["s_and_b32 s3, s2, 1", "s_lshl_b32 s3, s3, 3", "s_bfe_u32 s4, s2, 0x30003", "s_add_u32 %s, s3, s4" % rb,
            "s_bfe_u32 s3, s2, 0x20001", "s_lshl_b32 s3, s3, 2", "s_lshr_b32 s4, s2, 6", "s_xor_b32 s4, s4, %d" % envi("CPX", 3), "s_add_u32 %s, s3, s4" % cp]


def b_setup():
    T = vT
    L = []
    a = L.append
    L += b_ids(sRB, sCP)
    a("s_lshl_b32 %s, %s, 18" % (sBX, sRB))
    a("s_sub_u32 %s, %s, 32768" % (sBH, sBX))
    a("s_max_i32 %s, %s, 0" % (sBH, sBH))
    a("s_lshl_b32 %s, %s, 7" % (sBW, sCP))
    a("s_mov_b64 s[8:9], s[44:45]")
    a("s_mov_b32 s10, %d" % (4 * MB))
    a("s_mov_b64 s[12:13], s[46:47]")
    a("s_mov_b32 s14, %d" % (6 * MB))
    a("s_mov_b64 s[36:37], s[90:91]")
    a("s_mov_b32 s38, 256")
    a("s_mov_b32 s39, 0x00020000")
    a("s_lshl_b32 s28, %s, 9" % sWave)
    a("s_mul_i32 s30, %s, 6144" % sWave)
    a("s_lshl_b32 s3, %s, 5" % sWave)
    a("v_lshrrev_b32 v%d, 3, v0" % T)
    a("v_and_b32 v%d, 7, v0" % (T + 1))
    a("v_add_u32 v%d, s3, v%d" % (T + 4, T))
    for j in range(4):
        a("v_add_u32 v%d, %d, v%d" % (T + 2, 8 * j, T + 4))
        a("v_bfe_u32 v%d, v%d, 1, 3" % (T + 3, T + 2))
        a("v_xor_b32 v%d, v%d, v%d" % (T + 3, T + 3, T + 1))
        a("v_lshlrev_b32 v%d, 11, v%d" % (T + 2, T + 2))
        a("v_lshl_add_u32 v%d, v%d, 4, v%d" % (T + 2, T + 3, T + 2))
        a("v_subrev_u32 v%d, %d, v%d" % (vBX + j, j * 1024, T + 2))
    a("s_lshl_b32 s3, %s, 2" % sWave)
    a("v_lshrrev_b32 v%d, 5, v0" % (T + 2))
    a("v_add_u32 v%d, s3, v%d" % (T + 2, T + 2))
    a("v_bfe_u32 v%d, v0, 2, 3" % (T + 5))
    for i, d in enumerate((vBH, 23)):
        if i:
            a("v_add_u32 v%d, 2, v%d" % (T + 2, T + 2))
        a("v_bfe_u32 v%d, v%d, 1, 3" % (T + 3, T + 2))
        a("v_xor_b32 v%d, v%d, v%d" % (T + 3, T + 3, T + 5))
        a("v_lshlrev_b32 v%d, 4, v%d" % (T + 3, T + 3))
        a("v_and_b32 v%d, 3, v0" % (T + 6))
        a("v_lshl_add_u32 v%d, v%d, 2, v%d" % (T + 3, T + 6, T + 3))
        a("v_lshl_add_u32 v%d, v%d, 11, v%d" % (d, T + 2, T + 3))
    a("v_subrev_u32 v23, 256, v23")
    a("s_mul_i32 s3, %s, 48" % sWave)
    a("v_add_u32 v%d, s3, v%d" % (T + 4, T))
    for j in range(6):
        a("v_add_u32 v%d, %d, v%d" % (T + 2, 8 * j, T + 4))
        a("v_mul_u32_u24 v%d, 0xaaab, v%d" % (T + 3, T + 2))
        a("v_lshrrev_b32 v%d, 17, v%d" % (T + 3, T + 3))
        a("v_lshrrev_b32 v%d, 1, v%d" % (T + 5, T + 3))
        a("v_and_b32 v%d, 4, v%d" % (T + 5, T + 5))
        a("v_and_or_b32 v%d, v%d, 2, v%d" % (T + 3, T + 3, T + 5))
        a("v_xor_b32 v%d, v%d, v%d" % (T + 3, T + 3, T + 1))
        a("v_lshlrev_b32 v%d, 11, v%d" % (T + 2, T + 2))
        a("v_lshl_add_u32 v%d, v%d, 4, v%d" % (T + 2, T + 3, T + 2))
        a("v_subrev_u32 v%d, %d, v%d" % (vBW[j], (j & 3) * 1024, T + 2))
    return L


def b_dma_x(t):
    st = t % 3
    U = [["s_add_u32 m0, s28, %d" % BXO[st], "buffer_load_dword v%d, s[8:11], %s offen lds ;@vm bx%d" % (vBH, sBH, t)],
         ["buffer_load_dword v23, s[8:11], %s offen offset:256 lds ;@vm bx%d" % (sBH, t)]]
    for j in range(4):
        U.append((["s_add_u32 m0, %s, %d" % (sM0, BXO[st] + 2048)] if j == 0 else []) +
                 ["buffer_load_dwordx4 v%d, s[8:11], %s offen offset:%d lds ;@vm bx%d" % (vBX + j, sBX, j * 1024, t)])
    U[-1] += ["s_add_u32 %s, %s, 128" % (sBX, sBX)]
    U[1] += ["s_add_u32 %s, %s, 128" % (sBH, sBH)]
    return U


def b_dma_w(t):
    st = t % 3
    U = []
    for j in range(6):
        U.append((["s_add_u32 m0, s30, %d" % (BWO[st] + (j >> 2) * 4096)] if j % 4 == 0 else []) +
                 ["buffer_load_dwordx4 v%d, s[12:15], %s offen offset:%d lds ;@vm bw%d" % (vBW[j], sBW, (j & 3) * 1024, t)])
    U[-1] += ["s_add_u32 %s, %s, %d" % (sBW, sBW, 64 * 6144)]
    return U


def b_xread(t, row):
    st = t % 3
    return ["ds_read_b128 %s, v%d offset:%d" % (a4(bxfr(t, row, hs)), vBXr + (2 if st == 0 else 0) + hs, (0 if st == 0 else BXO[st]) + row * 2048) for hs in range(2)]


def b_wread(t):
    st = t % 3
    L = []
    for hs in range(2):
        for i in range(3):
            for j in range(2):
                off = (0 if st == 1 else BWO[st] - BWO[2]) + (hs * 32 + j * 4) * 384
                L.append("ds_read_b64_tr_b16 %s, v%d offset:%d" % (a2(bwfr(t, i, hs) + 2 * j), vBWr + (3 if st == 1 else 0) + i, off))
    return L


def b_stage_out(mi):
    L = []
    for i in range(3):
        t = vT + 4 * (i % 2)
        L += ["v_accvgpr_read_b32 v%d, a%d" % (t + e, bacc(mi, i) + e) for e in range(4)]
        L += ["v_cvt_pk_bf16_f32 v%d, v%d, v%d" % (t, t, t + 1), "v_cvt_pk_bf16_f32 v%d, v%d, v%d" % (t + 1, t + 2, t + 3),
              "ds_write_b64 v%d, %s offset:%d" % (vST, v2(t), mi * 16 * PITCH + i * 32)]
    return L


def b_step(a, t, stores, valu=None, late=None, post_bar=None):
    M = []
    for mi in range(9):
        for i in range(3):
            for n, hs in enumerate((0, 1) if (3 * mi + i) % 2 == 0 else (1, 0)):
                d = a4(bacc(mi, i))
                M.append(mfma(d, a4(bwfr(t, i, hs)), a4(bxfr(t, mi, hs)), "0" if (t == 0 and n == 0) else d))
    G = [[] for _ in range(54)]
    BB = 6 * (9 - BL) + 4
    for r in range(9):
        q = r + BL
        if q < 9:
            G[6 * r] += b_xread(t, q)
        elif t < 15:
            G[max(6 * r, BB)] += b_xread(t + 1, q - 9)
        if r < 8 or t < 15:
            G[6 * r + 5].append(";@need %s" % a4(bxfr(t, r + 1, 1) if r < 8 else bxfr(t + 1, 0, 1)))
    if t < 15:
        tags = "bx%d" % (t + 1) + (",bw%d" % (t + 2) if t + 2 < 16 else "")
        post = []
        if t == TARR:
            tags += ",st"
            post = ["s_cmp_lg_u32 s101, 0", "s_cbranch_scc1 Lk1_arr ;@keep", "v_mov_b32 v127, 1", "s_and_b32 s41, s2, 128",
                    "s_mov_b64 exec, 1", "buffer_atomic_add v127, off, s[36:39], s41 sc1 ;@cond", "s_mov_b64 exec, -1", "Lk1_arr: ;@keep"]
        G[BB] = [";@waitvm %s lgkmcnt(0)" % tags, "s_barrier ;@keep"] + G[BB] + post + (post_bar or [])
        L = b_wread(t + 1)
        for i in range(6):
            G[2 + 6 * i] += L[2 * i:2 * i + 2]
    carry = a.carry
    I = [] if 'stlast' in FL else list(stores)
    if t + 3 < 16:
        I += b_dma_x(t + 3)
    if t + 4 < 16:
        I += b_dma_w(t + 4)
    if 'stlast' in FL:
        I += list(stores)
    I = tidy(I) + (late or [])
    free = [g for g in range(54) if not G[g] or G[g][0].startswith(";@need")]

    def put(U, lo, hi):
        c = [g for g in free if lo <= g < hi]
        assert len(U) <= len(c), (len(U), len(c))
        pos = [c[(i * len(c)) // len(U)] for i in range(len(U))]
        for g, u in zip(pos, U):
            G[g] = u + G[g]
            free.remove(g)
    put(carry, 0, (BB - 1) if t < 15 else 54)
    k = min(len(I), 4 if t < 14 else 7)
    put(I[:k], BB + 1, 54)
    a.carry = I[k:]
    if valu:
        lo, hi, U = valu
        for i, u in enumerate(U):
            G[lo + (i * (hi - lo)) // len(U)] += u
    if t == 15:
        G[BB] = ["s_waitcnt lgkmcnt(0)", "s_barrier ;@keep"] + G[BB]
        for mi in range(7):
            L = b_stage_out(mi)
            g0 = 6 * (mi + 2) if mi != 5 else BB + 1
            n = 6 if mi != 5 else 7
            for i in range(n):
                G[g0 + i] += L[(i * 21) // n:((i + 1) * 21) // n]
    for i in range(54):
        a(M[i])
        for y in G[i]:
            a(y)


def b_job(a, tl):
    T = vT
    a("v_and_b32 v%d, 15, v0" % T)
    a("v_lshlrev_b32 v%d, 7, v%d" % (T, T))
    a("v_bfe_u32 v%d, v0, 1, 3" % (T + 1))
    a("v_lshrrev_b32 v%d, 4, v0" % (T + 2))
    a("v_xor_b32 v%d, v%d, v%d" % (T + 1, T + 1, T + 2))
    a("v_lshl_add_u32 v%d, v%d, 4, v%d" % (vBXr, T + 1, T))
    a("v_xor_b32 v%d, 64, v%d" % (vBXr + 1, vBXr))
    a("v_add_u32 v%d, %d, v%d" % (vBXr + 2, BXO[0], vBXr))
    a("v_add_u32 v%d, %d, v%d" % (vBXr + 3, BXO[0], vBXr + 1))
    a("v_bfe_u32 v%d, v0, 2, 2" % T)
    a("v_lshl_add_u32 v%d, v%d, 3, v%d" % (T + 5, T + 2, T))
    a("v_mul_u32_u24 v%d, 384, v%d" % (T + 1, T + 5))
    a("v_and_b32 v%d, 1, v0" % (T + 3))
    a("v_lshl_add_u32 v%d, v%d, 3, v%d" % (T + 1, T + 3, T + 1))
    a("v_add_u32 v%d, %d, v%d" % (T + 1, BWO[2], T + 1))
    a("v_lshrrev_b32 v%d, 1, v%d" % (T, T + 5))
    a("v_and_b32 v%d, 4, v%d" % (T, T))
    a("v_and_or_b32 v%d, v%d, 2, v%d" % (T, T + 5, T))
    a("v_bfe_u32 v%d, v0, 1, 1" % (T + 2))
    a("s_mul_i32 s4, %s, 3" % sWave)
    for i in range(3):
        a("s_add_u32 s3, s4, %d" % i)
        a("s_and_b32 s5, s3, 3")
        a("s_lshl_b32 s5, s5, 1")
        a("s_lshr_b32 s3, s3, 2")
        a("s_lshl_b32 s3, s3, 7")
        a("v_add_u32 v%d, s5, v%d" % (T + 3, T + 2))
        a("v_xor_b32 v%d, v%d, v%d" % (T + 3, T + 3, T))
        a("v_lshl_add_u32 v%d, v%d, 4, v%d" % (T + 3, T + 3, T + 1))
        a("v_add_u32 v%d, s3, v%d" % (vBWr + i, T + 3))
        a("v_add_u32 v%d, %d, v%d" % (vBWr + 3 + i, BWO[1] - BWO[2], vBWr + i))
    a("s_barrier")
    tl.stamp(8)
    for x in b_wread(0):
        a(x)
    for r in range(BL):
        for x in b_xread(0, r):
            a(x)
    a("s_waitcnt lgkmcnt(0)")
    a("s_barrier")
    a.carry = a.carry + b_dma_w(3)
    vQa, vKa, vVa = 120, 121, 122
    MA, MB_, MA0, ONE = 144, 148, 152, 156
    QF, KF, VF, SS, OO, LL, MX = 32, 48, 68, 88, 32, 120, 136
    NEG = 0xf149f2ca
    T = 128
    c_ = Col()
    c_("v_and_b32 v%d, 15, v0" % T)
    c_("v_mul_u32_u24 v%d, %d, v%d" % (T, PITCH, T))
    c_("v_lshrrev_b32 v%d, 4, v0" % (T + 1))
    c_("v_lshl_add_u32 v%d, v%d, 3, v%d" % (T, T + 1, T))
    c_("s_mul_i32 s3, %s, 96" % sWave)
    c_("s_add_u32 s3, s3, %d" % STG)
    c_("v_add_u32 v%d, s3, v%d" % (vST, T))
    c_("v_and_b32 v%d, 15, v0" % T)
    c_("v_lshrrev_b32 v%d, 4, v0" % (T + 1))
    c_("s_add_u32 s3, %s, 16" % sWm)
    c_("v_lshl_add_u32 v%d, v%d, 1, s3" % (T + 2, T))
    c_("s_lshl_b32 s4, %s, 6" % sWn)
    c_("s_add_u32 s4, s4, %d" % STG)
    c_("v_mul_u32_u24 v%d, %d, v%d" % (vQa, PITCH, T + 2))
    c_("v_lshl_add_u32 v%d, v%d, 4, v%d" % (vQa, T + 1, vQa))
    c_("v_add_u32 v%d, s4, v%d" % (vQa, vQa))
    c_("v_subrev_u32 v%d, 32, v%d" % (T + 2, T + 2))
    c_("v_max_i32 v%d, 0, v%d" % (T + 2, T + 2))
    c_("v_mul_u32_u24 v%d, %d, v%d" % (vKa, PITCH, T + 2))
    c_("v_lshl_add_u32 v%d, v%d, 4, v%d" % (vKa, T + 1, vKa))
    c_("v_add_u32 v%d, s4, v%d" % (vKa, vKa))
    c_("v_bfe_u32 v%d, v0, 2, 2" % (T + 3))
    c_("v_lshl_add_u32 v%d, v%d, 2, v%d" % (T + 3, T + 1, T + 3))
    c_("v_lshl_add_u32 v%d, v%d, 1, s3" % (T + 3, T + 3))
    c_("v_and_b32 v%d, 3, v0" % (T + 4))
    c_("v_lshlrev_b32 v%d, 3, v%d" % (T + 4, T + 4))
    c_("v_add_u32 v%d, s4, v%d" % (T + 4, T + 4))
    c_("v_mad_u32_u24 v%d, v%d, s5, v%d" % (vVa, T + 3, T + 4) if False else "s_movk_i32 s5, %d" % PITCH)
    c_("v_mad_u32_u24 v%d, v%d, s5, v%d" % (vVa, T + 3, T + 4))
    c_("v_subrev_u32 v%d, 32, v%d" % (T + 3, T + 3))
    c_("v_max_i32 v%d, 0, v%d" % (T + 3, T + 3))
    c_("v_mad_u32_u24 v%d, v%d, s5, v%d" % (vVa + 1, T + 3, T + 4))
    c_("v_lshlrev_b32 v%d, 2, v%d" % (T + 1, T + 1))
    c_("v_sub_u32 v%d, v%d, v%d" % (T, T, T + 1))
    c_("v_mov_b32 v%d, 0x%08x" % (T + 1, NEG))
    c_("s_cmp_eq_u32 %s, 0" % sRB)
    c_("s_cselect_b32 s3, 0x%08x, 0" % NEG)
    for r in range(4):
        c_("v_cmp_lt_i32 vcc, %d, v%d" % (r - 9, T))
        c_("v_cndmask_b32 v%d, 0, v%d, vcc" % (MA + r, T + 1))
        c_("v_subrev_u32 v%d, %d, v%d" % (T + 2, r, T))
        c_("v_cmp_lt_u32 vcc, 7, v%d" % (T + 2))
        c_("v_cndmask_b32 v%d, 0, v%d, vcc" % (MB_ + r, T + 1))
        c_("v_min_f32 v%d, s3, v%d" % (MA0 + r, MA + r))
        c_("v_mov_b32 v%d, 0x3f803f80" % (ONE + r))
    srd(c_, 16, 50, 51, 4 * MB, WS_OB)
    c_("s_lshl_b32 s3, %s, 18" % sRB)
    c_("s_lshl_b32 s4, %s, 14" % sCP)
    c_("s_add_u32 s3, s3, s4")
    c_("s_lshl_b32 s4, %s, 13" % sWm)
    c_("s_add_u32 s3, s3, s4")
    c_("s_lshl_b32 s4, %s, 10" % sWn)
    c_("s_add_u32 s6, s3, s4")
    c = (32 ** -0.5) * math.log2(math.e)
    c_("s_mov_b32 s7, 0x%08x" % f32bits(c))
    c_("s_lshl_b32 s65, %s, 8" % sRB)
    c_("s_lshl_b32 s3, %s, 4" % sCP)
    c_("s_add_u32 s65, s65, s3")
    c_("s_lshl_b32 s3, s101, 2")
    c_("s_add_u32 s65, s65, s3")
    c_("s_add_u32 s65, s65, %d" % FLG_B)
    c_("s_mov_b32 s40, 0")
    c_("v_mov_b32 v119, 0")
    c_("s_mov_b64 s[4:5], s[50:51]")
    k2.early_q(c_)
    A1 = c_.atoms(2)
    c_ = Col()
    k2.early(c_)
    A2 = c_.atoms(2)
    LQ, L1, L2 = k2.early_loads()
    h = len(A1) // 2
    TQ = envi("TQ", 12)
    for t in range(16):
        kw = {}
        if t in (8, 13):
            z = ["v_mov_b32 v%d, 0" % r for r in range(k2.OV + (0 if t == 8 else 48), k2.OV + (48 if t == 8 else 96))]
            kw['valu'] = (0, 54, [z[i:i + 2] for i in range(0, 48, 2)])
        if t == 9:
            kw['valu'] = (0, 54, A1[:h])
        if t == 10:
            kw['valu'] = (0, 38, A1[h:])
        if t == TQ - 1:
            kw['late'] = [["buffer_load_dword v125, v119, s[36:39], 0 offen sc1"]]
        if t == TQ:
            kw['post_bar'] = [";@waitvm pq", "v_cmp_gt_u32 vcc, 0x80, v125", "s_cbranch_vccnz Lk1_spinq ;@keep", "Lk1_gotq: ;@keep"]
            kw['late'] = LQ[:8]
        if t == TQ + 1:
            kw['late'] = LQ[8:]
        if t == 13:
            kw['late'] = kw.get('late', []) + [["buffer_load_dword v126, v119, s[36:39], 0 offen offset:128 sc1 ;@vm pc"]]
            kw['latefirst'] = True
        if t == 14:
            kw['valu'] = (0, 38, A2)
            kw['post_bar'] = [";@waitvm pc", "v_cmp_gt_u32 vcc, 0x80, v126", "s_cbranch_vccnz Lk1_spin ;@keep", "Lk1_got: ;@keep"]
            kw['late'] = L1
        kw.pop('latefirst', None)
        a(";@wtphase %d" % (4 if t < 9 else 5))
        b_step(a, t, a.bstores[t], **kw)
        tl.stamp(20 + t)
    a("s_mov_b64 s[44:45], s[42:43]")
    assert not a.carry
    tl.stamp(9)
    for mi in (7, 8):
        for x in b_stage_out(mi):
            a(x)
    a("s_waitcnt lgkmcnt(0)")
    a("s_barrier")
    n0 = len(a.ins)
    a("ds_read_b128 %s, v%d offset:128" % (v4(KF), vKa))
    for q in range(4):
        a("ds_read_b128 %s, v%d offset:%d" % (v4(QF + 4 * q), vQa, q * 32 * PITCH))
        a("ds_read_b128 %s, v%d offset:%d" % (v4(KF + 4 + 4 * q), vQa, q * 32 * PITCH + 128))
    for f in range(2):
        a("ds_read_b64_tr_b16 %s, v%d offset:%d" % (v2(VF + 10 * f), vVa + 1, 256 + 32 * f))
        for q in range(4):
            a("ds_read_b64_tr_b16 %s, v%d offset:%d" % (v2(VF + 10 * f + 2 + 2 * q), vVa, q * 32 * PITCH + 256 + 32 * f))
    for r in range(k2.aO, k2.aO + 48):
        a("v_accvgpr_write_b32 a%d, 0" % r)
    for q in range(4):
        a(mfma(v4(SS + 8 * q), v4(KF + 4 * q), v4(QF + 4 * q), v4(MA0 if q == 0 else MA)))
        a(mfma(v4(SS + 8 * q + 4), v4(KF + 4 * q + 4), v4(QF + 4 * q), v4(MB_)))
    for q in range(4):
        s_, m = SS + 8 * q, MX + q
        a("v_max3_f32 v%d, v%d, v%d, v%d" % (m, s_, s_ + 1, s_ + 2))
        a("v_max3_f32 v%d, v%d, v%d, v%d" % (m, m, s_ + 3, s_ + 4))
        a("v_max3_f32 v%d, v%d, v%d, v%d" % (m, m, s_ + 5, s_ + 6))
        a("v_max_f32 v%d, v%d, v%d" % (m, m, s_ + 7))
    for sw in ("v_permlane16_swap_b32", "v_permlane32_swap_b32"):
        for q in range(4):
            a("v_mov_b32 v%d, v%d" % (MX + 4 + q, MX + q))
        for q in range(4):
            a("%s v%d, v%d" % (sw, MX + q, MX + 4 + q))
        for q in range(4):
            a("v_max_f32 v%d, v%d, v%d" % (MX + q, MX + q, MX + 4 + q))
    for q in range(4):
        a("v_mul_f32 v%d, s7, v%d" % (MX + q, MX + q))
    for q in range(4):
        s_ = SS + 8 * q
        for e in range(8):
            a("v_fma_f32 v%d, v%d, s7, -v%d" % (s_ + e, s_ + e, MX + q))
        for e in range(8):
            a("v_exp_f32 v%d, v%d" % (s_ + e, s_ + e))
    for q in range(4):
        s_ = SS + 8 * q
        for e in range(4):
            a("v_cvt_pk_bf16_f32 v%d, v%d, v%d" % (s_ + e, s_ + 2 * e, s_ + 2 * e + 1))
    for q in range(4):
        a(mfma(v4(LL + 4 * q), v4(ONE), v4(SS + 8 * q), "0"))
        for f in range(2):
            a(mfma(v4(OO + 8 * q + 4 * f), v4(VF + 10 * f + 2 * q), v4(SS + 8 * q), "0"))
    for q in range(4):
        a("v_rcp_f32 v%d, v%d" % (LL + 4 * q, LL + 4 * q))
    for q in range(4):
        o = OO + 8 * q
        for e in range(0, 8, 2):
            a("v_pk_mul_f32 %s, %s, %s op_sel_hi:[1,0]" % (v2(o + e), v2(o + e), v2(LL + 4 * q)))
        for e in range(4):
            a("v_cvt_pk_bf16_f32 v%d, v%d, v%d" % (o + e, o + 2 * e, o + 2 * e + 1))
        a("s_add_u32 s3, s6, %d" % (q * 2048))
        a("buffer_store_dwordx4 %s, v%d, s[16:19], s3 offen sc1 ;@vm ob" % (v4(o), vLane))
    from asmlib import Ins
    body = a.ins[n0:]
    del a.ins[n0:]
    lo, hi = 20, len(body) - 45
    assert NEARLY + NSPS * (TARR - 1) >= 32 and TARR <= 9
    for i, x in enumerate(body):
        a.ins.append(x)
        if lo <= i < hi:
            for k in range(((i - lo) * len(L2)) // (hi - lo), ((i - lo + 1) * len(L2)) // (hi - lo)):
                a.ins += [Ins(y) for y in L2[k]]


def gen():
    a = Asm()
    a.carry = []
    a.bstores = [[store(n) for n in range(NEARLY + NSPS * t, min(32, NEARLY + NSPS * (t + 1)))] for t in range(16)]
    tl = TL(a, 0, 50, 'tl' in FL)
    a.tl = tl
    T = vT
    a("s_cmp_lt_u32 s2, 256")
    a("s_cbranch_scc1 Lk1_go")
    a("s_endpgm")
    a.label("Lk1_go")
    if 'swap' in FL:
        a("s_xor_b32 s2, s2, 128")
    tl.early()
    a("s_load_dwordx16 s[32:47], s[0:1], 0")
    a("s_load_dwordx2 s[48:49], s[0:1], 64")
    a("s_load_dwordx2 s[50:51], s[0:1], 88")
    a("s_load_dwordx2 s[90:91], s[0:1], 80")
    a("v_lshrrev_b32 v%d, 6, v0" % T)
    a("v_readfirstlane_b32 %s, v%d" % (sWave, T))
    a("v_and_b32 v0, 63, v0")
    a("v_lshlrev_b32 v%d, 4, v0" % vLane)
    a("s_mov_b32 s101, %s" % sWave)
    a("s_lshr_b32 %s, %s, 1" % (sWm, sWave))
    a("s_and_b32 %s, %s, 1" % (sWn, sWave))
    a("s_lshl_b32 %s, %s, 12" % (sM0, sWave))
    a("s_and_b32 s3, s2, 1")
    a("s_lshl_b32 s3, s3, 2")
    a("s_bfe_u32 s6, s2, 0x20003")
    a("s_add_u32 s3, s3, s6")
    a("s_lshl_b32 %s, s3, 8" % sM)
    a("s_bfe_u32 s3, s2, 0x20001")
    a("s_lshl_b32 s3, s3, 2")
    a("s_bfe_u32 s7, s2, 0x20005")
    a("s_add_u32 s3, s3, s7")
    a("s_lshl_b32 %s, s3, 8" % sN)
    a("s_cmp_lt_u32 s2, 128")
    a("s_cselect_b32 s5, 11, 10")
    a("s_lshl_b32 s3, %s, 7" % sWm)
    a("s_lshl_b32 s4, %s, 5" % sWn)
    a("s_add_u32 s3, s3, s4")
    a("v_lshrrev_b32 v%d, 3, v0" % T)
    a("v_add_u32 v%d, s3, v%d" % (T, T))
    a("v_and_b32 v%d, 7, v0" % (T + 1))
    for j in range(4):
        a("v_add_u32 v%d, %d, v%d" % (T + 2, 8 * j, T))
        a("v_bfe_u32 v%d, v%d, 1, 3" % (T + 3, T + 2))
        a("v_xor_b32 v%d, v%d, v%d" % (T + 3, T + 3, T + 1))
        a("v_lshlrev_b32 v%d, s5, v%d" % (T + 2, T + 2))
        a("v_lshl_add_u32 v%d, v%d, 4, v%d" % (T + 2, T + 3, T + 2))
        a("v_subrev_u32 v%d, %d, v%d" % (vXd + j, j * 1024, T + 2))
    a("s_lshl_b32 s3, %s, 3" % sWave)
    a("v_lshrrev_b32 v%d, 5, v0" % T)
    a("v_add_u32 v%d, s3, v%d" % (T, T))
    a("v_and_b32 v%d, 31, v0" % (T + 1))
    for j in range(4):
        a("v_add_u32 v%d, %d, v%d" % (T + 2, 2 * j, T))
        a("v_and_b32 v%d, 3, v%d" % (T + 3, T + 2))
        a("v_lshlrev_b32 v%d, 1, v%d" % (T + 3, T + 3))
        a("v_and_or_b32 v%d, v%d, 8, v%d" % (T + 3, T + 2, T + 3))
        a("v_xor_b32 v%d, v%d, v%d" % (T + 3, T + 3, T + 1))
        a("v_lshlrev_b32 v%d, 13, v%d" % (T + 2, T + 2))
        a("v_lshl_add_u32 v%d, v%d, 4, v%d" % (T + 2, T + 3, T + 2))
        a("v_subrev_u32 v%d, %d, v%d" % (vWd + j, j * 1024, T + 2))
    a("s_lshl_b32 %s, %s, s5" % (sXo, sM))
    a("s_lshl_b32 %s, 64, s5" % sLdx64)
    a("s_mov_b32 %s, %s" % (sXre, sXo))
    a("s_lshl_b32 %s, %s, 1" % (sWo, sN))
    a("s_mov_b32 %s, %s" % (sWre, sWo))
    a("s_lshl_b32 s3, 1, s5")
    a("s_add_u32 %s, %s, s3" % (sXend, sXo))
    a("s_lshl_b32 s3, s3, 12")
    a("s_add_u32 %s, %s, s3" % (sWend, sWo))
    a("s_bfe_u32 s3, s2, 0x20001")
    a("s_and_b32 s4, s2, 1")
    a("s_lshl_b32 s4, s4, 1")
    a("s_add_u32 s3, s3, s4")
    a("s_and_b32 s3, s3, %d" % (0 if 'norot' in FL else 3))
    a("s_sub_u32 s4, s5, 2")
    a("s_lshl_b32 s3, s3, s4")
    a("s_add_u32 %s, %s, s3" % (sXo, sXo))
    a("s_lshl_b32 s3, s3, 12")
    a("s_add_u32 %s, %s, s3" % (sWo, sWo))
    a("s_mov_b32 s95, s6")
    a("s_cmp_lt_u32 s2, 128")
    a("s_cselect_b32 s6, -1, 8")
    a("s_waitcnt lgkmcnt(0)")
    a("s_cmp_lt_u32 s2, 128")
    a("s_cselect_b64 s[8:9], s[32:33], s[34:35]")
    a("s_mov_b32 s10, %d" % (2 * MB))
    a("s_cselect_b32 s10, %d, s10" % (4 * MB))
    a("s_mov_b32 s11, 0x00020000")
    a("s_cselect_b64 s[12:13], s[36:37], s[38:39]")
    a("s_mov_b32 s14, %d" % (4 * MB))
    a("s_cselect_b32 s14, %d, s14" % (8 * MB))
    a("s_mov_b32 s15, 0x00020000")
    a("s_mov_b64 s[64:65], s[40:41]")

    def now(pre, ld, post):
        for x in pre + ["s_nop 0"] + ([] if 'nodma' in FL else ld) + post:
            a(x)
    now(*dma_w(0, 0))
    now(*dma_x(0, 0))
    now(*dma_w(0, 1))
    tl.stamp(7)
    srd(a, 16, 50, 51, FLG_END - FLG, WS_XCH + FLG)
    a("v_lshlrev_b32 v23, 20, v0")
    a("s_and_b32 s3, s2, 7")
    a("s_lshr_b32 s4, s2, 6")
    a("s_lshl_b32 s4, s4, 3")
    a("s_add_u32 s3, s3, s4")
    a("s_lshl_b32 s3, s3, 4")
    a("s_add_u32 s3, s3, %d" % (FLG_T - FLG))
    a("s_bfe_u32 s4, s2, 0x30003")
    a("s_lshl_b32 s4, s4, 9")
    a("s_add_u32 s56, s3, s4")
    a("s_sub_u32 s4, %d, s4" % (15 * 512))
    a("s_add_u32 s57, s3, s4")
    for x in b_ids("s58", "s59"):
        a(x)
    a("s_lshl_b32 s58, s58, 8")
    a("s_lshl_b32 s59, s59, 4")
    a("s_add_u32 s58, s58, s59")
    a("s_add_u32 s58, s58, %d" % (FLG_B - FLG))
    a("s_lshl_b32 s59, s2, 4")
    clears = {60 + 12 * i: ["buffer_store_dwordx4 %s, v23, s[16:19], s%d offen sc1 ;@zero" % (v4(T + 4), 56 + i)] for i in range(4)}
    a("v_lshlrev_b32 v%d, 7, v0" % vPF)
    a("s_lshl_b32 %s, s2, 13" % sPo)
    a("s_mov_b64 s[60:61], s[40:41]")
    a("s_mov_b32 s62, %d" % (4 * MB if 'wuv' in FL else 0))
    a("s_cmp_eq_u32 %s, 1" % sWave)
    a("s_cselect_b64 s[60:61], s[46:47], s[60:61]")
    a("s_cselect_b32 s62, %d, s62" % (6 * MB))
    a("s_cmp_eq_u32 %s, 2" % sWave)
    a("s_cselect_b64 s[60:61], s[44:45], s[60:61]")
    a("s_cselect_b32 s62, %d, s62" % (4 * MB))
    a("s_cmp_eq_u32 %s, 3" % sWave)
    a("s_cselect_b32 s62, 0, s62")
    a("s_mov_b32 s63, 0x00020000")
    D0, D1, D2 = [int(x) for x in os.environ.get("WD", "0,6,6").split(",")]
    a("s_mov_b32 s3, %d" % (D0 * MB))
    a("s_cmp_eq_u32 %s, 1" % sWave)
    a("s_cselect_b32 s3, %d, s3" % (D1 * MB))
    a("s_cmp_eq_u32 %s, 2" % sWave)
    a("s_cselect_b32 s3, %d, s3" % (D2 * MB))
    a("s_sub_u32 %s, %s, s3" % (sPo, sPo))
    a.label("Lc0", keep=True)
    now(*[[y.replace("@vm i00", "@vm p1") for y in z] for z in dma_w(1, 0)])
    a("s_lshl_b32 s4, %s, 13" % sWm)
    a("v_and_b32 v%d, 15, v0" % T)
    a("v_lshlrev_b32 v%d, 7, v%d" % (T, T))
    a("v_add_u32 v%d, s4, v%d" % (T, T))
    a("v_bfe_u32 v%d, v0, 1, 3" % (T + 1))
    a("v_lshrrev_b32 v%d, 4, v0" % (T + 2))
    a("v_xor_b32 v%d, v%d, v%d" % (T + 1, T + 1, T + 2))
    a("v_lshl_add_u32 v%d, v%d, 4, v%d" % (vXr, T + 1, T))
    a("v_xor_b32 v%d, 64, v%d" % (vXr + 1, vXr))
    a("v_bfe_u32 v%d, v0, 2, 2" % T)
    a("v_lshl_add_u32 v%d, v%d, 3, v%d" % (T + 5, T + 2, T))
    a("v_lshlrev_b32 v%d, 9, v%d" % (T + 1, T + 5))
    a("v_and_b32 v%d, 1, v0" % (T + 3))
    a("v_lshl_add_u32 v%d, v%d, 3, v%d" % (T + 1, T + 3, T + 1))
    a("v_add_u32 v%d, %d, v%d" % (T + 1, WB, T + 1))
    a("v_lshlrev_b32 v%d, 1, v%d" % (T, T))
    a("v_and_or_b32 v%d, v%d, 8, v%d" % (T, T + 5, T))
    a("v_bfe_u32 v%d, v0, 1, 1" % (T + 2))
    a("s_lshl_b32 s4, %s, 4" % sWn)
    for ni in range(8):
        a("s_add_u32 s3, s4, %d" % (2 * ni))
        a("v_add_u32 v%d, s3, v%d" % (T + 3, T + 2))
        a("v_xor_b32 v%d, v%d, v%d" % (T + 3, T + 3, T))
        a("v_lshl_add_u32 v%d, v%d, 4, v%d" % (vWr + ni, T + 3, T + 1))
    npf = 4 if 'notouch' in FL else 5
    for r in range(4):
        a("v_mov_b32 v%d, 0" % (T + 4 + r))
    a(";@waitvm i11")
    a("s_barrier")
    tl.stamp(1)
    for x in wread(0, 0) + wread(0, 1) + xread(0, 0) + xread(0, 1):
        a(x)
    now(*dma_x(0, 1))
    now(*dma_w(1, 1))
    a("s_barrier")
    code_touch(a, "Lc1", "Lc3", T, vPFd, 92)
    a.carry = units(*dma_x(1, 0)) + units(*dma_w(0, 0)) + ([] if FL2 else units(*dma_x(1, 1)) + units(*dma_w(0, 1)))
    carry0 = list(a.carry)
    a.label("Lc1", keep=True)
    a("s_cmp_lt_u32 s2, 128")
    a("s_cbranch_scc0 Lk1_kv")
    a(";@wtphase 1")
    dstep(a, False, first=True, withpf=True, mem=(None, clears))
    a("s_mov_b32 %s, 5" % sCnt)
    a.label("Lk1_ql", keep=True)
    dstep(a, False, withpf=True)
    a("s_sub_u32 %s, %s, 1" % (sCnt, sCnt))
    a("s_cmp_lg_u32 %s, 0" % sCnt)
    a("s_cbranch_scc1 Lk1_ql ;@keep")
    tail(a, False)
    tl.stamp(2)
    a("s_branch Lk1_b")
    for nm, reg, off in (("", 126, 128), ("q", 125, 0)):
        a.label("Lk1_spin" + nm)
        a("s_add_u32 s40, s40, 1")
        a("s_cmp_gt_u32 s40, %d" % envi("SPINMAX", 0x100000))
        a("s_cbranch_scc1 Lk1_got" + nm)
        a("s_sleep 2")
        a("buffer_load_dword v%d, v119, s[36:39], 0 offen offset:%d sc1 ;@cond" % (reg, off))
        a("s_waitcnt vmcnt(0)")
        a("v_cmp_gt_u32 vcc, 0x80, v%d" % reg)
        a("s_cbranch_vccnz Lk1_spin" + nm)
        a("s_branch Lk1_got" + nm)
    a.label("Lk1_kv")
    a.carry = carry0
    a("s_mov_b64 s[60:61], s[40:41]")
    a("s_mov_b32 s62, %d" % (4 * MB))
    a("s_and_b32 s3, s2, 127")
    a("s_lshl_b32 s3, s3, 2")
    a("s_add_u32 s3, s3, %s" % sWave)
    a("s_mul_i32 %s, s3, %d" % (sPo, NSPF * 128))
    dstep(a, False, first=True, sp=True, mem=(None, clears))
    a("s_mov_b32 %s, 2" % sCnt)
    a.label("Lk1_kl", keep=True)
    dstep(a, False, sp=True)
    a("s_sub_u32 %s, %s, 1" % (sCnt, sCnt))
    a("s_cmp_lg_u32 %s, 0" % sCnt)
    a("s_cbranch_scc1 Lk1_kl ;@keep")
    tl.stamp(4)
    a(";@wtphase 2")
    kv_seam(a)
    tl.stamp(5)
    a(";@wtphase 3")
    for s_ in range(2):
        I1, I2 = std_I(s_)
        step(a, s_, True, False, I1, I2, None, None, mem=held(4 + 4 * s_, 8 + 4 * s_))
    tail(a, True)
    tl.stamp(2)
    a.label("Lk1_b")
    tl.stamp(6)
    b_job(a, tl)
    tl.stamp(10)
    tl.lo = 4
    tl.dump(vT, "s101")
    n1 = len(a.ins)

    def publish_b(vZ, vOne):
        a("s_mov_b64 exec, 1")
        a("buffer_store_dword v%d, v%d, s[52:55], s65 offen sc1" % (vOne, vZ))
        a("s_mov_b64 exec, -1")
    a(";@wtphase 6")
    a.label("Lc2")
    k2.main(a, publish_b)
    a.label("Lc3")
    for i, c in enumerate(a.ins[:n1]):
        if c.wide_store_data and not (';@zero' in c.text and i > [x.label for x in a.ins].index("Lk1_kv")):
            left = set(c.wide_store_data)
            for p_ in reversed(a.ins[:i]):
                hit = left & p_.wr
                if hit:
                    assert (p_.text.endswith(", 0") if ';@zero' in c.text else p_.mn.startswith(("v_cvt_pk", "v_accvgpr_write"))), (c.text, p_.text)
                    left -= hit
                    if not left:
                        break
    for i, c in enumerate(a.ins[:n1]):
        if c.mn == "v_accvgpr_write_b32" and c.rd and min(r[1] for r in c.wr) >= aHOLD:
            for p_ in reversed(a.ins[:i]):
                if c.rd & p_.wr:
                    assert p_.mn.startswith("v_cvt_pk"), (c.text, p_.text)
                    break
    return a.finish(auto_lgkm=True), 512, 256, 256, 163840
```

```python
import math
from asmlib import Asm, Col, srd, v4, v2, f32bits
from common import *
import k2

vLane, vXd, vWd, vXr, vWr, vPF, vPFd, vT = 1, 2, 6, 10, 12, 20, 21, 24
ACC = 32
aACC7, aW, aX, aHOLD = 0, 32, 160, 192
sWave, sWm, sWn, sXo, sWo, sXend, sXre, sWend, sWre, sM0, sCnt, sLdx64, sM, sN = (
    "s20", "s21", "s22", "s23", "s24", "s25", "s26", "s27", "s28", "s29", "s30", "s31", "s52", "s53")
sPo, sPst, sPend, sPre = "s54", "s55", "s56", "s57"
XB, WB, SPARE = 0, 65536, 131072
SF = os.environ.get("K1SF", "sc1")
NSPS = envi("NSPS", 4)
NEARLY = envi("NEARLY", 14)
TARR = envi("TARR", 6)
PFD = envi("PFD", 4)


def a4(b):
    return "a[%d:%d]" % (b, b + 3)


def a2(b):
    return "a[%d:%d]" % (b, b + 1)


def acc(mi, ni):
    return v4(ACC + 4 * (8 * mi + ni)) if mi < 7 else a4(aACC7 + 4 * ni)


def wfr(buf, ni, hs):
    return aW + 64 * buf + 8 * ni + 4 * hs


def xfr(row, hs):
    return aX + 8 * (row % 4) + 4 * hs


def mfma(d, a_, b_, c):
    return "v_mfma_f32_16x16x32_bf16 %s, %s, %s, %s" % (d, a_, b_, c)


def xread(s, row):
    off = XB + s * 32768 + (row >> 2) * 16384 + (row & 3) * 2048
    return ["ds_read_b128 %s, v%d offset:%d" % (a4(xfr(row, hs)), vXr + hs, off) for hs in range(2)]


def wread(s, hs):
    L = []
    for ni in range(8):
        for j in range(2):
            L.append("ds_read_b64_tr_b16 %s, v%d offset:%d" % (a2(wfr(s, ni, hs) + 2 * j), vWr + ni, s * 32768 + hs * 16384 + j * 2048))
    return L


def dma_x(s, half):
    pre = ["s_add_u32 m0, %s, %d" % (sM0, XB + s * 32768 + half * 16384)]
    so = sXo
    if half:
        pre.append("s_add_u32 s3, %s, %s" % (sXo, sLdx64))
        so = "s3"
    ld = ["buffer_load_dwordx4 v%d, s[8:11], %s offen offset:%d lds ;@vm i%d%d" % (vXd + j, so, j * 1024, half, s) for j in range(4)]
    post = []
    if half:
        post = ["s_add_u32 %s, %s, 128" % (sXo, sXo), "s_cmp_eq_u32 %s, %s" % (sXo, sXend), "s_cselect_b32 %s, %s, %s" % (sXo, sXre, sXo)]
    return pre, ld, post


def dma_w(s, hs):
    pre = ["s_add_u32 m0, %s, %d" % (sM0, WB + s * 32768 + hs * 16384)]
    ld = ["buffer_load_dwordx4 v%d, s[12:15], %s offen offset:%d lds ;@vm i%d%d" % (vWd + j, sWo, j * 1024, hs, 1 - s) for j in range(4)]
    post = ["s_add_u32 %s, %s, %d" % (sWo, sWo, 32 * 8192)]
    if hs:
        post += ["s_cmp_eq_u32 %s, %s" % (sWo, sWend), "s_cselect_b32 %s, %s, %s" % (sWo, sWre, sWo),
                 "s_sub_u32 s6, s6, 1", "s_cmp_eq_u32 s6, 0", "s_cselect_b64 s[12:13], s[64:65], s[12:13]"]
    return pre, ld, post


def pf():
    return [["buffer_load_dword v%d, v%d, s[60:63], %s offen" % (vPFd, vPF, sPo), "s_add_u32 %s, %s, %d" % (sPo, sPo, MB)]]


FL2 = "fl3" not in FL
NSPF = envi("NSPF", 8)


def spf():
    L = ["s_buffer_load_dword s100, s[60:63], %s offset:%d ;@spf" % (sPo, 128 * i) for i in range(NSPF)]
    return [L[i:i + 2] for i in range(0, NSPF, 2)] + [["s_add_u32 %s, %s, %d" % (sPo, sPo, 512 * NSPF * 128)]]


def units(pre, ld, post):
    U = [pre + [ld[0]]] + [[x] for x in ld[1:]]
    if 'nodma' in FL:
        U = [pre]
    if post:
        U.append(post)
    return U


def step(a, s, swapped, first, I1, I2, vm1, vm2, wnext=True, xnext=True, extra=None, mem=None, sp=False):
    M = []
    for mi in range(8):
        for ni in range(8):
            for n, hs in enumerate((0, 1) if ni % 2 == 0 else (1, 0)):
                x, w, d = a4(xfr(mi, hs)), a4(wfr(s, ni, hs)), acc(mi, ni)
                c = "0" if (first and n == 0) else d
                M.append(mfma(d, x, w, c) if swapped else mfma(d, w, x, c))
    G = [[] for _ in range(128)]
    BX, BY = 2 * 16 + 7, 6 * 16 + 7
    nr = 'noreads' in FL
    for r in range(8):
        t = r + 2
        if t < 8:
            L = xread(s, t)
        else:
            L = xread(1 - s, t - 8) if xnext else []
        g = max(16 * r + 1, BX) if r == 2 else (max(16 * r + 1, BY) if r == 6 else 16 * r + 1)
        if not nr:
            G[g] += L
        G[16 * r + 15].append(";@need %s" % a4(xfr(r + 1, 1)))
    bar = lambda vm, tag: [("s_waitcnt vmcnt(%d) lgkmcnt(0)" % vm) if vm is not None else (";@waitvm %s lgkmcnt(0)" % tag)] + \
        ([] if 'nobar' in FL else ["s_barrier ;@keep"])
    G[BX] = bar(vm1, "i1%d" % s) + G[BX]
    G[BY] = bar(vm2, "i0%d" % (1 - s)) + G[BY]
    if wnext and not nr:
        L = wread(1 - s, 0)
        for i in range(8):
            G[3 + 4 * i] += L[2 * i:2 * i + 2]
        L = wread(1 - s, 1)
        for i in range(8):
            G[BX + 4 + 6 * i] += L[2 * i:2 * i + 2]
    if sp and 'nospf' not in FL:
        mem = dict(mem or {})
        for i, u in enumerate(spf()):
            mem[BX + 1 + i] = u + mem.get(BX + 1 + i, [])
    if mem:
        for g, L in sorted(mem.items()):
            while [y for y in G[g] if not y.startswith(";@need")]:
                g += 1
            G[g] = L + G[g]
    carry = a.carry
    a.carry = []
    free = [g for g in range(128) if not G[g]]
    def put(U, lo, hi):
        c = [g for g in free if lo <= g < hi]
        n = min(len(U), len(c))
        for i in range(n):
            g = c[(i * len(c)) // n]
            G[g] += U[i]
        for i in range(n):
            free.remove(c[(i * len(c)) // n])
        return U[n:]
    assert not put(carry, 0, BX - 2)
    assert not put(I1, BX + 1, BY - 2)
    k = (len(I2) * 2 + 4) // 5
    put(I2[:k], BY + 1, 127)
    a.carry = I2[k:]
    if extra:
        for g, L in extra.items():
            G[g] += L
    for i in range(128):
        a(M[i])
        for y in G[i]:
            a(y)
    a.nstep = getattr(a, 'nstep', 0) + 1
    a.tl.stamp(200 + a.nstep)


def tidy(U):
    if 'notidy' in FL:
        return U
    out = []
    for u in U:
        u = list(u)
        if out and any(x.startswith("buffer") for x in u):
            while u[0].startswith("s_"):
                out[-1].append(u.pop(0))
        if len(u) > 2 and all(x.startswith("s_") for x in u):
            c = Col()
            for x in u:
                c(x)
            A = c.atoms(1)
            out[-1] += A[0]
            out += A[1:2] + ([A[2] + A[3]] if len(A) > 3 else A[2:])
        else:
            out.append(u)
    return out


def std_I(s, withpf=False):
    if FL2:
        I1 = units(*dma_x(1 - s, 1)) + units(*dma_w(s, 1)) + (pf() if withpf else [])
        I2 = units(*dma_x(s, 0)) + units(*dma_w(1 - s, 0))
        return tidy(I1), tidy(I2)
    I1 = units(*dma_x(s, 0)) + units(*dma_w(1 - s, 0)) + (pf() if withpf else [])
    I2 = units(*dma_x(s, 1)) + units(*dma_w(1 - s, 1))
    return I1, I2


def dstep(a, swapped, first=False, withpf=False, sp=False, mem=(None, None)):
    for s in range(2):
        I1, I2 = std_I(s, withpf)
        step(a, s, swapped, first and s == 0, I1, I2, None, None, sp=sp, mem=mem[s])


def P(n):
    return ACC + 8 * n if n < 28 else ACC + 8 * (n - 28) + 4


def cvt4(d, r0, r1):
    return ["v_cvt_pk_bf16_f32 v%d, v%d, v%d" % (d, r0, r0 + 1), "v_cvt_pk_bf16_f32 v%d, v%d, v%d" % (d + 1, r0 + 2, r0 + 3),
            "v_cvt_pk_bf16_f32 v%d, v%d, v%d" % (d + 2, r1, r1 + 1), "v_cvt_pk_bf16_f32 v%d, v%d, v%d" % (d + 3, r1 + 2, r1 + 3)]


def scale(r):
    return ["v_pk_mul_f32 %s, %s, s[4:5]" % (v2(r + e), v2(r + e)) for e in (0, 2)]


def accrd(t, ni):
    return ["v_accvgpr_read_b32 v%d, a%d" % (t + e, aACC7 + 4 * ni + e) for e in range(4)]


def pack(kind, grp, dst7=None):
    L = []
    if kind in 'qk':
        for ds in range(4):
            n = 4 * grp + ds
            if grp < 7:
                r0, r1 = ACC + 8 * n, ACC + 8 * n + 4
            else:
                r0, r1 = vT, vT + 4
                L += accrd(r0, 2 * ds) + accrd(r1, 2 * ds + 1)
            if kind == 'q':
                L += scale(r0) + scale(r1)
            L += cvt4(P(n), r0, r1)
    else:
        for ni in ((0, 4, 2, 6, 1, 5, 3, 7) if grp < 3 else (0, 4, 6, 2, 1, 3, 5, 7)):
            r0 = ACC + 4 * (16 * grp + ni)
            if grp < 3:
                r1 = r0 + 32
            else:
                r1 = vT + 4 * (ni & 1)
                L += accrd(r1, ni)
            L += cvt4(P(8 * grp + ni), r0, r1)
    return L


def pack_extra(kind):
    ex = {}
    if kind in 'qk':
        for mi in range(7):
            L = pack(kind, mi)
            n = 14 if kind == 'q' else 8
            for i, x in enumerate(L):
                ex.setdefault(min(127, 16 * (mi + 1) + 3 + (i * n) // len(L)), []).append(x)
    else:
        for m in range(3):
            L = pack(kind, m)
            for i, x in enumerate(L):
                ex.setdefault(32 * (m + 1) + 3 + (i * 20) // len(L), []).append(x)
    return ex


def out_base(kind):
    sh = 14 if kind == 'q' else 15
    L = ["s_lshr_b32 s3, %s, 7" % sN, "s_add_u32 s3, s3, %s" % sWn, "s_lshl_b32 s3, s3, 5", "s_lshr_b32 s19, %s, 6" % sM, "s_add_u32 s3, s3, s19",
         "s_lshl_b32 s19, %s, 1" % sWm, "s_add_u32 s3, s3, s19", "s_lshl_b32 s92, s3, %d" % sh]
    if kind == 'v':
        L.append("s_add_u32 s92, s92, 16384")
    L.append("s_add_u32 s93, s92, %d" % (1 << sh))
    off, size = (WS_Q, 16 * MB) if kind == 'q' else (WS_KV, 32 * MB)
    L += ["s_add_u32 s16, s50, %d" % off, "s_addc_u32 s17, s51, 0", "s_mov_b32 s18, %d" % size, "s_mov_b32 s19, 0x00020000"]
    if kind == 'q':
        c = f32bits((128 ** -0.5) * math.log2(math.e))
        L += ["s_mov_b32 s4, 0x%08x" % c, "s_mov_b32 s5, 0x%08x" % c]
    return L


def store(n, reg=None):
    return ["s_add_u32 s94, s%d, %d" % (92 + (n >> 4), ((n >> 2) & 3) * 4096),
            "buffer_store_dwordx4 %s, v%d, s[16:19], s94 offen offset:%d %s ;@vm st" % (v4(P(n) if reg is None else reg), vLane, (n & 3) * 1024, SF)]


NH = envi("NH", 16)


def held(lo, hi, g0=8, g1=120):
    L = [n for n in range(28 - NH + lo, 28 - NH + min(hi, NH))]
    return {g0 + (i * (g1 - g0)) // max(1, len(L)): [x.replace(v4(P(n)), a4(aHOLD + 4 * (n - 28 + NH))) for x in store(n)] for i, n in enumerate(L)}


def kv_seam(a):
    I1, I2 = std_I(0)
    ex = {}
    for i, x in enumerate(out_base('k')):
        ex.setdefault(60 + i // 2, []).append(x.replace("s3", "s95"))
    step(a, 0, False, False, I1, I2, None, None, extra=ex)
    nd = 28 - NH
    pos = {n: max(30 + 16 * (n >> 2), 30 + (n * min(7 * 28, 110 + 16 * ((nd - 1) >> 2) - 30 + 14)) // max(nd, 1)) for n in range(nd)}
    I1, I2 = std_I(1)
    ex = pack_extra('k')
    park = ["v_accvgpr_write_b32 a%d, v%d" % (aHOLD + 4 * (n - nd) + e, P(n) + e) for n in range(nd, 28) for e in range(4)]
    late = []
    for x in park:
        r = int(x.split("v")[-1])
        g = 16 * ((r - ACC) // 32 + 1) + 12 + ((r - ACC) % 32) // 8
        if g < 128:
            ex.setdefault(g, []).append(x)
        else:
            late.append(x)
    step(a, 1, False, False, I1, I2, None, None, extra=ex, mem={g: store(n) for n, g in pos.items() if g < 126})
    I1, I2 = std_I(0)
    mem = {max(g - 128, 0): store(n) for n, g in pos.items() if g >= 126}
    ex = {}
    for i, x in enumerate(late):
        ex.setdefault(i // 2, []).append(x)
    for ds in range(4):
        g = 20 + 24 * ds
        L = accrd(vT, 2 * ds) + accrd(vT + 4, 2 * ds + 1) + cvt4(vT, vT, vT + 4)
        for i, x in enumerate(L):
            ex.setdefault(g + i // 2, []).append(x)
        mem[g + 9] = store(28 + ds, vT)
    step(a, 0, True, True, I1, I2, None, None, extra=ex, mem=mem)
    I1, I2 = std_I(1)
    step(a, 1, True, False, I1, I2, None, None, mem=held(0, 4))


def tail(a, swapped):
    kind = 'v' if swapped else 'q'
    I1, I2 = std_I(0)
    step(a, 0, swapped, False, I1, I2, None, None, mem=held(12, 16) if swapped else None)
    I1, I2 = (std_I(1)[0], units(*dma_x(1, 0))) if FL2 else (units(*dma_x(1, 0)), units(*dma_x(1, 1)))
    step(a, 1, swapped, False, I1, I2, None, None)
    S = b_setup() + out_base(kind)
    ex = {}
    for i, x in enumerate(S):
        ex.setdefault((52 + (i * 48) // len(S)) if FL2 else (41 + (i * 58) // len(S)), []).append(x)
    step(a, 0, swapped, False, [], b_dma_x(0) + b_dma_w(0), None, None, extra=ex,
         mem={40 + 2 * i: u for i, u in enumerate(units(*dma_x(1, 1))[:4])} if FL2 else None)
    if swapped:
        pos = {n: (58 + 4 * n if n < 8 else 92 + 6 * (n - 8)) for n in range(NEARLY)}
    else:
        pos = {n: 36 + (88 * n) // 13 for n in range(NEARLY)}
    step(a, 1, swapped, False, b_dma_x(1) + b_dma_w(1), b_dma_x(2) + b_dma_w(2), None, 63, wnext=False, xnext=False, extra=pack_extra(kind),
         mem={g: store(n) for n, g in pos.items()})
    for x in pack(kind, 3 if swapped else 7):
        a(x)


def epilogue(a, kind):
    T = vT
    if kind == 'q':
        a("s_mov_b32 s3, 0x%08x" % f32bits((128 ** -0.5) * math.log2(math.e)))
        a("v_mov_b32 v%d, s3" % vXr)
    a("s_lshr_b32 s4, %s, 7" % sN)
    a("s_add_u32 s4, s4, %s" % sWn)
    a("s_lshl_b32 s4, s4, 5")
    a("s_lshr_b32 s5, %s, 6" % sM)
    a("s_add_u32 s4, s4, s5")
    a("s_lshl_b32 s5, %s, 1" % sWm)
    a("s_add_u32 s4, s4, s5")
    sh = 14 if kind == 'q' else 15
    a("s_lshl_b32 s4, s4, %d" % sh)
    k = 0

    def get(mi, ni, t):
        if mi < 7:
            return ACC + 4 * (8 * mi + ni)
        for e in range(4):
            a("v_accvgpr_read_b32 v%d, a%d" % (t + e, aACC7 + 4 * ni + e))
        return t
    if kind == 'v':
        pairs = [((mi, ni), (mi + 1, ni), (mi >> 2) * 32768 + 16384 + ((mi >> 1) & 1) * 8192 + ni * 1024) for mi in range(0, 8, 2) for ni in range(8)]
    else:
        pairs = [((mi, 2 * ds), (mi, 2 * ds + 1), (mi >> 2) * (1 << sh) + (mi & 3) * 4096 + ds * 1024) for mi in range(8) for ds in range(4)]
    last = None
    for p0, p1, off in pairs:
        r0 = get(p0[0], p0[1], ACC)
        r1 = get(p1[0], p1[1], ACC + 4)
        if kind == 'q':
            for r in (r0, r0 + 2, r1, r1 + 2):
                a("v_pk_mul_f32 %s, %s, %s op_sel_hi:[1,0]" % (v2(r), v2(r), v2(vXr)))
        u = T + 4 * (k % 2)
        k += 1
        a("v_cvt_pk_bf16_f32 v%d, v%d, v%d" % (u, r0, r0 + 1))
        a("v_cvt_pk_bf16_f32 v%d, v%d, v%d" % (u + 1, r0 + 2, r0 + 3))
        a("v_cvt_pk_bf16_f32 v%d, v%d, v%d" % (u + 2, r1, r1 + 1))
        a("v_cvt_pk_bf16_f32 v%d, v%d, v%d" % (u + 3, r1 + 2, r1 + 3))
        if last != off >> 12:
            a("s_add_u32 s5, s4, %d" % (off & ~4095))
            last = off >> 12
        a("buffer_store_dwordx4 %s, v%d, s[16:19], s5 offen offset:%d %s" % (v4(u), vLane, off & 4095, SF))


vBX, vBH, vBW = 2, 20, (6, 7, 8, 9, 21, 22)
vBXr, vBWr = 10, 14
aBACC, aBW, aBX = 68, 176, 224
STG = 98304
vST = 124
BXO = (131072, 0, 18432)
BWO = (65536, 98304, 36864)
sBX, sBH, sBW, sRB, sCP = "s23", "s24", "s25", "s26", "s27"
PCR = 6
BL = 3
PITCH = 400


def bacc(mi, i):
    return aBACC + 4 * (3 * mi + i)


def bxfr(t, row, hs):
    return aBX + 8 * ((9 * t + row) % 4) + 4 * hs


def bwfr(t, i, hs):
    return aBW + 24 * (t % 2) + 8 * i + 4 * hs


def b_ids(rb, cp):
    return ["s_and_b32 s3, s2, 1", "s_lshl_b32 s3, s3, 3", "s_bfe_u32 s4, s2, 0x30003", "s_add_u32 %s, s3, s4" % rb,
            "s_bfe_u32 s3, s2, 0x20001", "s_lshl_b32 s3, s3, 2", "s_lshr_b32 s4, s2, 6", "s_xor_b32 s4, s4, %d" % envi("CPX", 3), "s_add_u32 %s, s3, s4" % cp]


def b_setup():
    T = vT
    L = []
    a = L.append
    L += b_ids(sRB, sCP)
    a("s_lshl_b32 %s, %s, 18" % (sBX, sRB))
    a("s_sub_u32 %s, %s, 32768" % (sBH, sBX))
    a("s_max_i32 %s, %s, 0" % (sBH, sBH))
    a("s_lshl_b32 %s, %s, 7" % (sBW, sCP))
    a("s_mov_b64 s[8:9], s[44:45]")
    a("s_mov_b32 s10, %d" % (4 * MB))
    a("s_mov_b64 s[12:13], s[46:47]")
    a("s_mov_b32 s14, %d" % (6 * MB))
    a("s_mov_b64 s[36:37], s[90:91]")
    a("s_mov_b32 s38, 256")
    a("s_mov_b32 s39, 0x00020000")
    a("s_lshl_b32 s28, %s, 9" % sWave)
    a("s_mul_i32 s30, %s, 6144" % sWave)
    a("s_lshl_b32 s3, %s, 5" % sWave)
    a("v_lshrrev_b32 v%d, 3, v0" % T)
    a("v_and_b32 v%d, 7, v0" % (T + 1))
    a("v_add_u32 v%d, s3, v%d" % (T + 4, T))
    for j in range(4):
        a("v_add_u32 v%d, %d, v%d" % (T + 2, 8 * j, T + 4))
        a("v_bfe_u32 v%d, v%d, 1, 3" % (T + 3, T + 2))
        a("v_xor_b32 v%d, v%d, v%d" % (T + 3, T + 3, T + 1))
        a("v_lshlrev_b32 v%d, 11, v%d" % (T + 2, T + 2))
        a("v_lshl_add_u32 v%d, v%d, 4, v%d" % (T + 2, T + 3, T + 2))
        a("v_subrev_u32 v%d, %d, v%d" % (vBX + j, j * 1024, T + 2))
    a("s_lshl_b32 s3, %s, 2" % sWave)
    a("v_lshrrev_b32 v%d, 5, v0" % (T + 2))
    a("v_add_u32 v%d, s3, v%d" % (T + 2, T + 2))
    a("v_bfe_u32 v%d, v0, 2, 3" % (T + 5))
    for i, d in enumerate((vBH, 23)):
        if i:
            a("v_add_u32 v%d, 2, v%d" % (T + 2, T + 2))
        a("v_bfe_u32 v%d, v%d, 1, 3" % (T + 3, T + 2))
        a("v_xor_b32 v%d, v%d, v%d" % (T + 3, T + 3, T + 5))
        a("v_lshlrev_b32 v%d, 4, v%d" % (T + 3, T + 3))
        a("v_and_b32 v%d, 3, v0" % (T + 6))
        a("v_lshl_add_u32 v%d, v%d, 2, v%d" % (T + 3, T + 6, T + 3))
        a("v_lshl_add_u32 v%d, v%d, 11, v%d" % (d, T + 2, T + 3))
    a("v_subrev_u32 v23, 256, v23")
    a("s_mul_i32 s3, %s, 48" % sWave)
    a("v_add_u32 v%d, s3, v%d" % (T + 4, T))
    for j in range(6):
        a("v_add_u32 v%d, %d, v%d" % (T + 2, 8 * j, T + 4))
        a("v_mul_u32_u24 v%d, 0xaaab, v%d" % (T + 3, T + 2))
        a("v_lshrrev_b32 v%d, 17, v%d" % (T + 3, T + 3))
        a("v_lshrrev_b32 v%d, 1, v%d" % (T + 5, T + 3))
        a("v_and_b32 v%d, 4, v%d" % (T + 5, T + 5))
        a("v_and_or_b32 v%d, v%d, 2, v%d" % (T + 3, T + 3, T + 5))
        a("v_xor_b32 v%d, v%d, v%d" % (T + 3, T + 3, T + 1))
        a("v_lshlrev_b32 v%d, 11, v%d" % (T + 2, T + 2))
        a("v_lshl_add_u32 v%d, v%d, 4, v%d" % (T + 2, T + 3, T + 2))
        a("v_subrev_u32 v%d, %d, v%d" % (vBW[j], (j & 3) * 1024, T + 2))
    return L


def b_dma_x(t):
    st = t % 3
    U = [["s_add_u32 m0, s28, %d" % BXO[st], "buffer_load_dword v%d, s[8:11], %s offen lds ;@vm bx%d" % (vBH, sBH, t)],
         ["buffer_load_dword v23, s[8:11], %s offen offset:256 lds ;@vm bx%d" % (sBH, t)]]
    for j in range(4):
        U.append((["s_add_u32 m0, %s, %d" % (sM0, BXO[st] + 2048)] if j == 0 else []) +
                 ["buffer_load_dwordx4 v%d, s[8:11], %s offen offset:%d lds ;@vm bx%d" % (vBX + j, sBX, j * 1024, t)])
    U[-1] += ["s_add_u32 %s, %s, 128" % (sBX, sBX)]
    U[1] += ["s_add_u32 %s, %s, 128" % (sBH, sBH)]
    return U


def b_dma_w(t):
    st = t % 3
    U = []
    for j in range(6):
        U.append((["s_add_u32 m0, s30, %d" % (BWO[st] + (j >> 2) * 4096)] if j % 4 == 0 else []) +
                 ["buffer_load_dwordx4 v%d, s[12:15], %s offen offset:%d lds ;@vm bw%d" % (vBW[j], sBW, (j & 3) * 1024, t)])
    U[-1] += ["s_add_u32 %s, %s, %d" % (sBW, sBW, 64 * 6144)]
    return U


def b_xread(t, row):
    st = t % 3
    return ["ds_read_b128 %s, v%d offset:%d" % (a4(bxfr(t, row, hs)), vBXr + (2 if st == 0 else 0) + hs, (0 if st == 0 else BXO[st]) + row * 2048) for hs in range(2)]


def b_wread(t):
    st = t % 3
    L = []
    for hs in range(2):
        for i in range(3):
            for j in range(2):
                off = (0 if st == 1 else BWO[st] - BWO[2]) + (hs * 32 + j * 4) * 384
                L.append("ds_read_b64_tr_b16 %s, v%d offset:%d" % (a2(bwfr(t, i, hs) + 2 * j), vBWr + (3 if st == 1 else 0) + i, off))
    return L


def b_stage_out(mi):
    L = []
    for i in range(3):
        t = vT + 4 * (i % 2)
        L += ["v_accvgpr_read_b32 v%d, a%d" % (t + e, bacc(mi, i) + e) for e in range(4)]
        L += ["v_cvt_pk_bf16_f32 v%d, v%d, v%d" % (t, t, t + 1), "v_cvt_pk_bf16_f32 v%d, v%d, v%d" % (t + 1, t + 2, t + 3),
              "ds_write_b64 v%d, %s offset:%d" % (vST, v2(t), mi * 16 * PITCH + i * 32)]
    return L


def b_step(a, t, stores, valu=None, late=None, post_bar=None):
    M = []
    for mi in range(9):
        for i in range(3):
            for n, hs in enumerate((0, 1) if (3 * mi + i) % 2 == 0 else (1, 0)):
                d = a4(bacc(mi, i))
                M.append(mfma(d, a4(bwfr(t, i, hs)), a4(bxfr(t, mi, hs)), "0" if (t == 0 and n == 0) else d))
    G = [[] for _ in range(54)]
    BB = 6 * (9 - BL) + 4
    for r in range(9):
        q = r + BL
        if q < 9:
            G[6 * r] += b_xread(t, q)
        elif t < 15:
            G[max(6 * r, BB)] += b_xread(t + 1, q - 9)
        if r < 8 or t < 15:
            G[6 * r + 5].append(";@need %s" % a4(bxfr(t, r + 1, 1) if r < 8 else bxfr(t + 1, 0, 1)))
    if t < 15:
        tags = "bx%d" % (t + 1) + (",bw%d" % (t + 2) if t + 2 < 16 else "")
        post = []
        if t == TARR:
            tags += ",st"
            post = ["s_cmp_lg_u32 s101, 0", "s_cbranch_scc1 Lk1_arr ;@keep", "v_mov_b32 v127, 1", "s_and_b32 s41, s2, 128",
                    "s_mov_b64 exec, 1", "buffer_atomic_add v127, off, s[36:39], s41 sc1 ;@cond", "s_mov_b64 exec, -1", "Lk1_arr: ;@keep"]
        G[BB] = [";@waitvm %s lgkmcnt(0)" % tags, "s_barrier ;@keep"] + G[BB] + post + (post_bar or [])
        L = b_wread(t + 1)
        for i in range(6):
            G[2 + 6 * i] += L[2 * i:2 * i + 2]
    carry = a.carry
    I = [] if 'stlast' in FL else list(stores)
    if t + 3 < 16:
        I += b_dma_x(t + 3)
    if t + 4 < 16:
        I += b_dma_w(t + 4)
    if 'stlast' in FL:
        I += list(stores)
    I = tidy(I) + (late or [])
    free = [g for g in range(54) if not G[g] or G[g][0].startswith(";@need")]

    def put(U, lo, hi):
        c = [g for g in free if lo <= g < hi]
        assert len(U) <= len(c), (len(U), len(c))
        pos = [c[(i * len(c)) // len(U)] for i in range(len(U))]
        for g, u in zip(pos, U):
            G[g] = u + G[g]
            free.remove(g)
    put(carry, 0, (BB - 1) if t < 15 else 54)
    k = min(len(I), 4 if t < 14 else 7)
    put(I[:k], BB + 1, 54)
    a.carry = I[k:]
    if valu:
        lo, hi, U = valu
        for i, u in enumerate(U):
            G[lo + (i * (hi - lo)) // len(U)] += u
    if t == 15:
        G[BB] = ["s_waitcnt lgkmcnt(0)", "s_barrier ;@keep"] + G[BB]
        for mi in range(7):
            L = b_stage_out(mi)
            g0 = 6 * (mi + 2) if mi != 5 else BB + 1
            n = 6 if mi != 5 else 7
            for i in range(n):
                G[g0 + i] += L[(i * 21) // n:((i + 1) * 21) // n]
    for i in range(54):
        a(M[i])
        for y in G[i]:
            a(y)


def b_job(a, tl):
    T = vT
    a("v_and_b32 v%d, 15, v0" % T)
    a("v_lshlrev_b32 v%d, 7, v%d" % (T, T))
    a("v_bfe_u32 v%d, v0, 1, 3" % (T + 1))
    a("v_lshrrev_b32 v%d, 4, v0" % (T + 2))
    a("v_xor_b32 v%d, v%d, v%d" % (T + 1, T + 1, T + 2))
    a("v_lshl_add_u32 v%d, v%d, 4, v%d" % (vBXr, T + 1, T))
    a("v_xor_b32 v%d, 64, v%d" % (vBXr + 1, vBXr))
    a("v_add_u32 v%d, %d, v%d" % (vBXr + 2, BXO[0], vBXr))
    a("v_add_u32 v%d, %d, v%d" % (vBXr + 3, BXO[0], vBXr + 1))
    a("v_bfe_u32 v%d, v0, 2, 2" % T)
    a("v_lshl_add_u32 v%d, v%d, 3, v%d" % (T + 5, T + 2, T))
    a("v_mul_u32_u24 v%d, 384, v%d" % (T + 1, T + 5))
    a("v_and_b32 v%d, 1, v0" % (T + 3))
    a("v_lshl_add_u32 v%d, v%d, 3, v%d" % (T + 1, T + 3, T + 1))
    a("v_add_u32 v%d, %d, v%d" % (T + 1, BWO[2], T + 1))
    a("v_lshrrev_b32 v%d, 1, v%d" % (T, T + 5))
    a("v_and_b32 v%d, 4, v%d" % (T, T))
    a("v_and_or_b32 v%d, v%d, 2, v%d" % (T, T + 5, T))
    a("v_bfe_u32 v%d, v0, 1, 1" % (T + 2))
    a("s_mul_i32 s4, %s, 3" % sWave)
    for i in range(3):
        a("s_add_u32 s3, s4, %d" % i)
        a("s_and_b32 s5, s3, 3")
        a("s_lshl_b32 s5, s5, 1")
        a("s_lshr_b32 s3, s3, 2")
        a("s_lshl_b32 s3, s3, 7")
        a("v_add_u32 v%d, s5, v%d" % (T + 3, T + 2))
        a("v_xor_b32 v%d, v%d, v%d" % (T + 3, T + 3, T))
        a("v_lshl_add_u32 v%d, v%d, 4, v%d" % (T + 3, T + 3, T + 1))
        a("v_add_u32 v%d, s3, v%d" % (vBWr + i, T + 3))
        a("v_add_u32 v%d, %d, v%d" % (vBWr + 3 + i, BWO[1] - BWO[2], vBWr + i))
    a("s_barrier")
    tl.stamp(8)
    for x in b_wread(0):
        a(x)
    for r in range(BL):
        for x in b_xread(0, r):
            a(x)
    a("s_waitcnt lgkmcnt(0)")
    a("s_barrier")
    a.carry = a.carry + b_dma_w(3)
    vQa, vKa, vVa = 120, 121, 122
    MA, MB_, MA0, ONE = 144, 148, 152, 156
    QF, KF, VF, SS, OO, LL, MX = 32, 48, 68, 88, 32, 120, 136
    NEG = 0xf149f2ca
    T = 128
    c_ = Col()
    c_("v_and_b32 v%d, 15, v0" % T)
    c_("v_mul_u32_u24 v%d, %d, v%d" % (T, PITCH, T))
    c_("v_lshrrev_b32 v%d, 4, v0" % (T + 1))
    c_("v_lshl_add_u32 v%d, v%d, 3, v%d" % (T, T + 1, T))
    c_("s_mul_i32 s3, %s, 96" % sWave)
    c_("s_add_u32 s3, s3, %d" % STG)
    c_("v_add_u32 v%d, s3, v%d" % (vST, T))
    c_("v_and_b32 v%d, 15, v0" % T)
    c_("v_lshrrev_b32 v%d, 4, v0" % (T + 1))
    c_("s_add_u32 s3, %s, 16" % sWm)
    c_("v_lshl_add_u32 v%d, v%d, 1, s3" % (T + 2, T))
    c_("s_lshl_b32 s4, %s, 6" % sWn)
    c_("s_add_u32 s4, s4, %d" % STG)
    c_("v_mul_u32_u24 v%d, %d, v%d" % (vQa, PITCH, T + 2))
    c_("v_lshl_add_u32 v%d, v%d, 4, v%d" % (vQa, T + 1, vQa))
    c_("v_add_u32 v%d, s4, v%d" % (vQa, vQa))
    c_("v_subrev_u32 v%d, 32, v%d" % (T + 2, T + 2))
    c_("v_max_i32 v%d, 0, v%d" % (T + 2, T + 2))
    c_("v_mul_u32_u24 v%d, %d, v%d" % (vKa, PITCH, T + 2))
    c_("v_lshl_add_u32 v%d, v%d, 4, v%d" % (vKa, T + 1, vKa))
    c_("v_add_u32 v%d, s4, v%d" % (vKa, vKa))
    c_("v_bfe_u32 v%d, v0, 2, 2" % (T + 3))
    c_("v_lshl_add_u32 v%d, v%d, 2, v%d" % (T + 3, T + 1, T + 3))
    c_("v_lshl_add_u32 v%d, v%d, 1, s3" % (T + 3, T + 3))
    c_("v_and_b32 v%d, 3, v0" % (T + 4))
    c_("v_lshlrev_b32 v%d, 3, v%d" % (T + 4, T + 4))
    c_("v_add_u32 v%d, s4, v%d" % (T + 4, T + 4))
    c_("v_mad_u32_u24 v%d, v%d, s5, v%d" % (vVa, T + 3, T + 4) if False else "s_movk_i32 s5, %d" % PITCH)
    c_("v_mad_u32_u24 v%d, v%d, s5, v%d" % (vVa, T + 3, T + 4))
    c_("v_subrev_u32 v%d, 32, v%d" % (T + 3, T + 3))
    c_("v_max_i32 v%d, 0, v%d" % (T + 3, T + 3))
    c_("v_mad_u32_u24 v%d, v%d, s5, v%d" % (vVa + 1, T + 3, T + 4))
    c_("v_lshlrev_b32 v%d, 2, v%d" % (T + 1, T + 1))
    c_("v_sub_u32 v%d, v%d, v%d" % (T, T, T + 1))
    c_("v_mov_b32 v%d, 0x%08x" % (T + 1, NEG))
    c_("s_cmp_eq_u32 %s, 0" % sRB)
    c_("s_cselect_b32 s3, 0x%08x, 0" % NEG)
    for r in range(4):
        c_("v_cmp_lt_i32 vcc, %d, v%d" % (r - 9, T))
        c_("v_cndmask_b32 v%d, 0, v%d, vcc" % (MA + r, T + 1))
        c_("v_subrev_u32 v%d, %d, v%d" % (T + 2, r, T))
        c_("v_cmp_lt_u32 vcc, 7, v%d" % (T + 2))
        c_("v_cndmask_b32 v%d, 0, v%d, vcc" % (MB_ + r, T + 1))
        c_("v_min_f32 v%d, s3, v%d" % (MA0 + r, MA + r))
        c_("v_mov_b32 v%d, 0x3f803f80" % (ONE + r))
    srd(c_, 16, 50, 51, 4 * MB, WS_OB)
    c_("s_lshl_b32 s3, %s, 18" % sRB)
    c_("s_lshl_b32 s4, %s, 14" % sCP)
    c_("s_add_u32 s3, s3, s4")
    c_("s_lshl_b32 s4, %s, 13" % sWm)
    c_("s_add_u32 s3, s3, s4")
    c_("s_lshl_b32 s4, %s, 10" % sWn)
    c_("s_add_u32 s6, s3, s4")
    c = (32 ** -0.5) * math.log2(math.e)
    c_("s_mov_b32 s7, 0x%08x" % f32bits(c))
    c_("s_lshl_b32 s65, %s, 8" % sRB)
    c_("s_lshl_b32 s3, %s, 4" % sCP)
    c_("s_add_u32 s65, s65, s3")
    c_("s_lshl_b32 s3, s101, 2")
    c_("s_add_u32 s65, s65, s3")
    c_("s_add_u32 s65, s65, %d" % FLG_B)
    c_("s_mov_b32 s40, 0")
    c_("v_mov_b32 v119, 0")
    c_("s_mov_b64 s[4:5], s[50:51]")
    k2.early_q(c_)
    A1 = c_.atoms(2)
    c_ = Col()
    k2.early(c_)
    A2 = c_.atoms(2)
    LQ, L1, L2 = k2.early_loads()
    h = len(A1) // 2
    TQ = envi("TQ", 12)
    for t in range(16):
        kw = {}
        if t in (8, 13):
            z = ["v_mov_b32 v%d, 0" % r for r in range(k2.OV + (0 if t == 8 else 48), k2.OV + (48 if t == 8 else 96))]
            kw['valu'] = (0, 54, [z[i:i + 2] for i in range(0, 48, 2)])
        if t == 9:
            kw['valu'] = (0, 54, A1[:h])
        if t == 10:
            kw['valu'] = (0, 38, A1[h:])
        if t == TQ - 1:
            kw['late'] = [["buffer_load_dword v125, v119, s[36:39], 0 offen sc1"]]
        if t == TQ:
            kw['post_bar'] = [";@waitvm pq", "v_cmp_gt_u32 vcc, 0x80, v125", "s_cbranch_vccnz Lk1_spinq ;@keep", "Lk1_gotq: ;@keep"]
            kw['late'] = LQ[:8]
        if t == TQ + 1:
            kw['late'] = LQ[8:]
        if t == 13:
            kw['late'] = kw.get('late', []) + [["buffer_load_dword v126, v119, s[36:39], 0 offen offset:128 sc1 ;@vm pc"]]
            kw['latefirst'] = True
        if t == 14:
            kw['valu'] = (0, 38, A2)
            kw['post_bar'] = [";@waitvm pc", "v_cmp_gt_u32 vcc, 0x80, v126", "s_cbranch_vccnz Lk1_spin ;@keep", "Lk1_got: ;@keep"]
            kw['late'] = L1
        kw.pop('latefirst', None)
        a(";@wtphase %d" % (4 if t < 9 else 5))
        b_step(a, t, a.bstores[t], **kw)
        tl.stamp(20 + t)
    a("s_mov_b64 s[44:45], s[42:43]")
    assert not a.carry
    tl.stamp(9)
    for mi in (7, 8):
        for x in b_stage_out(mi):
            a(x)
    a("s_waitcnt lgkmcnt(0)")
    a("s_barrier")
    n0 = len(a.ins)
    a("ds_read_b128 %s, v%d offset:128" % (v4(KF), vKa))
    for q in range(4):
        a("ds_read_b128 %s, v%d offset:%d" % (v4(QF + 4 * q), vQa, q * 32 * PITCH))
        a("ds_read_b128 %s, v%d offset:%d" % (v4(KF + 4 + 4 * q), vQa, q * 32 * PITCH + 128))
    for f in range(2):
        a("ds_read_b64_tr_b16 %s, v%d offset:%d" % (v2(VF + 10 * f), vVa + 1, 256 + 32 * f))
        for q in range(4):
            a("ds_read_b64_tr_b16 %s, v%d offset:%d" % (v2(VF + 10 * f + 2 + 2 * q), vVa, q * 32 * PITCH + 256 + 32 * f))
    for r in range(k2.aO, k2.aO + 48):
        a("v_accvgpr_write_b32 a%d, 0" % r)
    for q in range(4):
        a(mfma(v4(SS + 8 * q), v4(KF + 4 * q), v4(QF + 4 * q), v4(MA0 if q == 0 else MA)))
        a(mfma(v4(SS + 8 * q + 4), v4(KF + 4 * q + 4), v4(QF + 4 * q), v4(MB_)))
    for q in range(4):
        s_, m = SS + 8 * q, MX + q
        a("v_max3_f32 v%d, v%d, v%d, v%d" % (m, s_, s_ + 1, s_ + 2))
        a("v_max3_f32 v%d, v%d, v%d, v%d" % (m, m, s_ + 3, s_ + 4))
        a("v_max3_f32 v%d, v%d, v%d, v%d" % (m, m, s_ + 5, s_ + 6))
        a("v_max_f32 v%d, v%d, v%d" % (m, m, s_ + 7))
    for sw in ("v_permlane16_swap_b32", "v_permlane32_swap_b32"):
        for q in range(4):
            a("v_mov_b32 v%d, v%d" % (MX + 4 + q, MX + q))
        for q in range(4):
            a("%s v%d, v%d" % (sw, MX + q, MX + 4 + q))
        for q in range(4):
            a("v_max_f32 v%d, v%d, v%d" % (MX + q, MX + q, MX + 4 + q))
    for q in range(4):
        a("v_mul_f32 v%d, s7, v%d" % (MX + q, MX + q))
    for q in range(4):
        s_ = SS + 8 * q
        for e in range(8):
            a("v_fma_f32 v%d, v%d, s7, -v%d" % (s_ + e, s_ + e, MX + q))
        for e in range(8):
            a("v_exp_f32 v%d, v%d" % (s_ + e, s_ + e))
    for q in range(4):
        s_ = SS + 8 * q
        for e in range(4):
            a("v_cvt_pk_bf16_f32 v%d, v%d, v%d" % (s_ + e, s_ + 2 * e, s_ + 2 * e + 1))
    for q in range(4):
        a(mfma(v4(LL + 4 * q), v4(ONE), v4(SS + 8 * q), "0"))
        for f in range(2):
            a(mfma(v4(OO + 8 * q + 4 * f), v4(VF + 10 * f + 2 * q), v4(SS + 8 * q), "0"))
    for q in range(4):
        a("v_rcp_f32 v%d, v%d" % (LL + 4 * q, LL + 4 * q))
    for q in range(4):
        o = OO + 8 * q
        for e in range(0, 8, 2):
            a("v_pk_mul_f32 %s, %s, %s op_sel_hi:[1,0]" % (v2(o + e), v2(o + e), v2(LL + 4 * q)))
        for e in range(4):
            a("v_cvt_pk_bf16_f32 v%d, v%d, v%d" % (o + e, o + 2 * e, o + 2 * e + 1))
        a("s_add_u32 s3, s6, %d" % (q * 2048))
        a("buffer_store_dwordx4 %s, v%d, s[16:19], s3 offen sc1 ;@vm ob" % (v4(o), vLane))
    from asmlib import Ins
    body = a.ins[n0:]
    del a.ins[n0:]
    lo, hi = 20, len(body) - 45
    assert NEARLY + NSPS * (TARR - 1) >= 32 and TARR <= 9
    for i, x in enumerate(body):
        a.ins.append(x)
        if lo <= i < hi:
            for k in range(((i - lo) * len(L2)) // (hi - lo), ((i - lo + 1) * len(L2)) // (hi - lo)):
                a.ins += [Ins(y) for y in L2[k]]


def gen():
    a = Asm()
    a.carry = []
    a.bstores = [[store(n) for n in range(NEARLY + NSPS * t, min(32, NEARLY + NSPS * (t + 1)))] for t in range(16)]
    tl = TL(a, 0, 50, 'tl' in FL)
    a.tl = tl
    T = vT
    a("s_cmp_lt_u32 s2, 256")
    a("s_cbranch_scc1 Lk1_go")
    a("s_endpgm")
    a.label("Lk1_go")
    if 'swap' in FL:
        a("s_xor_b32 s2, s2, 128")
    tl.early()
    a("s_load_dwordx16 s[32:47], s[0:1], 0")
    a("s_load_dwordx2 s[48:49], s[0:1], 64")
    a("s_load_dwordx2 s[50:51], s[0:1], 88")
    a("s_load_dwordx2 s[90:91], s[0:1], 80")
    a("v_lshrrev_b32 v%d, 6, v0" % T)
    a("v_readfirstlane_b32 %s, v%d" % (sWave, T))
    a("v_and_b32 v0, 63, v0")
    a("v_lshlrev_b32 v%d, 4, v0" % vLane)
    a("s_mov_b32 s101, %s" % sWave)
    a("s_lshr_b32 %s, %s, 1" % (sWm, sWave))
    a("s_and_b32 %s, %s, 1" % (sWn, sWave))
    a("s_lshl_b32 %s, %s, 12" % (sM0, sWave))
    a("s_and_b32 s3, s2, 1")
    a("s_lshl_b32 s3, s3, 2")
    a("s_bfe_u32 s6, s2, 0x20003")
    a("s_add_u32 s3, s3, s6")
    a("s_lshl_b32 %s, s3, 8" % sM)
    a("s_bfe_u32 s3, s2, 0x20001")
    a("s_lshl_b32 s3, s3, 2")
    a("s_bfe_u32 s7, s2, 0x20005")
    a("s_add_u32 s3, s3, s7")
    a("s_lshl_b32 %s, s3, 8" % sN)
    a("s_cmp_lt_u32 s2, 128")
    a("s_cselect_b32 s5, 11, 10")
    a("s_lshl_b32 s3, %s, 7" % sWm)
    a("s_lshl_b32 s4, %s, 5" % sWn)
    a("s_add_u32 s3, s3, s4")
    a("v_lshrrev_b32 v%d, 3, v0" % T)
    a("v_add_u32 v%d, s3, v%d" % (T, T))
    a("v_and_b32 v%d, 7, v0" % (T + 1))
    for j in range(4):
        a("v_add_u32 v%d, %d, v%d" % (T + 2, 8 * j, T))
        a("v_bfe_u32 v%d, v%d, 1, 3" % (T + 3, T + 2))
        a("v_xor_b32 v%d, v%d, v%d" % (T + 3, T + 3, T + 1))
        a("v_lshlrev_b32 v%d, s5, v%d" % (T + 2, T + 2))
        a("v_lshl_add_u32 v%d, v%d, 4, v%d" % (T + 2, T + 3, T + 2))
        a("v_subrev_u32 v%d, %d, v%d" % (vXd + j, j * 1024, T + 2))
    a("s_lshl_b32 s3, %s, 3" % sWave)
    a("v_lshrrev_b32 v%d, 5, v0" % T)
    a("v_add_u32 v%d, s3, v%d" % (T, T))
    a("v_and_b32 v%d, 31, v0" % (T + 1))
    for j in range(4):
        a("v_add_u32 v%d, %d, v%d" % (T + 2, 2 * j, T))
        a("v_and_b32 v%d, 3, v%d" % (T + 3, T + 2))
        a("v_lshlrev_b32 v%d, 1, v%d" % (T + 3, T + 3))
        a("v_and_or_b32 v%d, v%d, 8, v%d" % (T + 3, T + 2, T + 3))
        a("v_xor_b32 v%d, v%d, v%d" % (T + 3, T + 3, T + 1))
        a("v_lshlrev_b32 v%d, 13, v%d" % (T + 2, T + 2))
        a("v_lshl_add_u32 v%d, v%d, 4, v%d" % (T + 2, T + 3, T + 2))
        a("v_subrev_u32 v%d, %d, v%d" % (vWd + j, j * 1024, T + 2))
    a("s_lshl_b32 %s, %s, s5" % (sXo, sM))
    a("s_lshl_b32 %s, 64, s5" % sLdx64)
    a("s_mov_b32 %s, %s" % (sXre, sXo))
    a("s_lshl_b32 %s, %s, 1" % (sWo, sN))
    a("s_mov_b32 %s, %s" % (sWre, sWo))
    a("s_lshl_b32 s3, 1, s5")
    a("s_add_u32 %s, %s, s3" % (sXend, sXo))
    a("s_lshl_b32 s3, s3, 12")
    a("s_add_u32 %s, %s, s3" % (sWend, sWo))
    a("s_bfe_u32 s3, s2, 0x20001")
    a("s_and_b32 s4, s2, 1")
    a("s_lshl_b32 s4, s4, 1")
    a("s_add_u32 s3, s3, s4")
    a("s_and_b32 s3, s3, %d" % (0 if 'norot' in FL else 3))
    a("s_sub_u32 s4, s5, 2")
    a("s_lshl_b32 s3, s3, s4")
    a("s_add_u32 %s, %s, s3" % (sXo, sXo))
    a("s_lshl_b32 s3, s3, 12")
    a("s_add_u32 %s, %s, s3" % (sWo, sWo))
    a("s_mov_b32 s95, s6")
    a("s_cmp_lt_u32 s2, 128")
    a("s_cselect_b32 s6, -1, 8")
    a("s_waitcnt lgkmcnt(0)")
    a("s_cmp_lt_u32 s2, 128")
    a("s_cselect_b64 s[8:9], s[32:33], s[34:35]")
    a("s_mov_b32 s10, %d" % (2 * MB))
    a("s_cselect_b32 s10, %d, s10" % (4 * MB))
    a("s_mov_b32 s11, 0x00020000")
    a("s_cselect_b64 s[12:13], s[36:37], s[38:39]")
    a("s_mov_b32 s14, %d" % (4 * MB))
    a("s_cselect_b32 s14, %d, s14" % (8 * MB))
    a("s_mov_b32 s15, 0x00020000")
    a("s_mov_b64 s[64:65], s[40:41]")

    def now(pre, ld, post):
        for x in pre + ["s_nop 0"] + ([] if 'nodma' in FL else ld) + post:
            a(x)
    now(*dma_w(0, 0))
    now(*dma_x(0, 0))
    now(*dma_w(0, 1))
    tl.stamp(7)
    srd(a, 16, 50, 51, FLG_END - FLG, WS_XCH + FLG)
    a("v_lshlrev_b32 v23, 20, v0")
    a("s_and_b32 s3, s2, 7")
    a("s_lshr_b32 s4, s2, 6")
    a("s_lshl_b32 s4, s4, 3")
    a("s_add_u32 s3, s3, s4")
    a("s_lshl_b32 s3, s3, 4")
    a("s_add_u32 s3, s3, %d" % (FLG_T - FLG))
    a("s_bfe_u32 s4, s2, 0x30003")
    a("s_lshl_b32 s4, s4, 9")
    a("s_add_u32 s56, s3, s4")
    a("s_sub_u32 s4, %d, s4" % (15 * 512))
    a("s_add_u32 s57, s3, s4")
    for x in b_ids("s58", "s59"):
        a(x)
    a("s_lshl_b32 s58, s58, 8")
    a("s_lshl_b32 s59, s59, 4")
    a("s_add_u32 s58, s58, s59")
    a("s_add_u32 s58, s58, %d" % (FLG_B - FLG))
    a("s_lshl_b32 s59, s2, 4")
    clears = {60 + 12 * i: ["buffer_store_dwordx4 %s, v23, s[16:19], s%d offen sc1 ;@zero" % (v4(T + 4), 56 + i)] for i in range(4)}
    a("v_lshlrev_b32 v%d, 7, v0" % vPF)
    a("s_and_b32 s3, s2, 63")
    a("s_lshl_b32 s3, s3, 1")
    a("s_add_u32 s3, s3, %s" % sWn)
    a("s_lshl_b32 %s, s3, 13" % sPo)
    a("s_sub_u32 %s, %s, %d" % (sPo, sPo, envi("WD", 6) * MB))
    a("s_mov_b32 s62, %d" % (4 * MB))
    a("s_cmp_eq_u32 %s, 0" % sWm)
    a("s_cselect_b64 s[60:61], s[46:47], s[44:45]")
    a("s_cselect_b32 s62, %d, s62" % (6 * MB))
    a("s_bitcmp1_b32 s2, 6")
    a("s_cselect_b32 s62, s62, 0")
    a("s_mov_b32 s63, 0x00020000")
    a.label("Lc0", keep=True)
    now(*[[y.replace("@vm i00", "@vm p1") for y in z] for z in dma_w(1, 0)])
    a("s_lshl_b32 s4, %s, 13" % sWm)
    a("v_and_b32 v%d, 15, v0" % T)
    a("v_lshlrev_b32 v%d, 7, v%d" % (T, T))
    a("v_add_u32 v%d, s4, v%d" % (T, T))
    a("v_bfe_u32 v%d, v0, 1, 3" % (T + 1))
    a("v_lshrrev_b32 v%d, 4, v0" % (T + 2))
    a("v_xor_b32 v%d, v%d, v%d" % (T + 1, T + 1, T + 2))
    a("v_lshl_add_u32 v%d, v%d, 4, v%d" % (vXr, T + 1, T))
    a("v_xor_b32 v%d, 64, v%d" % (vXr + 1, vXr))
    a("v_bfe_u32 v%d, v0, 2, 2" % T)
    a("v_lshl_add_u32 v%d, v%d, 3, v%d" % (T + 5, T + 2, T))
    a("v_lshlrev_b32 v%d, 9, v%d" % (T + 1, T + 5))
    a("v_and_b32 v%d, 1, v0" % (T + 3))
    a("v_lshl_add_u32 v%d, v%d, 3, v%d" % (T + 1, T + 3, T + 1))
    a("v_add_u32 v%d, %d, v%d" % (T + 1, WB, T + 1))
    a("v_lshlrev_b32 v%d, 1, v%d" % (T, T))
    a("v_and_or_b32 v%d, v%d, 8, v%d" % (T, T + 5, T))
    a("v_bfe_u32 v%d, v0, 1, 1" % (T + 2))
    a("s_lshl_b32 s4, %s, 4" % sWn)
    for ni in range(8):
        a("s_add_u32 s3, s4, %d" % (2 * ni))
        a("v_add_u32 v%d, s3, v%d" % (T + 3, T + 2))
        a("v_xor_b32 v%d, v%d, v%d" % (T + 3, T + 3, T))
        a("v_lshl_add_u32 v%d, v%d, 4, v%d" % (vWr + ni, T + 3, T + 1))
    npf = 4 if 'notouch' in FL else 5
    for r in range(4):
        a("v_mov_b32 v%d, 0" % (T + 4 + r))
    a(";@waitvm i11")
    a("s_barrier")
    tl.stamp(1)
    for x in wread(0, 0) + wread(0, 1) + xread(0, 0) + xread(0, 1):
        a(x)
    now(*dma_x(0, 1))
    now(*dma_w(1, 1))
    a("s_barrier")
    code_touch(a, "Lc1", "Lc3", T, vPFd, 92)
    a.carry = units(*dma_x(1, 0)) + units(*dma_w(0, 0)) + ([] if FL2 else units(*dma_x(1, 1)) + units(*dma_w(0, 1)))
    carry0 = list(a.carry)
    a.label("Lc1", keep=True)
    a("s_cmp_lt_u32 s2, 128")
    a("s_cbranch_scc0 Lk1_kv")
    a(";@wtphase 1")
    dstep(a, False, first=True, withpf=True, mem=(None, clears))
    a("s_mov_b32 %s, 5" % sCnt)
    a.label("Lk1_ql", keep=True)
    dstep(a, False, withpf=True)
    a("s_sub_u32 %s, %s, 1" % (sCnt, sCnt))
    a("s_cmp_lg_u32 %s, 0" % sCnt)
    a("s_cbranch_scc1 Lk1_ql ;@keep")
    tail(a, False)
    tl.stamp(2)
    a("s_branch Lk1_b")
    for nm, reg, off in (("", 126, 128), ("q", 125, 0)):
        a.label("Lk1_spin" + nm)
        a("s_add_u32 s40, s40, 1")
        a("s_cmp_gt_u32 s40, %d" % envi("SPINMAX", 0x100000))
        a("s_cbranch_scc1 Lk1_got" + nm)
        a("s_sleep 2")
        a("buffer_load_dword v%d, v119, s[36:39], 0 offen offset:%d sc1 ;@cond" % (reg, off))
        a("s_waitcnt vmcnt(0)")
        a("v_cmp_gt_u32 vcc, 0x80, v%d" % reg)
        a("s_cbranch_vccnz Lk1_spin" + nm)
        a("s_branch Lk1_got" + nm)
    a.label("Lk1_kv")
    a.carry = carry0
    a("s_mov_b64 s[60:61], s[40:41]")
    a("s_mov_b32 s62, %d" % (4 * MB))
    a("s_and_b32 s3, s2, 127")
    a("s_lshl_b32 s3, s3, 2")
    a("s_add_u32 s3, s3, %s" % sWave)
    a("s_mul_i32 %s, s3, %d" % (sPo, NSPF * 128))
    dstep(a, False, first=True, sp=True, mem=(None, clears))
    a("s_mov_b32 %s, 2" % sCnt)
    a.label("Lk1_kl", keep=True)
    dstep(a, False, sp=True)
    a("s_sub_u32 %s, %s, 1" % (sCnt, sCnt))
    a("s_cmp_lg_u32 %s, 0" % sCnt)
    a("s_cbranch_scc1 Lk1_kl ;@keep")
    tl.stamp(4)
    a(";@wtphase 2")
    kv_seam(a)
    tl.stamp(5)
    a(";@wtphase 3")
    for s_ in range(2):
        I1, I2 = std_I(s_)
        step(a, s_, True, False, I1, I2, None, None, mem=held(4 + 4 * s_, 8 + 4 * s_))
    tail(a, True)
    tl.stamp(2)
    a.label("Lk1_b")
    tl.stamp(6)
    b_job(a, tl)
    tl.stamp(10)
    tl.lo = 4
    tl.dump(vT, "s101")
    n1 = len(a.ins)

    def publish_b(vZ, vOne):
        a("s_mov_b64 exec, 1")
        a("buffer_store_dword v%d, v%d, s[52:55], s65 offen sc1" % (vOne, vZ))
        a("s_mov_b64 exec, -1")
    a(";@wtphase 6")
    a.label("Lc2")
    k2.main(a, publish_b)
    a.label("Lc3")
    for i, c in enumerate(a.ins[:n1]):
        if c.wide_store_data and not (';@zero' in c.text and i > [x.label for x in a.ins].index("Lk1_kv")):
            left = set(c.wide_store_data)
            for p_ in reversed(a.ins[:i]):
                hit = left & p_.wr
                if hit:
                    assert (p_.text.endswith(", 0") if ';@zero' in c.text else p_.mn.startswith(("v_cvt_pk", "v_accvgpr_write"))), (c.text, p_.text)
                    left -= hit
                    if not left:
                        break
    for i, c in enumerate(a.ins[:n1]):
        if c.mn == "v_accvgpr_write_b32" and c.rd and min(r[1] for r in c.wr) >= aHOLD:
            for p_ in reversed(a.ins[:i]):
                if c.rd & p_.wr:
                    assert p_.mn.startswith("v_cvt_pk"), (c.text, p_.text)
                    break
    return a.finish(auto_lgkm=True), 512, 256, 256, 163840
```

```python
import os
MB = 1 << 20
WS_Q = 0
WS_KV = 16 * MB
WS_QKVB = 48 * MB
WS_CTX = 64 * MB
WS_OB = 80 * MB
WS_XCH = 96 * MB
FLG = 16 * MB
FLG_T, FLG_B, FLG_END = FLG + 4096, FLG + 12288, FLG + 16384
WS_TL = 200 * MB
FL = set(os.environ.get("FL", "").split(",")) | (set() if os.environ.get("NODEF") else {"stlast", "nospf", "notidy"})


def envi(name, default):
    return int(os.environ.get(name, default))


class TL:
    MAP = {(0, 0): 0, (0, 1): 1, (0, 2): 2, (0, 9): 3, (0, 10): 4, (1, 1): 5, (1, 2): 6, (1, 6): 7, (2, 5): 8, (2, 2): 9, (2, 4): 10, (2, 3): 11}
    if os.environ.get("TLMAP"):
        MAP = eval(os.environ["TLMAP"])

    def __init__(self, a, k, ptr_lo, on):
        self.a, self.k, self.lo, self.on = a, k, ptr_lo, on

    def early(self):
        if self.on and self.k == 0:
            for r in range(66, 90):
                self.a("s_mov_b32 s%d, 0" % r)
        self.stamp(0)

    def stamp(self, slot, *_, **__):
        if not self.on or (self.k, slot) not in self.MAP:
            return
        slot = self.MAP[(self.k, slot)]
        a = self.a
        a("s_waitcnt lgkmcnt(0)")
        a("s_memrealtime s[96:97]\ns_memtime s[98:99]\ns_waitcnt lgkmcnt(0)")
        a("s_mov_b32 s%d, s96\ns_mov_b32 s%d, s98" % (66 + 2 * slot, 67 + 2 * slot))

    def dump(self, vt, wave_sreg, wave=None):
        if not self.on or self.k != 2:
            return
        a = self.a
        L = a.newlabel("Ltl")
        a("s_cmp_lg_u32 %s, %d" % (wave_sreg, envi("TLW", 0)))
        a("s_cbranch_scc1 %s" % L)
        a("s_add_u32 s92, s%d, %d" % (self.lo, WS_TL))
        a("s_addc_u32 s93, s%d, 0" % (self.lo + 1))
        a("s_mov_b32 s94, 65536")
        a("s_mov_b32 s95, 0x00020000")
        a("s_lshl_b32 s100, s2, 7")
        a("s_mov_b64 exec, 1")
        a("v_mov_b32 v%d, 0" % (vt + 2))
        for slot in range(12):
            a("v_mov_b32 v%d, s%d" % (vt, 66 + 2 * slot))
            a("v_mov_b32 v%d, s%d" % (vt + 1, 67 + 2 * slot))
            a("buffer_store_dwordx2 v[%d:%d], v%d, s[92:95], s100 offen offset:%d" % (vt, vt + 1, vt + 2, slot * 8))
            a("s_waitcnt vmcnt(0)")
        a("s_mov_b64 exec, -1")
        a.label(L)


def code_touch(l0, l1, vaddr, dst, sp, wave, uid, back=False):
    if 'notouch' in FL:
        return []
    L = "Lpc%s" % uid
    sl = "(((%s-%s)/128+127)&~127)" % (l1, l0)
    return ["s_getpc_b64 s[%d:%d]" % (sp, sp + 1), "%s: ;@keep" % L,
            "s_add_u32 s%d, s%d, %s-%s" % (sp, sp, l0, L), "s_addc_u32 s%d, s%d, %d" % (sp + 1, sp + 1, -1 if back else 0),
            "s_lshr_b32 s%d, s2, 3" % (sp + 2), "s_lshl2_add_u32 s%d, s%d, %s" % (sp + 2, sp + 2, wave),
            "s_mul_i32 s%d, s%d, %s" % (sp + 2, sp + 2, sl),
            "v_lshlrev_b32 v%d, 7, v0" % vaddr, "v_min_u32 v%d, %s-128, v%d" % (vaddr, sl, vaddr),
            "v_add_u32 v%d, s%d, v%d" % (vaddr, sp + 2, vaddr), "v_min_u32 v%d, %s-%s-4, v%d" % (vaddr, l1, l0, vaddr),
            "global_load_dword %s, v%d, s[%d:%d]" % (dst, vaddr, sp, sp + 1)]
```

```python
import math
from asmlib import Asm, Col, srd, v4, v2, f32bits
from common import *
import k2

vLane, vXd, vWd, vXr, vWr, vPF, vPFd, vT = 1, 2, 6, 10, 12, 20, 21, 24
ACC = 32
aACC7, aW, aX, aHOLD = 0, 32, 160, 192
sWave, sWm, sWn, sXo, sWo, sXend, sXre, sWend, sWre, sM0, sCnt, sLdx64, sM, sN = (
    "s20", "s21", "s22", "s23", "s24", "s25", "s26", "s27", "s28", "s29", "s30", "s31", "s52", "s53")
sPo, sPst, sPend, sPre = "s54", "s55", "s56", "s57"
XB, WB, SPARE = 0, 65536, 131072
SF = os.environ.get("K1SF", "sc1")
NSPS = envi("NSPS", 4)
NEARLY = envi("NEARLY", 14)
TARR = envi("TARR", 6)
PFD = envi("PFD", 4)


def a4(b):
    return "a[%d:%d]" % (b, b + 3)


def a2(b):
    return "a[%d:%d]" % (b, b + 1)


def acc(mi, ni):
    return v4(ACC + 4 * (8 * mi + ni)) if mi < 7 else a4(aACC7 + 4 * ni)


def wfr(buf, ni, hs):
    return aW + 64 * buf + 8 * ni + 4 * hs


def xfr(row, hs):
    return aX + 8 * (row % 4) + 4 * hs


def mfma(d, a_, b_, c):
    return "v_mfma_f32_16x16x32_bf16 %s, %s, %s, %s" % (d, a_, b_, c)


def xread(s, row):
    off = XB + s * 32768 + (row >> 2) * 16384 + (row & 3) * 2048
    return ["ds_read_b128 %s, v%d offset:%d" % (a4(xfr(row, hs)), vXr + hs, off) for hs in range(2)]


def wread(s, hs):
    L = []
    for ni in range(8):
        for j in range(2):
            L.append("ds_read_b64_tr_b16 %s, v%d offset:%d" % (a2(wfr(s, ni, hs) + 2 * j), vWr + ni, s * 32768 + hs * 16384 + j * 2048))
    return L


def dma_x(s, half):
    pre = ["s_add_u32 m0, %s, %d" % (sM0, XB + s * 32768 + half * 16384)]
    so = sXo
    if half:
        pre.append("s_add_u32 s3, %s, %s" % (sXo, sLdx64))
        so = "s3"
    ld = ["buffer_load_dwordx4 v%d, s[8:11], %s offen offset:%d lds ;@vm i%d%d" % (vXd + j, so, j * 1024, half, s) for j in range(4)]
    post = []
    if half:
        post = ["s_add_u32 %s, %s, 128" % (sXo, sXo), "s_cmp_eq_u32 %s, %s" % (sXo, sXend), "s_cselect_b32 %s, %s, %s" % (sXo, sXre, sXo)]
    return pre, ld, post


def dma_w(s, hs):
    pre = ["s_add_u32 m0, %s, %d" % (sM0, WB + s * 32768 + hs * 16384)]
    ld = ["buffer_load_dwordx4 v%d, s[12:15], %s offen offset:%d lds ;@vm i%d%d" % (vWd + j, sWo, j * 1024, hs, 1 - s) for j in range(4)]
    post = ["s_add_u32 %s, %s, %d" % (sWo, sWo, 32 * 8192)]
    if hs:
        post += ["s_cmp_eq_u32 %s, %s" % (sWo, sWend), "s_cselect_b32 %s, %s, %s" % (sWo, sWre, sWo),
                 "s_sub_u32 s6, s6, 1", "s_cmp_eq_u32 s6, 0", "s_cselect_b64 s[12:13], s[64:65], s[12:13]"]
    return pre, ld, post


def pf():
    return [["buffer_load_dword v%d, v%d, s[60:63], %s offen" % (vPFd, vPF, sPo), "s_add_u32 %s, %s, %d" % (sPo, sPo, MB)]]


FL2 = "fl3" not in FL
TCH = os.environ.get("TCH", "abcdefg")
NSPF = envi("NSPF", 8)


def spf():
    L = ["s_buffer_load_dword s100, s[60:63], %s offset:%d ;@spf" % (sPo, 128 * i) for i in range(NSPF)]
    return [L[i:i + 2] for i in range(0, NSPF, 2)] + [["s_add_u32 %s, %s, %d" % (sPo, sPo, 512 * NSPF * 128)]]


def units(pre, ld, post):
    U = [pre + [ld[0]]] + [[x] for x in ld[1:]]
    if 'nodma' in FL:
        U = [pre]
    if post:
        U.append(post)
    return U


def step(a, s, swapped, first, I1, I2, vm1, vm2, wnext=True, xnext=True, extra=None, mem=None, sp=False):
    M = []
    for mi in range(8):
        for ni in range(8):
            for n, hs in enumerate((0, 1) if ni % 2 == 0 else (1, 0)):
                x, w, d = a4(xfr(mi, hs)), a4(wfr(s, ni, hs)), acc(mi, ni)
                c = "0" if (first and n == 0) else d
                M.append(mfma(d, x, w, c) if swapped else mfma(d, w, x, c))
    G = [[] for _ in range(128)]
    BX, BY = 2 * 16 + envi("BXO", 7), 6 * 16 + envi("BXO", 7)
    nr = 'noreads' in FL
    for r in range(8):
        t = r + 2
        if t < 8:
            L = xread(s, t)
        else:
            L = xread(1 - s, t - 8) if xnext else []
        g = max(16 * r + 1, BX) if r == 2 else (max(16 * r + 1, BY) if r == 6 else 16 * r + 1)
        if not nr:
            G[g] += L
        G[16 * r + 15].append(";@need %s" % a4(xfr(r + 1, 1)))
    bar = lambda vm, tag: [("s_waitcnt vmcnt(%d) lgkmcnt(0)" % vm) if vm is not None else (";@waitvm %s lgkmcnt(0)" % tag)] + \
        ([] if 'nobar' in FL else ["s_barrier ;@keep"])
    G[BX] = bar(vm1, "i1%d" % s) + G[BX]
    G[BY] = bar(vm2, "i0%d" % (1 - s)) + G[BY]
    if wnext and not nr:
        L = wread(1 - s, 0)
        for i in range(8):
            G[3 + 4 * i] += L[2 * i:2 * i + 2]
        L = wread(1 - s, 1)
        for i in range(8):
            G[BX + 4 + 6 * i] += L[2 * i:2 * i + 2]
    if sp and 'nospf' not in FL:
        mem = dict(mem or {})
        for i, u in enumerate(spf()):
            mem[BX + 1 + i] = u + mem.get(BX + 1 + i, [])
    if mem:
        for g, L in sorted(mem.items()):
            while [y for y in G[g] if not y.startswith(";@need")]:
                g += 1
            G[g] = L + G[g]
    carry = a.carry
    a.carry = []
    free = [g for g in range(128) if not G[g]]
    def put(U, lo, hi):
        c = [g for g in free if lo <= g < hi]
        n = min(len(U), len(c))
        for i in range(n):
            g = c[(i * len(c)) // n]
            G[g] += U[i]
        for i in range(n):
            free.remove(c[(i * len(c)) // n])
        return U[n:]
    assert not put(carry, 0, BX - 2)
    assert not put(I1, BX + 1, BY - 2)
    k = (len(I2) * 2 + 4) // 5
    put(I2[:k], BY + 1, 127)
    a.carry = I2[k:]
    if extra:
        for g, L in extra.items():
            G[g] += L
    for i in range(128):
        a(M[i])
        for y in G[i]:
            a(y)
    a.nstep = getattr(a, 'nstep', 0) + 1
    a.tl.stamp(200 + a.nstep)


def tidy(U):
    if 'tidy' not in FL:
        return U
    out = []
    for u in U:
        u = list(u)
        if out and any(x.startswith("buffer") for x in u):
            while u[0].startswith("s_"):
                out[-1].append(u.pop(0))
        if len(u) > 2 and all(x.startswith("s_") for x in u):
            c = Col()
            for x in u:
                c(x)
            A = c.atoms(1)
            out[-1] += A[0]
            out += A[1:2] + ([A[2] + A[3]] if len(A) > 3 else A[2:])
        else:
            out.append(u)
    return out


def std_I(s, withpf=False):
    if FL2:
        I1 = units(*dma_x(1 - s, 1)) + units(*dma_w(s, 1)) + (pf() if withpf else [])
        I2 = units(*dma_x(s, 0)) + units(*dma_w(1 - s, 0))
        return tidy(I1), tidy(I2)
    I1 = units(*dma_x(s, 0)) + units(*dma_w(1 - s, 0)) + (pf() if withpf else [])
    I2 = units(*dma_x(s, 1)) + units(*dma_w(1 - s, 1))
    return I1, I2


def dstep(a, swapped, first=False, withpf=False, sp=False, mem=(None, None)):
    for s in range(2):
        I1, I2 = std_I(s, withpf)
        step(a, s, swapped, first and s == 0, I1, I2, None, None, sp=sp, mem=mem[s])


def P(n):
    return ACC + 8 * n if n < 28 else ACC + 8 * (n - 28) + 4


def cvt4(d, r0, r1):
    return ["v_cvt_pk_bf16_f32 v%d, v%d, v%d" % (d, r0, r0 + 1), "v_cvt_pk_bf16_f32 v%d, v%d, v%d" % (d + 1, r0 + 2, r0 + 3),
            "v_cvt_pk_bf16_f32 v%d, v%d, v%d" % (d + 2, r1, r1 + 1), "v_cvt_pk_bf16_f32 v%d, v%d, v%d" % (d + 3, r1 + 2, r1 + 3)]


def scale(r):
    return ["v_pk_mul_f32 %s, %s, s[4:5]" % (v2(r + e), v2(r + e)) for e in (0, 2)]


def accrd(t, ni):
    return ["v_accvgpr_read_b32 v%d, a%d" % (t + e, aACC7 + 4 * ni + e) for e in range(4)]


def pack(kind, grp, dst7=None):
    L = []
    if kind in 'qk':
        for ds in range(4):
            n = 4 * grp + ds
            if grp < 7:
                r0, r1 = ACC + 8 * n, ACC + 8 * n + 4
            else:
                r0, r1 = vT, vT + 4
                L += accrd(r0, 2 * ds) + accrd(r1, 2 * ds + 1)
            if kind == 'q':
                L += scale(r0) + scale(r1)
            L += cvt4(P(n), r0, r1)
    else:
        for ni in ((0, 4, 2, 6, 1, 5, 3, 7) if grp < 3 else (0, 4, 6, 2, 1, 3, 5, 7)):
            r0 = ACC + 4 * (16 * grp + ni)
            if grp < 3:
                r1 = r0 + 32
            else:
                r1 = vT + 4 * (ni & 1)
                L += accrd(r1, ni)
            L += cvt4(P(8 * grp + ni), r0, r1)
    return L


def pack_extra(kind):
    ex = {}
    if kind in 'qk':
        for mi in range(7):
            L = pack(kind, mi)
            n = 14 if kind == 'q' else 8
            for i, x in enumerate(L):
                ex.setdefault(min(127, 16 * (mi + 1) + 3 + (i * n) // len(L)), []).append(x)
    else:
        for m in range(3):
            L = pack(kind, m)
            for i, x in enumerate(L):
                ex.setdefault(32 * (m + 1) + 3 + (i * 20) // len(L), []).append(x)
    return ex


def out_base(kind):
    sh = 14 if kind == 'q' else 15
    L = ["s_lshr_b32 s3, %s, 7" % sN, "s_add_u32 s3, s3, %s" % sWn, "s_lshl_b32 s3, s3, 5", "s_lshr_b32 s19, %s, 6" % sM, "s_add_u32 s3, s3, s19",
         "s_lshl_b32 s19, %s, 1" % sWm, "s_add_u32 s3, s3, s19", "s_lshl_b32 s92, s3, %d" % sh]
    if kind == 'v':
        L.append("s_add_u32 s92, s92, 16384")
    L.append("s_add_u32 s93, s92, %d" % (1 << sh))
    off, size = (WS_Q, 16 * MB) if kind == 'q' else (WS_KV, 32 * MB)
    L += ["s_add_u32 s16, s50, %d" % off, "s_addc_u32 s17, s51, 0", "s_mov_b32 s18, %d" % size, "s_mov_b32 s19, 0x00020000"]
    if kind == 'q':
        c = f32bits((128 ** -0.5) * math.log2(math.e))
        L += ["s_mov_b32 s4, 0x%08x" % c, "s_mov_b32 s5, 0x%08x" % c]
    return L


def store(n, reg=None):
    return ["s_add_u32 s94, s%d, %d" % (92 + (n >> 4), ((n >> 2) & 3) * 4096),
            "buffer_store_dwordx4 %s, v%d, s[16:19], s94 offen offset:%d %s ;@vm st" % (v4(P(n) if reg is None else reg), vLane, (n & 3) * 1024, SF)]


NH = envi("NH", 16)


def held(lo, hi, g0=8, g1=120):
    L = [n for n in range(28 - NH + lo, 28 - NH + min(hi, NH))]
    return {g0 + (i * (g1 - g0)) // max(1, len(L)): [x.replace(v4(P(n)), a4(aHOLD + 4 * (n - 28 + NH))) for x in store(n)] for i, n in enumerate(L)}


def kv_seam(a):
    I1, I2 = std_I(0)
    ex = {}
    for i, x in enumerate(out_base('k')):
        ex.setdefault(60 + i // 2, []).append(x.replace("s3", "s95"))
    step(a, 0, False, False, I1, I2, None, None, extra=ex)
    nd = 28 - NH
    pos = {n: max(30 + 16 * (n >> 2), 30 + (n * min(7 * 28, 110 + 16 * ((nd - 1) >> 2) - 30 + 14)) // max(nd, 1)) for n in range(nd)}
    I1, I2 = std_I(1)
    ex = pack_extra('k')
    park = ["v_accvgpr_write_b32 a%d, v%d" % (aHOLD + 4 * (n - nd) + e, P(n) + e) for n in range(nd, 28) for e in range(4)]
    late = []
    for x in park:
        r = int(x.split("v")[-1])
        g = 16 * ((r - ACC) // 32 + 1) + 12 + ((r - ACC) % 32) // 8
        if g < 128:
            ex.setdefault(g, []).append(x)
        else:
            late.append(x)
    step(a, 1, False, False, I1, I2, None, None, extra=ex, mem={g: store(n) for n, g in pos.items() if g < 126})
    I1, I2 = std_I(0)
    mem = {max(g - 128, 0): store(n) for n, g in pos.items() if g >= 126}
    ex = {}
    for i, x in enumerate(late):
        ex.setdefault(i // 2, []).append(x)
    for ds in range(4):
        g = 20 + 24 * ds
        L = accrd(vT, 2 * ds) + accrd(vT + 4, 2 * ds + 1) + cvt4(vT, vT, vT + 4)
        for i, x in enumerate(L):
            ex.setdefault(g + i // 2, []).append(x)
        mem[g + 9] = store(28 + ds, vT)
    step(a, 0, True, True, I1, I2, None, None, extra=ex, mem=mem)
    I1, I2 = std_I(1)
    step(a, 1, True, False, I1, I2, None, None, mem=held(0, 4))


def tail(a, swapped):
    kind = 'v' if swapped else 'q'
    I1, I2 = std_I(0)
    step(a, 0, swapped, False, I1, I2, None, None, mem=held(12, 16) if swapped else None)
    I1, I2 = (std_I(1)[0], units(*dma_x(1, 0))) if FL2 else (units(*dma_x(1, 0)), units(*dma_x(1, 1)))
    step(a, 1, swapped, False, I1, I2, None, None,
         mem={90: code_touch("Lk1_b", "Lc2", 22, "a255", 56, "s101", "c%d" % swapped)} if 'c' in TCH else None)
    S = b_setup() + out_base(kind)
    ex = {}
    for i, x in enumerate(S):
        ex.setdefault((52 + (i * 48) // len(S)) if FL2 else (41 + (i * 58) // len(S)), []).append(x)
    step(a, 0, swapped, False, [], b_dma_x(0) + b_dma_w(0), None, None, extra=ex,
         mem={40 + 2 * i: u for i, u in enumerate(units(*dma_x(1, 1))[:4])} if FL2 else None)
    if swapped:
        pos = {n: (58 + 4 * n if n < 8 else 92 + 6 * (n - 8)) for n in range(NEARLY)}
    else:
        pos = {n: 36 + (88 * n) // 13 for n in range(NEARLY)}
    step(a, 1, swapped, False, b_dma_x(1) + b_dma_w(1), b_dma_x(2) + b_dma_w(2), None, 63, wnext=False, xnext=False, extra=pack_extra(kind),
         mem={g: store(n) for n, g in pos.items()})
    for x in pack(kind, 3 if swapped else 7):
        a(x)


def epilogue(a, kind):
    T = vT
    if kind == 'q':
        a("s_mov_b32 s3, 0x%08x" % f32bits((128 ** -0.5) * math.log2(math.e)))
        a("v_mov_b32 v%d, s3" % vXr)
    a("s_lshr_b32 s4, %s, 7" % sN)
    a("s_add_u32 s4, s4, %s" % sWn)
    a("s_lshl_b32 s4, s4, 5")
    a("s_lshr_b32 s5, %s, 6" % sM)
    a("s_add_u32 s4, s4, s5")
    a("s_lshl_b32 s5, %s, 1" % sWm)
    a("s_add_u32 s4, s4, s5")
    sh = 14 if kind == 'q' else 15
    a("s_lshl_b32 s4, s4, %d" % sh)
    k = 0

    def get(mi, ni, t):
        if mi < 7:
            return ACC + 4 * (8 * mi + ni)
        for e in range(4):
            a("v_accvgpr_read_b32 v%d, a%d" % (t + e, aACC7 + 4 * ni + e))
        return t
    if kind == 'v':
        pairs = [((mi, ni), (mi + 1, ni), (mi >> 2) * 32768 + 16384 + ((mi >> 1) & 1) * 8192 + ni * 1024) for mi in range(0, 8, 2) for ni in range(8)]
    else:
        pairs = [((mi, 2 * ds), (mi, 2 * ds + 1), (mi >> 2) * (1 << sh) + (mi & 3) * 4096 + ds * 1024) for mi in range(8) for ds in range(4)]
    last = None
    for p0, p1, off in pairs:
        r0 = get(p0[0], p0[1], ACC)
        r1 = get(p1[0], p1[1], ACC + 4)
        if kind == 'q':
            for r in (r0, r0 + 2, r1, r1 + 2):
                a("v_pk_mul_f32 %s, %s, %s op_sel_hi:[1,0]" % (v2(r), v2(r), v2(vXr)))
        u = T + 4 * (k % 2)
        k += 1
        a("v_cvt_pk_bf16_f32 v%d, v%d, v%d" % (u, r0, r0 + 1))
        a("v_cvt_pk_bf16_f32 v%d, v%d, v%d" % (u + 1, r0 + 2, r0 + 3))
        a("v_cvt_pk_bf16_f32 v%d, v%d, v%d" % (u + 2, r1, r1 + 1))
        a("v_cvt_pk_bf16_f32 v%d, v%d, v%d" % (u + 3, r1 + 2, r1 + 3))
        if last != off >> 12:
            a("s_add_u32 s5, s4, %d" % (off & ~4095))
            last = off >> 12
        a("buffer_store_dwordx4 %s, v%d, s[16:19], s5 offen offset:%d %s" % (v4(u), vLane, off & 4095, SF))


vBX, vBH, vBW = 2, 20, (6, 7, 8, 9, 21, 22)
vBXr, vBWr = 10, 14
aBACC, aBW, aBX = 68, 176, 224
STG = 98304
vST = 124
BXO = (131072, 0, 18432)
BWO = (65536, 98304, 36864)
sBX, sBH, sBW, sRB, sCP = "s23", "s24", "s25", "s26", "s27"
PCR = 6
BL = envi("BL", 3)
PITCH = 400


def bacc(mi, i):
    return aBACC + 4 * (3 * mi + i)


def bxfr(t, row, hs):
    return aBX + 8 * ((9 * t + row) % 4) + 4 * hs


def bwfr(t, i, hs):
    return aBW + 24 * (t % 2) + 8 * i + 4 * hs


def b_ids(rb, cp):
    return ["s_and_b32 s3, s2, 1", "s_lshl_b32 s3, s3, 3", "s_bfe_u32 s4, s2, 0x30003", "s_add_u32 %s, s3, s4" % rb,
            "s_bfe_u32 s3, s2, 0x20001", "s_lshl_b32 s3, s3, 2", "s_lshr_b32 s4, s2, 6", "s_xor_b32 s4, s4, %d" % envi("CPX", 3), "s_add_u32 %s, s3, s4" % cp]


def b_setup():
    T = vT
    L = []
    a = L.append
    L += b_ids(sRB, sCP)
    a("s_lshl_b32 %s, %s, 18" % (sBX, sRB))
    a("s_sub_u32 %s, %s, 32768" % (sBH, sBX))
    a("s_max_i32 %s, %s, 0" % (sBH, sBH))
    a("s_lshl_b32 %s, %s, 7" % (sBW, sCP))
    a("s_mov_b64 s[8:9], s[44:45]")
    a("s_mov_b32 s10, %d" % (4 * MB))
    a("s_mov_b64 s[12:13], s[46:47]")
    a("s_mov_b32 s14, %d" % (6 * MB))
    a("s_mov_b64 s[36:37], s[90:91]")
    a("s_mov_b32 s38, 256")
    a("s_mov_b32 s39, 0x00020000")
    a("s_lshl_b32 s28, %s, 9" % sWave)
    a("s_mul_i32 s30, %s, 6144" % sWave)
    a("s_lshl_b32 s3, %s, 5" % sWave)
    a("v_lshrrev_b32 v%d, 3, v0" % T)
    a("v_and_b32 v%d, 7, v0" % (T + 1))
    a("v_add_u32 v%d, s3, v%d" % (T + 4, T))
    for j in range(4):
        a("v_add_u32 v%d, %d, v%d" % (T + 2, 8 * j, T + 4))
        a("v_bfe_u32 v%d, v%d, 1, 3" % (T + 3, T + 2))
        a("v_xor_b32 v%d, v%d, v%d" % (T + 3, T + 3, T + 1))
        a("v_lshlrev_b32 v%d, 11, v%d" % (T + 2, T + 2))
        a("v_lshl_add_u32 v%d, v%d, 4, v%d" % (T + 2, T + 3, T + 2))
        a("v_subrev_u32 v%d, %d, v%d" % (vBX + j, j * 1024, T + 2))
    a("s_lshl_b32 s3, %s, 2" % sWave)
    a("v_lshrrev_b32 v%d, 5, v0" % (T + 2))
    a("v_add_u32 v%d, s3, v%d" % (T + 2, T + 2))
    a("v_bfe_u32 v%d, v0, 2, 3" % (T + 5))
    for i, d in enumerate((vBH, 23)):
        if i:
            a("v_add_u32 v%d, 2, v%d" % (T + 2, T + 2))
        a("v_bfe_u32 v%d, v%d, 1, 3" % (T + 3, T + 2))
        a("v_xor_b32 v%d, v%d, v%d" % (T + 3, T + 3, T + 5))
        a("v_lshlrev_b32 v%d, 4, v%d" % (T + 3, T + 3))
        a("v_and_b32 v%d, 3, v0" % (T + 6))
        a("v_lshl_add_u32 v%d, v%d, 2, v%d" % (T + 3, T + 6, T + 3))
        a("v_lshl_add_u32 v%d, v%d, 11, v%d" % (d, T + 2, T + 3))
    a("v_subrev_u32 v23, 256, v23")
    a("s_mul_i32 s3, %s, 48" % sWave)
    a("v_add_u32 v%d, s3, v%d" % (T + 4, T))
    for j in range(6):
        a("v_add_u32 v%d, %d, v%d" % (T + 2, 8 * j, T + 4))
        a("v_mul_u32_u24 v%d, 0xaaab, v%d" % (T + 3, T + 2))
        a("v_lshrrev_b32 v%d, 17, v%d" % (T + 3, T + 3))
        a("v_lshrrev_b32 v%d, 1, v%d" % (T + 5, T + 3))
        a("v_and_b32 v%d, 4, v%d" % (T + 5, T + 5))
        a("v_and_or_b32 v%d, v%d, 2, v%d" % (T + 3, T + 3, T + 5))
        a("v_xor_b32 v%d, v%d, v%d" % (T + 3, T + 3, T + 1))
        a("v_lshlrev_b32 v%d, 11, v%d" % (T + 2, T + 2))
        a("v_lshl_add_u32 v%d, v%d, 4, v%d" % (T + 2, T + 3, T + 2))
        a("v_subrev_u32 v%d, %d, v%d" % (vBW[j], (j & 3) * 1024, T + 2))
    return L


def b_dma_x(t):
    st = t % 3
    U = [["s_add_u32 m0, s28, %d" % BXO[st], "buffer_load_dword v%d, s[8:11], %s offen lds ;@vm bx%d" % (vBH, sBH, t)],
         ["buffer_load_dword v23, s[8:11], %s offen offset:256 lds ;@vm bx%d" % (sBH, t)]]
    for j in range(4):
        U.append((["s_add_u32 m0, %s, %d" % (sM0, BXO[st] + 2048)] if j == 0 else []) +
                 ["buffer_load_dwordx4 v%d, s[8:11], %s offen offset:%d lds ;@vm bx%d" % (vBX + j, sBX, j * 1024, t)])
    U[-1] += ["s_add_u32 %s, %s, 128" % (sBX, sBX)]
    U[1] += ["s_add_u32 %s, %s, 128" % (sBH, sBH)]
    return U


def b_dma_w(t):
    st = t % 3
    U = []
    for j in range(6):
        U.append((["s_add_u32 m0, s30, %d" % (BWO[st] + (j >> 2) * 4096)] if j % 4 == 0 else []) +
                 ["buffer_load_dwordx4 v%d, s[12:15], %s offen offset:%d lds ;@vm bw%d" % (vBW[j], sBW, (j & 3) * 1024, t)])
    U[-1] += ["s_add_u32 %s, %s, %d" % (sBW, sBW, 64 * 6144)]
    return U


def b_xread(t, row):
    st = t % 3
    return ["ds_read_b128 %s, v%d offset:%d" % (a4(bxfr(t, row, hs)), vBXr + (2 if st == 0 else 0) + hs, (0 if st == 0 else BXO[st]) + row * 2048) for hs in range(2)]


def b_wread(t):
    st = t % 3
    L = []
    for hs in range(2):
        for i in range(3):
            for j in range(2):
                off = (0 if st == 1 else BWO[st] - BWO[2]) + (hs * 32 + j * 4) * 384
                L.append("ds_read_b64_tr_b16 %s, v%d offset:%d" % (a2(bwfr(t, i, hs) + 2 * j), vBWr + (3 if st == 1 else 0) + i, off))
    return L


def b_stage_out(mi):
    L = []
    for i in range(3):
        t = vT + 4 * (i % 2)
        L += ["v_accvgpr_read_b32 v%d, a%d" % (t + e, bacc(mi, i) + e) for e in range(4)]
        L += ["v_cvt_pk_bf16_f32 v%d, v%d, v%d" % (t, t, t + 1), "v_cvt_pk_bf16_f32 v%d, v%d, v%d" % (t + 1, t + 2, t + 3),
              "ds_write_b64 v%d, %s offset:%d" % (vST, v2(t), mi * 16 * PITCH + i * 32)]
    return L


def b_step(a, t, stores, valu=None, late=None, post_bar=None):
    M = []
    for mi in range(9):
        for i in range(3):
            for n, hs in enumerate((0, 1) if (3 * mi + i) % 2 == 0 else (1, 0)):
                d = a4(bacc(mi, i))
                M.append(mfma(d, a4(bwfr(t, i, hs)), a4(bxfr(t, mi, hs)), "0" if (t == 0 and n == 0) else d))
    G = [[] for _ in range(54)]
    BB = 6 * (9 - BL) + envi("BBO", 4)
    for r in range(9):
        q = r + BL
        if q < 9:
            G[6 * r] += b_xread(t, q)
        elif t < 15:
            G[max(6 * r, BB)] += b_xread(t + 1, q - 9)
        if r < 8 or t < 15:
            G[6 * r + 5].append(";@need %s" % a4(bxfr(t, r + 1, 1) if r < 8 else bxfr(t + 1, 0, 1)))
    if t < 15:
        tags = "bx%d" % (t + 1) + (",bw%d" % (t + 2) if t + 2 < 16 else "")
        post = []
        if t == TARR:
            tags += ",st"
            post = ["s_cmp_lg_u32 s101, 0", "s_cbranch_scc1 Lk1_arr ;@keep", "v_mov_b32 v127, 1", "s_and_b32 s41, s2, 128",
                    "s_mov_b64 exec, 1", "buffer_atomic_add v127, off, s[36:39], s41 sc1 ;@cond", "s_mov_b64 exec, -1", "Lk1_arr: ;@keep"]
        G[BB] = [";@waitvm %s lgkmcnt(0)" % tags, "s_barrier ;@keep"] + G[BB] + post + (post_bar or [])
        L = b_wread(t + 1)
        for i in range(6):
            G[2 + 6 * i] += L[2 * i:2 * i + 2]
    carry = a.carry
    I = [] if 'stlast' in FL else list(stores)
    if t + 3 < 16:
        I += b_dma_x(t + 3)
    if t + 4 < 16:
        I += b_dma_w(t + 4)
    if 'stlast' in FL:
        I += list(stores)
    I = tidy(I) + (late or [])
    free = [g for g in range(54) if not G[g] or G[g][0].startswith(";@need")]

    def put(U, lo, hi):
        c = [g for g in free if lo <= g < hi]
        assert len(U) <= len(c), (len(U), len(c))
        pos = [c[(i * len(c)) // len(U)] for i in range(len(U))]
        for g, u in zip(pos, U):
            G[g] = u + G[g]
            free.remove(g)
    put(carry, 0, (BB - 1) if t < 15 else 54)
    k = min(len(I), 4 if t < 14 else 7)
    put(I[:k], BB + 1, 54)
    a.carry = I[k:]
    if valu:
        lo, hi, U = valu
        for i, u in enumerate(U):
            G[lo + (i * (hi - lo)) // len(U)] += u
    if t == 15:
        G[BB] = ["s_waitcnt lgkmcnt(0)", "s_barrier ;@keep"] + G[BB]
        for mi in range(7):
            L = b_stage_out(mi)
            g0 = 6 * (mi + 2) if mi != 5 else BB + 1
            n = 6 if mi != 5 else 7
            for i in range(n):
                G[g0 + i] += L[(i * 21) // n:((i + 1) * 21) // n]
    for i in range(54):
        a(M[i])
        for y in G[i]:
            a(y)


def b_job(a, tl):
    T = vT
    a("v_and_b32 v%d, 15, v0" % T)
    a("v_lshlrev_b32 v%d, 7, v%d" % (T, T))
    a("v_bfe_u32 v%d, v0, 1, 3" % (T + 1))
    a("v_lshrrev_b32 v%d, 4, v0" % (T + 2))
    a("v_xor_b32 v%d, v%d, v%d" % (T + 1, T + 1, T + 2))
    a("v_lshl_add_u32 v%d, v%d, 4, v%d" % (vBXr, T + 1, T))
    a("v_xor_b32 v%d, 64, v%d" % (vBXr + 1, vBXr))
    a("v_add_u32 v%d, %d, v%d" % (vBXr + 2, BXO[0], vBXr))
    a("v_add_u32 v%d, %d, v%d" % (vBXr + 3, BXO[0], vBXr + 1))
    a("v_bfe_u32 v%d, v0, 2, 2" % T)
    a("v_lshl_add_u32 v%d, v%d, 3, v%d" % (T + 5, T + 2, T))
    a("v_mul_u32_u24 v%d, 384, v%d" % (T + 1, T + 5))
    a("v_and_b32 v%d, 1, v0" % (T + 3))
    a("v_lshl_add_u32 v%d, v%d, 3, v%d" % (T + 1, T + 3, T + 1))
    a("v_add_u32 v%d, %d, v%d" % (T + 1, BWO[2], T + 1))
    a("v_lshrrev_b32 v%d, 1, v%d" % (T, T + 5))
    a("v_and_b32 v%d, 4, v%d" % (T, T))
    a("v_and_or_b32 v%d, v%d, 2, v%d" % (T, T + 5, T))
    a("v_bfe_u32 v%d, v0, 1, 1" % (T + 2))
    a("s_mul_i32 s4, %s, 3" % sWave)
    for i in range(3):
        a("s_add_u32 s3, s4, %d" % i)
        a("s_and_b32 s5, s3, 3")
        a("s_lshl_b32 s5, s5, 1")
        a("s_lshr_b32 s3, s3, 2")
        a("s_lshl_b32 s3, s3, 7")
        a("v_add_u32 v%d, s5, v%d" % (T + 3, T + 2))
        a("v_xor_b32 v%d, v%d, v%d" % (T + 3, T + 3, T))
        a("v_lshl_add_u32 v%d, v%d, 4, v%d" % (T + 3, T + 3, T + 1))
        a("v_add_u32 v%d, s3, v%d" % (vBWr + i, T + 3))
        a("v_add_u32 v%d, %d, v%d" % (vBWr + 3 + i, BWO[1] - BWO[2], vBWr + i))
    a("s_barrier")
    tl.stamp(8)
    for x in b_wread(0):
        a(x)
    for r in range(BL):
        for x in b_xread(0, r):
            a(x)
    a("s_waitcnt lgkmcnt(0)")
    a("s_barrier")
    a.carry = a.carry + b_dma_w(3)
    vQa, vKa, vVa = 120, 121, 122
    MA, MB_, MA0, ONE = 144, 148, 152, 156
    QF, KF, VF, SS, OO, LL, MX = 32, 48, 68, 88, 32, 120, 136
    NEG = 0xf149f2ca
    T = 128
    c_ = Col()
    c_("v_and_b32 v%d, 15, v0" % T)
    c_("v_mul_u32_u24 v%d, %d, v%d" % (T, PITCH, T))
    c_("v_lshrrev_b32 v%d, 4, v0" % (T + 1))
    c_("v_lshl_add_u32 v%d, v%d, 3, v%d" % (T, T + 1, T))
    c_("s_mul_i32 s3, %s, 96" % sWave)
    c_("s_add_u32 s3, s3, %d" % STG)
    c_("v_add_u32 v%d, s3, v%d" % (vST, T))
    c_("v_and_b32 v%d, 15, v0" % T)
    c_("v_lshrrev_b32 v%d, 4, v0" % (T + 1))
    c_("s_add_u32 s3, %s, 16" % sWm)
    c_("v_lshl_add_u32 v%d, v%d, 1, s3" % (T + 2, T))
    c_("s_lshl_b32 s4, %s, 6" % sWn)
    c_("s_add_u32 s4, s4, %d" % STG)
    c_("v_mul_u32_u24 v%d, %d, v%d" % (vQa, PITCH, T + 2))
    c_("v_lshl_add_u32 v%d, v%d, 4, v%d" % (vQa, T + 1, vQa))
    c_("v_add_u32 v%d, s4, v%d" % (vQa, vQa))
    c_("v_subrev_u32 v%d, 32, v%d" % (T + 2, T + 2))
    c_("v_max_i32 v%d, 0, v%d" % (T + 2, T + 2))
    c_("v_mul_u32_u24 v%d, %d, v%d" % (vKa, PITCH, T + 2))
    c_("v_lshl_add_u32 v%d, v%d, 4, v%d" % (vKa, T + 1, vKa))
    c_("v_add_u32 v%d, s4, v%d" % (vKa, vKa))
    c_("v_bfe_u32 v%d, v0, 2, 2" % (T + 3))
    c_("v_lshl_add_u32 v%d, v%d, 2, v%d" % (T + 3, T + 1, T + 3))
    c_("v_lshl_add_u32 v%d, v%d, 1, s3" % (T + 3, T + 3))
    c_("v_and_b32 v%d, 3, v0" % (T + 4))
    c_("v_lshlrev_b32 v%d, 3, v%d" % (T + 4, T + 4))
    c_("v_add_u32 v%d, s4, v%d" % (T + 4, T + 4))
    c_("v_mad_u32_u24 v%d, v%d, s5, v%d" % (vVa, T + 3, T + 4) if False else "s_movk_i32 s5, %d" % PITCH)
    c_("v_mad_u32_u24 v%d, v%d, s5, v%d" % (vVa, T + 3, T + 4))
    c_("v_subrev_u32 v%d, 32, v%d" % (T + 3, T + 3))
    c_("v_max_i32 v%d, 0, v%d" % (T + 3, T + 3))
    c_("v_mad_u32_u24 v%d, v%d, s5, v%d" % (vVa + 1, T + 3, T + 4))
    c_("v_lshlrev_b32 v%d, 2, v%d" % (T + 1, T + 1))
    c_("v_sub_u32 v%d, v%d, v%d" % (T, T, T + 1))
    c_("v_mov_b32 v%d, 0x%08x" % (T + 1, NEG))
    c_("s_cmp_eq_u32 %s, 0" % sRB)
    c_("s_cselect_b32 s3, 0x%08x, 0" % NEG)
    for r in range(4):
        c_("v_cmp_lt_i32 vcc, %d, v%d" % (r - 9, T))
        c_("v_cndmask_b32 v%d, 0, v%d, vcc" % (MA + r, T + 1))
        c_("v_subrev_u32 v%d, %d, v%d" % (T + 2, r, T))
        c_("v_cmp_lt_u32 vcc, 7, v%d" % (T + 2))
        c_("v_cndmask_b32 v%d, 0, v%d, vcc" % (MB_ + r, T + 1))
        c_("v_min_f32 v%d, s3, v%d" % (MA0 + r, MA + r))
        c_("v_mov_b32 v%d, 0x3f803f80" % (ONE + r))
    srd(c_, 16, 50, 51, 4 * MB, WS_OB)
    c_("s_lshl_b32 s3, %s, 18" % sRB)
    c_("s_lshl_b32 s4, %s, 14" % sCP)
    c_("s_add_u32 s3, s3, s4")
    c_("s_lshl_b32 s4, %s, 13" % sWm)
    c_("s_add_u32 s3, s3, s4")
    c_("s_lshl_b32 s4, %s, 10" % sWn)
    c_("s_add_u32 s6, s3, s4")
    c = (32 ** -0.5) * math.log2(math.e)
    c_("s_mov_b32 s7, 0x%08x" % f32bits(c))
    c_("s_lshl_b32 s65, %s, 8" % sRB)
    c_("s_lshl_b32 s3, %s, 4" % sCP)
    c_("s_add_u32 s65, s65, s3")
    c_("s_lshl_b32 s3, s101, 2")
    c_("s_add_u32 s65, s65, s3")
    c_("s_add_u32 s65, s65, %d" % FLG_B)
    c_("s_mov_b32 s40, 0")
    c_("v_mov_b32 v119, 0")
    c_("s_mov_b64 s[4:5], s[50:51]")
    k2.early_q(c_)
    A1 = c_.atoms(2)
    c_ = Col()
    k2.early(c_)
    A2 = c_.atoms(2)
    LQ, L1, L2 = k2.early_loads()
    h = len(A1) // 2
    TQ = envi("TQ", 12)
    for t in range(16):
        kw = {}
        if t in (8, 13):
            z = ["v_mov_b32 v%d, 0" % r for r in range(k2.OV + (0 if t == 8 else 48), k2.OV + (48 if t == 8 else 96))]
            kw['valu'] = (0, 54, [z[i:i + 2] for i in range(0, 48, 2)])
        if t == 7 and 'd' in TCH:
            kw['late'] = [code_touch("Lc2", "Lk2_chk", 116, "v117", 56, "s101", "d")]
        if t == 9:
            kw['valu'] = (0, 54, A1[:h])
        if t == 10:
            kw['valu'] = (0, 38, A1[h:])
        if t == TQ - 1:
            kw['late'] = [["buffer_load_dword v125, v119, s[36:39], 0 offen sc1"]]
        if t == TQ:
            kw['post_bar'] = [";@waitvm pq", "v_cmp_gt_u32 vcc, 0x80, v125", "s_cbranch_vccnz Lk1_spinq ;@keep", "Lk1_gotq: ;@keep"]
            kw['late'] = LQ[:8]
        if t == TQ + 1:
            kw['late'] = LQ[8:]
        if t == 13:
            kw['late'] = kw.get('late', []) + [["buffer_load_dword v126, v119, s[36:39], 0 offen offset:128 sc1 ;@vm pc"]]
            kw['latefirst'] = True
        if t == 14:
            kw['valu'] = (0, 38, A2)
            kw['post_bar'] = [";@waitvm pc", "v_cmp_gt_u32 vcc, 0x80, v126", "s_cbranch_vccnz Lk1_spin ;@keep", "Lk1_got: ;@keep"]
            kw['late'] = L1
        kw.pop('latefirst', None)
        a(";@wtphase %d" % (4 if t < 9 else 5))
        b_step(a, t, a.bstores[t], **kw)
        tl.stamp(20 + t)
    a("s_mov_b64 s[44:45], s[42:43]")
    assert not a.carry
    tl.stamp(9)
    for mi in (7, 8):
        for x in b_stage_out(mi):
            a(x)
    a("s_waitcnt lgkmcnt(0)")
    a("s_barrier")
    n0 = len(a.ins)
    a("ds_read_b128 %s, v%d offset:128" % (v4(KF), vKa))
    for q in range(4):
        a("ds_read_b128 %s, v%d offset:%d" % (v4(QF + 4 * q), vQa, q * 32 * PITCH))
        a("ds_read_b128 %s, v%d offset:%d" % (v4(KF + 4 + 4 * q), vQa, q * 32 * PITCH + 128))
    for f in range(2):
        a("ds_read_b64_tr_b16 %s, v%d offset:%d" % (v2(VF + 10 * f), vVa + 1, 256 + 32 * f))
        for q in range(4):
            a("ds_read_b64_tr_b16 %s, v%d offset:%d" % (v2(VF + 10 * f + 2 + 2 * q), vVa, q * 32 * PITCH + 256 + 32 * f))
    for r in range(k2.aO, k2.aO + 48):
        a("v_accvgpr_write_b32 a%d, 0" % r)
    for q in range(4):
        a(mfma(v4(SS + 8 * q), v4(KF + 4 * q), v4(QF + 4 * q), v4(MA0 if q == 0 else MA)))
        a(mfma(v4(SS + 8 * q + 4), v4(KF + 4 * q + 4), v4(QF + 4 * q), v4(MB_)))
    for q in range(4):
        s_, m = SS + 8 * q, MX + q
        a("v_max3_f32 v%d, v%d, v%d, v%d" % (m, s_, s_ + 1, s_ + 2))
        a("v_max3_f32 v%d, v%d, v%d, v%d" % (m, m, s_ + 3, s_ + 4))
        a("v_max3_f32 v%d, v%d, v%d, v%d" % (m, m, s_ + 5, s_ + 6))
        a("v_max_f32 v%d, v%d, v%d" % (m, m, s_ + 7))
    for sw in ("v_permlane16_swap_b32", "v_permlane32_swap_b32"):
        for q in range(4):
            a("v_mov_b32 v%d, v%d" % (MX + 4 + q, MX + q))
        for q in range(4):
            a("%s v%d, v%d" % (sw, MX + q, MX + 4 + q))
        for q in range(4):
            a("v_max_f32 v%d, v%d, v%d" % (MX + q, MX + q, MX + 4 + q))
    for q in range(4):
        a("v_mul_f32 v%d, s7, v%d" % (MX + q, MX + q))
    for q in range(4):
        s_ = SS + 8 * q
        for e in range(8):
            a("v_fma_f32 v%d, v%d, s7, -v%d" % (s_ + e, s_ + e, MX + q))
        for e in range(8):
            a("v_exp_f32 v%d, v%d" % (s_ + e, s_ + e))
    for q in range(4):
        s_ = SS + 8 * q
        for e in range(4):
            a("v_cvt_pk_bf16_f32 v%d, v%d, v%d" % (s_ + e, s_ + 2 * e, s_ + 2 * e + 1))
    for q in range(4):
        a(mfma(v4(LL + 4 * q), v4(ONE), v4(SS + 8 * q), "0"))
        for f in range(2):
            a(mfma(v4(OO + 8 * q + 4 * f), v4(VF + 10 * f + 2 * q), v4(SS + 8 * q), "0"))
    for q in range(4):
        a("v_rcp_f32 v%d, v%d" % (LL + 4 * q, LL + 4 * q))
    for q in range(4):
        o = OO + 8 * q
        for e in range(0, 8, 2):
            a("v_pk_mul_f32 %s, %s, %s op_sel_hi:[1,0]" % (v2(o + e), v2(o + e), v2(LL + 4 * q)))
        for e in range(4):
            a("v_cvt_pk_bf16_f32 v%d, v%d, v%d" % (o + e, o + 2 * e, o + 2 * e + 1))
        a("s_add_u32 s3, s6, %d" % (q * 2048))
        a("buffer_store_dwordx4 %s, v%d, s[16:19], s3 offen sc1 ;@vm ob" % (v4(o), vLane))
    from asmlib import Ins
    body = a.ins[n0:]
    del a.ins[n0:]
    lo, hi = 20, len(body) - 45
    assert NEARLY + NSPS * (TARR - 1) >= 32 and TARR <= 9
    for i, x in enumerate(body):
        a.ins.append(x)
        if lo <= i < hi:
            for k in range(((i - lo) * len(L2)) // (hi - lo), ((i - lo + 1) * len(L2)) // (hi - lo)):
                a.ins += [Ins(y) for y in L2[k]]


def gen():
    a = Asm()
    a.carry = []
    a.bstores = [[store(n) for n in range(NEARLY + NSPS * t, min(32, NEARLY + NSPS * (t + 1)))] for t in range(16)]
    tl = TL(a, 0, 50, 'tl' in FL)
    a.tl = tl
    T = vT
    a("s_cmp_lt_u32 s2, 256")
    a("s_cbranch_scc1 Lk1_go")
    a("s_endpgm")
    a.label("Lk1_go")
    if 'swap' in FL:
        a("s_xor_b32 s2, s2, 128")
    tl.early()
    a("s_load_dwordx16 s[32:47], s[0:1], 0")
    a("s_load_dwordx2 s[48:49], s[0:1], 64")
    a("s_load_dwordx2 s[50:51], s[0:1], 88")
    a("s_load_dwordx2 s[90:91], s[0:1], 80")
    a("v_lshrrev_b32 v%d, 6, v0" % T)
    a("v_readfirstlane_b32 %s, v%d" % (sWave, T))
    a("v_and_b32 v0, 63, v0")
    a("v_lshlrev_b32 v%d, 4, v0" % vLane)
    a("s_mov_b32 s101, %s" % sWave)
    if 'a' in TCH:
        for x in code_touch("Lc00", "Lk1_b", T + 1, "v%d" % vPFd, 92, "s101", "a"):
            a(x)
        a.label("Lc00", keep=True)
    a("s_lshr_b32 %s, %s, 1" % (sWm, sWave))
    a("s_and_b32 %s, %s, 1" % (sWn, sWave))
    a("s_lshl_b32 %s, %s, 12" % (sM0, sWave))
    a("s_and_b32 s3, s2, 1")
    a("s_lshl_b32 s3, s3, 2")
    a("s_bfe_u32 s6, s2, 0x20003")
    a("s_add_u32 s3, s3, s6")
    a("s_lshl_b32 %s, s3, 8" % sM)
    a("s_bfe_u32 s3, s2, 0x20001")
    a("s_lshl_b32 s3, s3, 2")
    a("s_bfe_u32 s7, s2, 0x20005")
    a("s_add_u32 s3, s3, s7")
    a("s_lshl_b32 %s, s3, 8" % sN)
    a("s_cmp_lt_u32 s2, 128")
    a("s_cselect_b32 s5, 11, 10")
    a("s_lshl_b32 s3, %s, 7" % sWm)
    a("s_lshl_b32 s4, %s, 5" % sWn)
    a("s_add_u32 s3, s3, s4")
    a("v_lshrrev_b32 v%d, 3, v0" % T)
    a("v_add_u32 v%d, s3, v%d" % (T, T))
    a("v_and_b32 v%d, 7, v0" % (T + 1))
    for j in range(4):
        a("v_add_u32 v%d, %d, v%d" % (T + 2, 8 * j, T))
        a("v_bfe_u32 v%d, v%d, 1, 3" % (T + 3, T + 2))
        a("v_xor_b32 v%d, v%d, v%d" % (T + 3, T + 3, T + 1))
        a("v_lshlrev_b32 v%d, s5, v%d" % (T + 2, T + 2))
        a("v_lshl_add_u32 v%d, v%d, 4, v%d" % (T + 2, T + 3, T + 2))
        a("v_subrev_u32 v%d, %d, v%d" % (vXd + j, j * 1024, T + 2))
    a("s_lshl_b32 s3, %s, 3" % sWave)
    a("v_lshrrev_b32 v%d, 5, v0" % T)
    a("v_add_u32 v%d, s3, v%d" % (T, T))
    a("v_and_b32 v%d, 31, v0" % (T + 1))
    for j in range(4):
        a("v_add_u32 v%d, %d, v%d" % (T + 2, 2 * j, T))
        a("v_and_b32 v%d, 3, v%d" % (T + 3, T + 2))
        a("v_lshlrev_b32 v%d, 1, v%d" % (T + 3, T + 3))
        a("v_and_or_b32 v%d, v%d, 8, v%d" % (T + 3, T + 2, T + 3))
        a("v_xor_b32 v%d, v%d, v%d" % (T + 3, T + 3, T + 1))
        a("v_lshlrev_b32 v%d, 13, v%d" % (T + 2, T + 2))
        a("v_lshl_add_u32 v%d, v%d, 4, v%d" % (T + 2, T + 3, T + 2))
        a("v_subrev_u32 v%d, %d, v%d" % (vWd + j, j * 1024, T + 2))
    a("s_lshl_b32 %s, %s, s5" % (sXo, sM))
    a("s_lshl_b32 %s, 64, s5" % sLdx64)
    a("s_mov_b32 %s, %s" % (sXre, sXo))
    a("s_lshl_b32 %s, %s, 1" % (sWo, sN))
    a("s_mov_b32 %s, %s" % (sWre, sWo))
    a("s_lshl_b32 s3, 1, s5")
    a("s_add_u32 %s, %s, s3" % (sXend, sXo))
    a("s_lshl_b32 s3, s3, 12")
    a("s_add_u32 %s, %s, s3" % (sWend, sWo))
    a("s_bfe_u32 s3, s2, 0x20001")
    a("s_and_b32 s4, s2, 1")
    a("s_lshl_b32 s4, s4, 1")
    a("s_add_u32 s3, s3, s4")
    a("s_and_b32 s3, s3, %d" % (0 if 'norot' in FL else 3))
    a("s_sub_u32 s4, s5, 2")
    a("s_lshl_b32 s3, s3, s4")
    a("s_add_u32 %s, %s, s3" % (sXo, sXo))
    a("s_lshl_b32 s3, s3, 12")
    a("s_add_u32 %s, %s, s3" % (sWo, sWo))
    a("s_mov_b32 s95, s6")
    a("s_cmp_lt_u32 s2, 128")
    a("s_cselect_b32 s6, -1, 8")
    a("s_waitcnt lgkmcnt(0)")
    a("s_cmp_lt_u32 s2, 128")
    a("s_cselect_b64 s[8:9], s[32:33], s[34:35]")
    a("s_mov_b32 s10, %d" % (2 * MB))
    a("s_cselect_b32 s10, %d, s10" % (4 * MB))
    a("s_mov_b32 s11, 0x00020000")
    a("s_cselect_b64 s[12:13], s[36:37], s[38:39]")
    a("s_mov_b32 s14, %d" % (4 * MB))
    a("s_cselect_b32 s14, %d, s14" % (8 * MB))
    a("s_mov_b32 s15, 0x00020000")
    a("s_mov_b64 s[64:65], s[40:41]")

    def now(pre, ld, post):
        for x in pre + ["s_nop 0"] + ([] if 'nodma' in FL else ld) + post:
            a(x)
    now(*dma_w(0, 0))
    now(*dma_x(0, 0))
    now(*dma_w(0, 1))
    tl.stamp(7)
    srd(a, 16, 50, 51, FLG_END - FLG, WS_XCH + FLG)
    a("v_lshlrev_b32 v23, 20, v0")
    a("s_and_b32 s3, s2, 7")
    a("s_lshr_b32 s4, s2, 6")
    a("s_lshl_b32 s4, s4, 3")
    a("s_add_u32 s3, s3, s4")
    a("s_lshl_b32 s3, s3, 4")
    a("s_add_u32 s3, s3, %d" % (FLG_T - FLG))
    a("s_bfe_u32 s4, s2, 0x30003")
    a("s_lshl_b32 s4, s4, 9")
    a("s_add_u32 s56, s3, s4")
    a("s_sub_u32 s4, %d, s4" % (15 * 512))
    a("s_add_u32 s57, s3, s4")
    for x in b_ids("s58", "s59"):
        a(x)
    a("s_lshl_b32 s58, s58, 8")
    a("s_lshl_b32 s59, s59, 4")
    a("s_add_u32 s58, s58, s59")
    a("s_add_u32 s58, s58, %d" % (FLG_B - FLG))
    a("s_lshl_b32 s59, s2, 4")
    clears = {60 + 12 * i: ["buffer_store_dwordx4 %s, v23, s[16:19], s%d offen sc1 ;@zero" % (v4(T + 4), 56 + i)] for i in range(4)}
    a("v_lshlrev_b32 v%d, 7, v0" % vPF)
    a("s_lshl_b32 %s, s2, 13" % sPo)
    a("s_mov_b64 s[60:61], s[40:41]")
    a("s_mov_b32 s62, %d" % (4 * MB if 'wuv' in FL else 0))
    a("s_cmp_eq_u32 %s, 1" % sWave)
    a("s_cselect_b64 s[60:61], s[46:47], s[60:61]")
    a("s_cselect_b32 s62, %d, s62" % (6 * MB))
    a("s_cmp_eq_u32 %s, 2" % sWave)
    a("s_cselect_b64 s[60:61], s[44:45], s[60:61]")
    a("s_cselect_b32 s62, %d, s62" % (4 * MB))
    a("s_cmp_eq_u32 %s, 3" % sWave)
    a("s_cselect_b32 s62, 0, s62")
    a("s_mov_b32 s63, 0x00020000")
    D0, D1, D2 = [int(x) for x in os.environ.get("WD", "0,6,6").split(",")]
    a("s_mov_b32 s3, %d" % (D0 * MB))
    a("s_cmp_eq_u32 %s, 1" % sWave)
    a("s_cselect_b32 s3, %d, s3" % (D1 * MB))
    a("s_cmp_eq_u32 %s, 2" % sWave)
    a("s_cselect_b32 s3, %d, s3" % (D2 * MB))
    a("s_sub_u32 %s, %s, s3" % (sPo, sPo))
    a.label("Lc0", keep=True)
    now(*[[y.replace("@vm i00", "@vm p1") for y in z] for z in dma_w(1, 0)])
    a("s_lshl_b32 s4, %s, 13" % sWm)
    a("v_and_b32 v%d, 15, v0" % T)
    a("v_lshlrev_b32 v%d, 7, v%d" % (T, T))
    a("v_add_u32 v%d, s4, v%d" % (T, T))
    a("v_bfe_u32 v%d, v0, 1, 3" % (T + 1))
    a("v_lshrrev_b32 v%d, 4, v0" % (T + 2))
    a("v_xor_b32 v%d, v%d, v%d" % (T + 1, T + 1, T + 2))
    a("v_lshl_add_u32 v%d, v%d, 4, v%d" % (vXr, T + 1, T))
    a("v_xor_b32 v%d, 64, v%d" % (vXr + 1, vXr))
    a("v_bfe_u32 v%d, v0, 2, 2" % T)
    a("v_lshl_add_u32 v%d, v%d, 3, v%d" % (T + 5, T + 2, T))
    a("v_lshlrev_b32 v%d, 9, v%d" % (T + 1, T + 5))
    a("v_and_b32 v%d, 1, v0" % (T + 3))
    a("v_lshl_add_u32 v%d, v%d, 3, v%d" % (T + 1, T + 3, T + 1))
    a("v_add_u32 v%d, %d, v%d" % (T + 1, WB, T + 1))
    a("v_lshlrev_b32 v%d, 1, v%d" % (T, T))
    a("v_and_or_b32 v%d, v%d, 8, v%d" % (T, T + 5, T))
    a("v_bfe_u32 v%d, v0, 1, 1" % (T + 2))
    a("s_lshl_b32 s4, %s, 4" % sWn)
    for ni in range(8):
        a("s_add_u32 s3, s4, %d" % (2 * ni))
        a("v_add_u32 v%d, s3, v%d" % (T + 3, T + 2))
        a("v_xor_b32 v%d, v%d, v%d" % (T + 3, T + 3, T))
        a("v_lshl_add_u32 v%d, v%d, 4, v%d" % (vWr + ni, T + 3, T + 1))
    npf = 4 if 'notouch' in FL else 5
    for r in range(4):
        a("v_mov_b32 v%d, 0" % (T + 4 + r))
    a(";@waitvm i11")
    a("s_barrier")
    tl.stamp(1)
    for x in wread(0, 0) + wread(0, 1) + xread(0, 0) + xread(0, 1):
        a(x)
    now(*dma_x(0, 1))
    now(*dma_w(1, 1))
    a("s_barrier")
    for x in code_touch("Lc1" if 'a' not in TCH else "Lk1_b", "Lc3", T, "v%d" % vPFd, 92, "s101", "b"):
        a(x)
    a.carry = units(*dma_x(1, 0)) + units(*dma_w(0, 0)) + ([] if FL2 else units(*dma_x(1, 1)) + units(*dma_w(0, 1)))
    carry0 = list(a.carry)
    a.label("Lc1", keep=True)
    a("s_cmp_lt_u32 s2, 128")
    a("s_cbranch_scc0 Lk1_kv")
    a(";@wtphase 1")
    dstep(a, False, first=True, withpf=True, mem=(None, clears))
    a("s_mov_b32 %s, 5" % sCnt)
    a.label("Lk1_ql", keep=True)
    dstep(a, False, withpf=True)
    a("s_sub_u32 %s, %s, 1" % (sCnt, sCnt))
    a("s_cmp_lg_u32 %s, 0" % sCnt)
    a("s_cbranch_scc1 Lk1_ql ;@keep")
    tail(a, False)
    tl.stamp(2)
    a("s_branch Lk1_b")
    for nm, reg, off in (("", 126, 128), ("q", 125, 0)):
        a.label("Lk1_spin" + nm)
        a("s_add_u32 s40, s40, 1")
        a("s_cmp_gt_u32 s40, %d" % envi("SPINMAX", 0x100000))
        a("s_cbranch_scc1 Lk1_got" + nm)
        a("s_sleep %d" % envi("SLP", 2))
        a("buffer_load_dword v%d, v119, s[36:39], 0 offen offset:%d sc1 ;@cond" % (reg, off))
        a("s_waitcnt vmcnt(0)")
        a("v_cmp_gt_u32 vcc, 0x80, v%d" % reg)
        a("s_cbranch_vccnz Lk1_spin" + nm)
        a("s_branch Lk1_got" + nm)
    a.label("Lk1_kv")
    a.carry = carry0
    a("s_mov_b64 s[60:61], s[40:41]")
    a("s_mov_b32 s62, %d" % (4 * MB))
    a("s_and_b32 s3, s2, 127")
    a("s_lshl_b32 s3, s3, 2")
    a("s_add_u32 s3, s3, %s" % sWave)
    a("s_mul_i32 %s, s3, %d" % (sPo, NSPF * 128))
    dstep(a, False, first=True, sp=True, mem=(None, clears))
    a("s_mov_b32 %s, 2" % sCnt)
    a.label("Lk1_kl", keep=True)
    dstep(a, False, sp=True)
    a("s_sub_u32 %s, %s, 1" % (sCnt, sCnt))
    a("s_cmp_lg_u32 %s, 0" % sCnt)
    a("s_cbranch_scc1 Lk1_kl ;@keep")
    tl.stamp(4)
    a(";@wtphase 2")
    kv_seam(a)
    tl.stamp(5)
    a(";@wtphase 3")
    for s_ in range(2):
        I1, I2 = std_I(s_)
        step(a, s_, True, False, I1, I2, None, None, mem=held(4 + 4 * s_, 8 + 4 * s_))
    tail(a, True)
    tl.stamp(2)
    a.label("Lk1_b")
    tl.stamp(6)
    b_job(a, tl)
    tl.stamp(10)
    tl.lo = 4
    tl.dump(vT, "s101")
    n1 = len(a.ins)

    def publish_b(vZ, vOne):
        a("s_mov_b64 exec, 1")
        a("buffer_store_dword v%d, v%d, s[52:55], s65 offen sc1" % (vOne, vZ))
        a("s_mov_b64 exec, -1")
    a(";@wtphase 6")
    a.label("Lc2")
    k2.main(a, publish_b)
    a.label("Lc3")
    for i, c in enumerate(a.ins[:n1]):
        if c.wide_store_data and not (';@zero' in c.text and i > [x.label for x in a.ins].index("Lk1_kv")):
            left = set(c.wide_store_data)
            for p_ in reversed(a.ins[:i]):
                hit = left & p_.wr
                if hit:
                    assert (p_.text.endswith(", 0") if ';@zero' in c.text else p_.mn.startswith(("v_cvt_pk", "v_accvgpr_write"))), (c.text, p_.text)
                    left -= hit
                    if not left:
                        break
    for i, c in enumerate(a.ins[:n1]):
        if c.mn == "v_accvgpr_write_b32" and c.rd and min(r[1] for r in c.wr) >= aHOLD:
            for p_ in reversed(a.ins[:i]):
                if c.rd & p_.wr:
                    assert p_.mn.startswith("v_cvt_pk"), (c.text, p_.text)
                    break
    return a.finish(auto_lgkm=True), 512, 256, 256, 163840
```

```python
from asmlib import Asm, srd, v4, v2, f32bits
from common import *
import k3

vLane, vRd, vNEG, vT = 1, 2, 4, 8
TRI, CUP, CDI, CLO = 16, 20, 24, 28
S0, S1, OV = 32, 96, 160
aQ, aO, aL, aONES, aFR = 0, 64, 96, 112, 116
NFR = 16
aQ2 = aFR + 4 * NFR
NA = aQ2 + 64
SB = (S0, S1)
SCR = 131072
LEAD = 4
sHead, sP, sWave, sU, sG, sK, sV, sWrapK, sBase, sM0, sCnt, sFlag, sRT = (
    "s20", "s21", "s22", "s23", "s24", "s25", "s26", "s27", "s28", "s29", "s30", "s60", "s31")
LO_BITS = (127 - 60) << 23
SPAN = (120 << 23)
SF = "sc1"
SUM4 = "sum4" in FL
BAR1 = True
SHARE = "noshare" not in FL
SKIP = "noskip" not in FL
TCH = os.environ.get("TCH", "abcdefg")
vRdV = 5
sD = "s42"


def a4(b):
    return "a[%d:%d]" % (b, b + 3)


def S(b, kb, qb):
    return SB[b] + 4 * (4 * kb + qb)


def Oop(db, qb):
    return v4(OV + 4 * (4 * db + qb)) if db < 6 else a4(aO + 4 * (4 * (db - 6) + qb))


def fr(f):
    return a4(aFR + 4 * (f % NFR))


def mfma(d, a_, b_, c):
    return "v_mfma_f32_16x16x32_bf16 %s, %s, %s, %s" % (d, a_, b_, c)


DBX = [0]


def rd(f, par):
    if f < 16:
        off = f * 1024
    else:
        db, j = ((f - 16) >> 1) ^ DBX[0], f & 1
        off = 32768 + (j * 8 + db) * 1024
    return "ds_read_b128 %s, v%d offset:%d" % (fr(f), (vRd if f < 16 else vRdV) + par, off)


def live(ty, kb, qb):
    return ty == 'N' or (ty == 'T' and kb <= qb)


def soft(b, j, ty='N'):
    E, C = [], []
    for qb in range(4):
        for h in range(2):
            r = S(b, 2 * j + h, qb)
            E += ["v_exp_f32 v%d, v%d" % (r + i, r + i) for i in range(4)]
            d = S(b, 2 * j, qb) + 2 * h
            C += ["v_cvt_pk_bf16_f32 v%d, v%d, v%d" % (d, r, r + 1), "v_cvt_pk_bf16_f32 v%d, v%d, v%d" % (d + 1, r + 2, r + 3)]
            if not live(ty, 2 * j + h, qb):
                E[-4:] = [""] * 4
                C[-2:] = ["v_mov_b32 v%d, 0" % d, "v_mov_b32 v%d, 0" % (d + 1)] if live(ty, 2 * j, qb) else ["", ""]
    if 'noexp' in FL:
        E = [x.replace("v_exp_f32", "v_mov_b32") for x in E]
    return E, C


def soft_plain(a, b, j, ty='N'):
    E, C = soft(b, j, ty)
    for g in range(8):
        for x in E[4 * g:4 * g + 4]:
            a(x)
        if g:
            for x in C[2 * g - 2:2 * g]:
                a(x)
    for x in C[14:]:
        a(x)


def dma(isV, slot, g1=True):
    s = sV if isV else sK
    wr, bs = ("s62", "s63") if isV else (sWrapK, sBase)
    m0 = ["s_add_u32 m0, %s, %d" % (sM0, slot * 32768 + h * 4096) for h in range(2)]
    pre = ["s_add_u32 s32, %s, 4096" % s]
    ld = ["buffer_load_dwordx4 v%d, s[12:15], %s offen offset:%d sc1 lds" % (vLane, "s32" if j >= 4 else s, (j & 3) * 1024) + " ;@vm kv%d" % slot for j in range(8)]
    post = ["s_add_u32 %s, %s, 32768" % (s, s), "s_cmp_eq_u32 %s, %s" % (s, wr), "s_cselect_b32 %s, %s, %s" % (s, bs, s),
            "s_cselect_b32 %s, -1, %s" % (wr, wr)]
    if SHARE and g1:
        w2, b2 = ("s58", "s59") if isV else ("s56", "s57")
        post = post[:3] + ["s_cselect_b32 %s, %s, %s" % (wr, w2, wr), "s_cselect_b32 %s, %s, %s" % (bs, b2, bs), "s_cselect_b32 %s, -1, %s" % (w2, w2)]
    if 'nodma' in FL:
        ld = ["s_nop 0"] * 8
    return m0, pre, ld, post


def qloads(blk_sreg, aQ=aQ):
    P = ["s_lshl_b32 s33, %s, 7" % sHead, "s_lshl_b32 s34, %s, 3" % blk_sreg, "s_add_u32 s33, s33, s34",
         "s_lshl_b32 s34, %s, 2" % sU, "s_add_u32 s33, s33, s34", "s_lshl_b32 s33, s33, 12"]
    L = []
    for qb in range(4):
        for ds in range(4):
            L.append("buffer_load_dwordx4 %s, v%d, s[8:11], s33 offen offset:%d sc1" % (a4(aQ + 16 * qb + 4 * ds), vLane, ds * 1024))
        if qb < 3:
            L.append("s_add_u32 s33, s33, 4096")
    return P, L


def phase(a, M, f0, par_same, par_next, nxt0, E, C, D, vm, first_need, extraM=None, extra=None, do_next=True, pre_u=None, post_u=None, DL=None, wr_u=None, noread=False):
    E = list(E) if E else []
    C = list(C) if C else []
    if 'novalu' in FL:
        E, C = [], []
    nE = [0]
    nC = [0]

    def e():
        if E:
            nE[0] += 1
            return [E.pop(0)]
        return []

    def c(n=1):
        out = []
        while n and C and 2 * (nC[0] + 1) <= nE[0]:
            out.append(C.pop(0))
            nC[0] += 1
            n -= 1
        return out

    def rr(m):
        if 'noreads' in FL:
            return []
        if m < 8:
            return [] if noread else [rd(f0 + 2 * m, par_same), rd(f0 + 2 * m + 1, par_same)]
        if not do_next:
            return []
        return [rd(nxt0 + 2 * (m - 8), par_next), rd(nxt0 + 2 * (m - 8) + 1, par_next)]

    def w(u):
        if u < 8 and first_need[u] is not None and not noread:
            return [";@need %s" % fr(f0 + first_need[u])]
        return []
    m0, pre, ld, post = D if D else ([None, None], [], ["" for _ in range(8)], [])
    ld = list(ld)
    X = list(extra) if extra else []

    def d():
        r = [ld.pop(0)] if D else []
        return r

    def x(n):
        return X.pop(0) if X else []
    for y in w(0):
        a(y)
    if D:
        a(m0[0])
    DL = list(DL) if DL else []
    for u in range(8):
        if BAR1 and f0 == 0 and vm is None:
            gaps = [e(), rr(u + LEAD), e(), DL.pop(0), e(), c(2), e(), DL.pop(0) + (c(1) if u == 7 else []) + w(u + 1)]
        elif BAR1:
            bar = [";@waitvm %s lgkmcnt(0)" % vm, "s_barrier ;@keep"]
            if u < 4:
                gaps = [e(), rr(u + LEAD), e(), c(1), e(), x(2), e(), c(1) + w(u + 1)]
            elif u == 4:
                gaps = [e(), x(2), e(), c(1), e(), x(2), e(), c(1) + w(5)]
            elif u == 5:
                gaps = [e(), [], e(), c(1), e(), bar + rr(8), e(), c(1)]
            else:
                gaps = [e(), rr(9 if u == 6 else 11), e(), c(1), e(), rr(10) if u == 6 else [], e(), c(1)]
        elif u < 4:
            gaps = [e(), rr(u + LEAD), e(), d() + (pre if u == 0 else []), e(), c(2), e(), d() + ([m0[1]] if (u == 1 and D) else []) + w(u + 1)]
        elif u == 4:
            gaps = [e(), post, e(), c(2), e(), x(3), e(), c(1) + w(5)]
        elif u == 5:
            bar = [(";@waitvm %s lgkmcnt(0)" % vm) if isinstance(vm, str) else ("s_waitcnt vmcnt(%d) lgkmcnt(0)" % vm)] + \
                ([] if 'nobar' in FL else ["s_barrier ;@keep"])
            gaps = [e(), x(2), e(), c(1), e(), bar + rr(8) + rr(9), e(), c(1) + w(6)]
        else:
            gaps = [e(), rr(u + LEAD), e(), c(1), e(), x(2), e(), c(2) + w(u + 1)]
        for i in range(8):
            g = 8 * u + i
            if pre_u and g < 44:
                gaps[i] = gaps[i] + [y for k in range((g * len(pre_u)) // 44, ((g + 1) * len(pre_u)) // 44) for y in pre_u[k]]
            if post_u and g >= 45:
                gaps[i] = gaps[i] + [y for k in range(((g - 45) * len(post_u)) // 19, ((g - 44) * len(post_u)) // 19) for y in post_u[k]]
            if wr_u and g >= 34 and g % 2 == 0:
                gaps[i] = [wr_u.pop(0)] + gaps[i]
            a(M[8 * u + i])
            for y in gaps[i]:
                a(y)
        if extraM and u < len(extraM):
            for y in extraM[u]:
                a(y)
                for z in x(2):
                    a(z)
    for y in wr_u or []:
        a(y)
    assert not E and not C and not X, (len(E), len(C), len(X))


def qk_mfmas(nb, masked, aQ=aQ, ty='N'):
    M = []
    for kb in range(4):
        for qb in range(4):
            d = v4(S(nb, kb, qb))
            order = range(4) if qb % 2 == 0 else range(3, -1, -1)
            for n, ds in enumerate(order):
                if n:
                    c = d
                elif masked:
                    c = v4(CLO if kb < qb else (CDI if kb == qb else CUP))
                else:
                    c = "0"
                if ty == 'T' and kb == qb and n == 0:
                    c = v4(TRI)
                M.append(mfma(d, fr(4 * kb + ds), a4(aQ + 16 * qb + 4 * ds), c) if live(ty, kb, qb) else "")
    return M


QK_NEED = [3, None, 7, None, 11, None, 15, None]
PV_NEED = [1, 3, 5, 7, 9, 11, 13, 15]


def qk_phase(a, par, masked, q, tq='N', tp='N'):
    nb = 1 - par
    E, C = soft(par, 1, tp)
    if BAR1:
        DL = []
        for isV in (False, True):
            m0, pre, ld, post = dma(isV, 2 * nb + (1 if isV else 0))
            if isV:
                pre = [y.replace("s32", "s43") for y in pre]
                ld = [y.replace("s32", "s43") for y in ld]
                DL[-1] += [m0[0]]
            else:
                a(m0[0])
            U = [[y] for y in ld]
            U[0] += pre
            U[3] += [m0[1]]
            DL += U
        phase(a, qk_mfmas(nb, masked, q, tq), 0, par, par, 16, E, C, None, None, QK_NEED, DL=DL, noread=(tq == 'Z'), do_next=(tp != 'Z'))
        return
    phase(a, qk_mfmas(nb, masked, q), 0, par, par, 16, E, C, dma(True, 2 * nb + 1), "kv%d" % (2 * par + 1), QK_NEED)


def pv_phase(a, par, e0=True, vm=None, extra=None, nxt=True, dodma=True, first=False, pre_u=None, post_u=None, g1=False, wr_u=None, tq='N', tp='N'):
    M = []
    for dd in range(8):
        db = dd ^ DBX[0]
        for qb in range(4):
            for n, j in enumerate((0, 1) if qb % 2 == 0 else (1, 0)):
                M.append(mfma(Oop(db, qb), fr(16 + 2 * dd + j), v4(S(par, 2 * j, qb)), "0" if (first and n == 0) else Oop(db, qb))
                         if live(tp, 2 * j, qb) else "")
    sums = [[mfma(a4(aL + 4 * qb), a4(aONES), v4(S(par, 2 * j, qb)), "0" if (first and j == 0) else a4(aL + 4 * qb)) if live(tp, 2 * j, qb) else ""
             for j in range(2)] for qb in range(4)]
    if SUM4:
        seq = [(qb, j, h) for j in range(2) for h in range(2) for qb in range(4)]
        small = ["v_mfma_f32_4x4x4_16b_bf16 %s, a[%d:%d], %s, %s" % (a4(aL + 4 * qb), aONES, aONES + 1, v2(S(par, 2 * j, qb) + 2 * h),
                                                                   "0" if (first and j == 0 and h == 0) else a4(aL + 4 * qb)) for qb, j, h in seq]
        pos = [int(x) for x in os.environ.get("S4POS", "1,5").split(",")]
        for u in range(8):
            for k in range(2):
                M[8 * u + pos[k]] += "\n" + small[2 * u + k]
        sums = None
    E, C = soft(1 - par, 0, tq) if e0 else (None, None)
    if BAR1:
        if dodma:
            P = dma(False, 0, g1)[3] + dma(True, 0, g1)[3]
            extra = [P[i:i + 2] for i in range(0, len(P), 2)]
            if SHARE and g1:
                extra += [kflip(par), [], [], [], [], [], vflip(par)]
            vm = "kv%d,kv%d" % (2 - 2 * par, 3 - 2 * par)
        dodma = False
    phase(a, M, 16, par, 1 - par, 0, E, C, dma(False, 2 * par) if dodma else None, vm or "kv%d" % (2 - 2 * par), PV_NEED, extraM=sums, extra=extra, do_next=nxt, pre_u=pre_u, post_u=post_u, wr_u=wr_u, noread=(tp == 'Z'))


def kflip(par):
    return ["s_sub_u32 s33, %s, 1" % sD, "s_cmp_le_u32 s33, 1", "s_cselect_b32 s33, 0x4000, 0", "v_add_u32 v%d, s33, v%d" % (vRd + par, vRd + par)]


def vflip(par):
    return ["s_cmp_le_u32 %s, 1" % sD, "s_cselect_b32 s33, 0x4000, 0", "v_add_u32 v%d, s33, v%d" % (vRdV + par, vRdV + par), "s_sub_u32 %s, %s, 1" % (sD, sD)]


def set_mask(a, delta):
    a("s_lshl_b32 s33, %s, 6" % sU)
    a("s_add_i32 s33, s33, %s" % delta)
    a("s_cmp_gt_i32 s33, 0")
    a("s_cselect_b32 s34, 0, 0xf149f2ca")
    a("s_cmp_lt_i32 s33, 0")
    a("s_cselect_b32 s33, 0xf149f2ca, 0")
    for r in range(4):
        a("v_mov_b32 v%d, s34" % (CUP + r))
    for r in range(4):
        a("v_mov_b32 v%d, s33" % (CLO + r))
    for r in range(4):
        a("v_med3_f32 v%d, v%d, v%d, v%d" % (CDI + r, TRI + r, CUP, CLO))


def body(a, par, masked=None, q=aQ, first=False, g1=False, tq='N', tp='N'):
    if masked is not None:
        set_mask(a, masked)
    qk_phase(a, par, masked is not None, q, tq, tp)
    pv_phase(a, par, first=first, g1=g1, tq=tq, tp=tp)


def fin(a, first, g, idx, tp='N'):
    DBX[0] = 4 * (1 - g)
    k3.poll_b(a)
    for f in range(2 * LEAD if tp != 'Z' else 0):
        a(rd(16 + f, 0))
    a("s_lshl_b32 s33, %s, 14" % sU)
    a("s_add_u32 s34, s33, %d" % (98304 + 32768 * g))
    a("s_add_u32 s33, s33, %d" % (98304 + 32768 * (1 - g)))
    a("v_add_u32 v%d, s34, v%d" % (vRd, vLane))
    a("v_add_u32 v%d, s33, v%d" % (vRd + 1, vLane))
    soft_plain(a, 0, 1, tp)
    pre_u, post_u = k3.early(S1, idx)
    W = ["ds_write_b128 v%d, %s offset:%d" % (vRd, Oop(4 * (1 - g) + (q >> 2), q & 3), q * 1024) for q in range(16)]
    pv_phase(a, 0, e0=False, vm="pb", nxt=False, dodma=False, first=first, pre_u=pre_u, post_u=post_u, wr_u=W, tp=tp)
    DBX[0] = 0


def otouch(a, i):
    if 'e' in TCH:
        a("s_sub_u32 s39, s101, 2")
        for k, w in enumerate(("s101", "s39")):
            for x in code_touch("Lk2_done", "Lo2" if 'f' in TCH else "Lc3", vT, "a%d" % (247 + k), 36, w, "e%d%d" % (i, k)):
                a(x)


def merge(a, g):
    a("s_lshl_b32 s33, %s, 10" % sWave)
    a("s_add_u32 s33, s33, 28672")
    a("s_xor_b32 s34, s33, 2048")
    a("v_add_u32 v%d, s33, v%d" % (vT + 6, vLane))
    a("v_add_u32 v%d, s34, v%d" % (vT + 7, vLane))
    read_l(a, CUP)
    a("ds_write_b128 v%d, %s" % (vT + 6, v4(CUP)))
    a("s_waitcnt lgkmcnt(0)")
    a("s_barrier")
    a("ds_read_b128 %s, v%d" % (v4(CLO), vT + 7))
    for q in range(16):
        a("ds_read_b128 %s, v%d offset:%d" % (v4(S0 + 4 * q), vRd + 1, q * 1024))
    for qb in range(4):
        a("v_add_f32 v%d, v%d, v%d" % (CUP + qb, CUP + qb, CLO + qb))
    a("s_sub_u32 s35, 15, %s" % sP)
    finalize(a, "s35", [2 * g, 2 * g + 1], 2, [CUP + q for q in range(4)], add_from=S0)


PEND = ";@setpend " + " | ".join(fr(f) for f in range(2 * LEAD))


def finalize(a, blk_sreg, ilist, flagbit, lsrc, add_from=None):
    vR, vC, vA = vT, vT + 4, vT + 6
    for qb in range(4):
        a("v_rcp_f32 v%d, v%d" % (vR + qb, lsrc[qb]))
    if flagbit is not None:
        for qb in range(4):
            a("v_subrev_u32 v%d, 0x%08x, v%d" % (lsrc[qb], LO_BITS, lsrc[qb]))
        a("v_max_u32 v%d, v%d, v%d" % (vC, lsrc[0], lsrc[1]))
        a("v_max3_u32 v%d, v%d, v%d, v%d" % (vC, vC, lsrc[2], lsrc[3]))
        a("s_mov_b32 s64, 0x207")
    a("s_lshl_b32 s33, %s, 20" % blk_sreg)
    a("s_lshl_b32 s34, %s, 15" % sHead)
    a("s_add_u32 s33, s33, s34")
    a("s_lshl_b32 s34, %s, 13" % sU)
    a("s_add_u32 s36, s33, s34")
    a("s_add_u32 s37, s36, 4096")
    a("s_add_u32 s38, s36, 16384")
    a("s_add_u32 s39, s36, 20480")
    dst = {}
    free = []
    chk = []
    sto = []
    for n, i in enumerate(ilist):
        for qb in range(4):
            src = []
            for h in range(2):
                db = 2 * i + h
                if db < 6:
                    r = OV + 4 * (4 * db + qb)
                else:
                    r = free.pop(0)
                    for e in range(4):
                        a("v_accvgpr_read_b32 v%d, a%d" % (r + e, aO + 4 * (4 * (db - 6) + qb) + e))
                if add_from is not None:
                    p = add_from + 4 * (4 * (2 * n + h) + qb)
                    for e in (0, 2):
                        a("v_pk_add_f32 %s, %s, %s" % (v2(r + e), v2(r + e), v2(p + e)))
                    free.append(p)
                src.append(r)
            if chk:
                a(chk.pop())
                a(sto.pop())
            for r in src:
                for e in (0, 2):
                    rp = vR + (qb & ~1)
                    a("v_pk_mul_f32 %s, %s, %s op_sel:[0,%d] op_sel_hi:[1,%d]" % (v2(r + e), v2(r + e), v2(rp), qb & 1, qb & 1))
            d = src[0]
            for h in range(2):
                a("v_cvt_pk_bf16_f32 v%d, v%d, v%d" % (d + 2 * h, src[h], src[h] + 1))
                a("v_cvt_pk_bf16_f32 v%d, v%d, v%d" % (d + 2 * h + 1, src[h] + 2, src[h] + 3))
            free.append(src[1])
            dst[(i, qb)] = d
            if flagbit is not None:
                chk.append(mfma(v4(CDI), a4(aONES), v4(d), v4(CDI) if dst.keys() != {(i, qb)} else "0"))
                sto.append("buffer_store_dwordx4 %s, v%d, s[16:19], s%d offen offset:%d %s" % (v4(dst[(i, qb)]), vLane, 36 + 2 * (i >> 1) + (qb >> 1), (qb & 1) * 2048 + (i & 1) * 1024, SF + " ;@vm cs"))
    if flagbit is not None:
        a(chk.pop())
        a(sto.pop())
        a("v_cmp_lt_u32 vcc, 0x%08x, v%d" % (SPAN if 'forceslow' not in FL else 0, vC))
        a("v_cmp_class_f32 s[40:41], v%d, s64" % CDI)
        a("s_or_b64 vcc, vcc, s[40:41]")
        a("s_cmp_lg_u64 vcc, 0")
        a("s_cselect_b32 s33, %d, 0" % flagbit)
        a("s_or_b32 %s, %s, s33" % (sFlag, sFlag))
        return
    for i in ilist:
        Ls = a.newlabel("Lss")
        a("s_bitcmp1_b32 s61, %d" % i)
        a("s_cbranch_scc0 %s" % Ls)
        for qb in range(4):
            a("buffer_store_dwordx4 %s, v%d, s[16:19], s%d offen offset:%d %s" % (v4(dst[(i, qb)]), vLane, 36 + 2 * (i >> 1) + (qb >> 1), (qb & 1) * 2048 + (i & 1) * 1024, SF + " ;@vm cs"))
        a.label(Ls)


def zero_acc(a):
    for r in range(aO, aO + 48):
        a("v_accvgpr_write_b32 a%d, 0" % r)
    for r in range(OV, OV + 96):
        a("v_mov_b32 v%d, 0" % r)


def read_l(a, dst, reduce=True):
    for qb in range(4):
        a("v_accvgpr_read_b32 v%d, a%d" % (dst + qb, aL + 4 * qb))
    if SUM4 and reduce:
        for sw in ("v_permlane16_swap_b32", "v_permlane32_swap_b32"):
            for q in range(4):
                a("v_mov_b32 v%d, v%d" % (CLO + q, dst + q))
            for q in range(4):
                a("%s v%d, v%d" % (sw, dst + q, CLO + q))
            for q in range(4):
                a("v_add_f32 v%d, v%d, v%d" % (dst + q, dst + q, CLO + q))


def slow_path(a):
    frs = [v4(S1 + 4 * i) for i in range(16)]
    vM, vAl, t, u = vT, vT + 4, vT + 5, vT + 6
    a("s_waitcnt vmcnt(0)")
    P, L = qloads("s56")
    for x in P + L:
        a(x)
    zero_acc(a)
    for qb in range(4):
        a("v_mov_b32 v%d, v%d" % (vM + qb, vNEG))
    a("s_lshl_b32 s57, %s, 20" % sHead)
    a("s_lshl_b32 s58, s56, 7")
    a("s_lshl_b32 s59, s56, 1")
    a("s_add_u32 s59, s59, 2")
    Lp = a.newlabel("Lslow")
    a.label(Lp)
    for f in range(16):
        if f % 4 == 0:
            a("s_add_u32 s35, s57, %d" % (f * 1024))
        a("buffer_load_dwordx4 %s, v%d, s[12:15], s35 offen offset:%d sc1" % (frs[f], vLane, (f % 4) * 1024))
    set_mask(a, "s58")
    a("s_waitcnt vmcnt(0)")
    for kb in range(4):
        for qb in range(4):
            d = v4(S(0, kb, qb))
            for ds in range(4):
                c = d if ds else v4(CLO if kb < qb else (CDI if kb == qb else CUP))
                a(mfma(d, frs[4 * kb + ds], a4(aQ + 16 * qb + 4 * ds), c))
    a("s_nop 7")
    for f in range(16):
        if f % 4 == 0:
            a("s_add_u32 s35, s57, %d" % (16384 + f * 1024))
        a("buffer_load_dwordx4 %s, v%d, s[12:15], s35 offen offset:%d sc1" % (frs[f], vLane, (f % 4) * 1024))
    for qb in range(4):
        regs = [S(0, kb, qb) + r for kb in range(4) for r in range(4)]
        a("v_max3_f32 v%d, v%d, v%d, v%d" % (t, regs[0], regs[1], vM + qb))
        for i in range(2, 16, 2):
            a("v_max3_f32 v%d, v%d, v%d, v%d" % (t, t, regs[i], regs[i + 1]))
        a("v_mov_b32 v%d, v%d" % (u, t))
        a("v_permlane16_swap_b32 v%d, v%d" % (t, u))
        a("v_max_f32 v%d, v%d, v%d" % (t, t, u))
        a("v_mov_b32 v%d, v%d" % (u, t))
        a("v_permlane32_swap_b32 v%d, v%d" % (t, u))
        a("v_max_f32 v%d, v%d, v%d" % (t, t, u))
        a("v_sub_f32 v%d, v%d, v%d" % (vAl, vM + qb, t))
        a("v_exp_f32 v%d, v%d" % (vAl, vAl))
        a("v_mov_b32 v%d, v%d" % (vM + qb, t))
        for r in regs:
            a("v_sub_f32 v%d, v%d, v%d" % (r, r, t))
        for db in range(6):
            for e in range(4):
                r = OV + 4 * (4 * db + qb) + e
                a("v_mul_f32 v%d, v%d, v%d" % (r, r, vAl))
        for r in [aO + 4 * (4 * dd + qb) + e for dd in range(2) for e in range(4)] + [aL + 4 * qb + e for e in range(4)]:
            a("v_accvgpr_read_b32 v%d, a%d" % (u, r))
            a("v_mul_f32 v%d, v%d, v%d" % (u, u, vAl))
            a("v_accvgpr_write_b32 a%d, v%d" % (r, u))
    fl = FL.copy()
    FL.discard('noexp')
    for j in range(2):
        soft_plain(a, 0, j)
    FL.update(fl)
    a("s_waitcnt vmcnt(0)")
    for j in range(2):
        for qb in range(4):
            a(mfma(a4(aL + 4 * qb), a4(aONES), v4(S(0, 2 * j, qb)), a4(aL + 4 * qb)))
        for db in range(8):
            for qb in range(4):
                a(mfma(Oop(db, qb), frs[8 * j + db], v4(S(0, 2 * j, qb)), Oop(db, qb)))
    a("s_nop 7")
    a("s_add_u32 s57, s57, 32768")
    a("s_sub_u32 s58, s58, 64")
    a("s_sub_u32 s59, s59, 1")
    a("s_cmp_lg_u32 s59, 0")
    a("s_cbranch_scc1 %s" % Lp)
    read_l(a, CUP, False)
    finalize(a, "s56", range(4), None, [CUP + q for q in range(4)])


def dma_now(a, isV, slot):
    m0, pre, ld, post = dma(isV, slot)
    for x in [m0[0]] + pre + ld[:4] + [m0[1], "s_nop 0"] + ld[4:] + post:
        a(x)


def early_q(a):
    a("s_and_b32 %s, s2, 7" % sHead)
    a("s_lshr_b32 s33, s2, 6")
    a("s_lshl_b32 s33, s33, 3")
    a("s_add_u32 %s, %s, s33" % (sHead, sHead))
    a("s_bfe_u32 %s, s2, 0x30003" % sP)
    a("s_sub_u32 s35, 15, %s" % sP)
    a("s_cmp_lt_u32 s101, 2")
    a("s_cselect_b32 s35, %s, s35" % sP)
    a("s_lshl_b32 s33, %s, 7" % sHead)
    a("s_lshl_b32 s34, s35, 3")
    a("s_add_u32 s33, s33, s34")
    a("s_and_b32 s34, s101, 1")
    a("s_lshl_b32 s34, s34, 2")
    a("s_add_u32 s33, s33, s34")
    a("s_lshl_b32 s64, s33, 12")
    srd(a, 44, 4, 5, 16 * MB, WS_Q)


def early(a):
    a("s_mov_b32 %s, s101" % sWave)
    a("s_and_b32 %s, %s, 1" % (sU, sWave))
    a("s_lshr_b32 %s, %s, 1" % (sG, sWave))
    a("s_lshl_b32 s33, %s, 14" % sG)
    a("s_lshl_b32 s34, %s, 13" % sU)
    a("s_add_u32 %s, s33, s34" % sM0)
    a("s_lshl_b32 %s, %s, 20" % (sBase, sHead))
    a("s_add_u32 %s, %s, s34" % (sBase, sBase))
    a("s_mov_b32 %s, %s" % (sK, sBase))
    a("s_lshl_b32 s33, %s, 16" % sP)
    a("s_add_u32 s34, %s, s33" % sBase)
    a("s_add_u32 s34, s34, 65536")
    a("s_add_u32 s32, %s, %d" % (sBase, 15 * 32768))
    a("s_sub_u32 s33, s32, s33")
    a("s_add_u32 s33, s33, %d" % (15 * 32768))
    a("s_cmp_eq_u32 %s, 0" % sG)
    a("s_cselect_b32 %s, s34, s32" % sWrapK)
    a("s_cselect_b32 %s, s32, s33" % sBase)
    if SHARE:
        a("s_mov_b32 s56, %s" % sWrapK)
        a("s_mov_b32 s57, %s" % sBase)
        a("s_min_u32 s34, s34, s32")
        a("s_cmp_eq_u32 s34, s32")
        a("s_cselect_b32 s33, s33, s34")
        a("s_or_b32 s34, s34, 0x40000000")
        a("s_or_b32 s32, %s, 0x40000000" % sK)
        a("s_cmp_eq_u32 %s, 1" % sG)
        a("s_cselect_b32 %s, s32, %s" % (sK, sK))
        a("s_cselect_b32 %s, s34, %s" % (sWrapK, sWrapK))
        a("s_cselect_b32 %s, s33, %s" % (sBase, sBase))
        a("s_cselect_b32 s56, s56, -1")
        a("s_add_u32 s58, s56, 16384")
        a("s_add_u32 s59, s57, 16384")
    a("s_add_u32 %s, %s, 16384" % (sV, sK))
    a("s_add_u32 s62, %s, 16384" % sWrapK)
    a("s_add_u32 s63, %s, 16384" % sBase)
    a("s_lshl_b32 %s, %s, 7" % (sRT, sP))
    a("s_cmp_eq_u32 %s, 0" % sG)
    a("s_cselect_b32 %s, %s, 960" % (sRT, sRT))
    a("s_mov_b32 %s, 0" % sFlag)
    srd(a, 12, 4, 5, 32 * MB, WS_KV)
    srd(a, 8, 4, 5, 16 * MB, WS_Q)


def dma_units(isV, slot, tag):
    m0, pre, ld, post = dma(isV, slot)
    return [[m0[0]] + pre + [ld[0]], [ld[1]], [ld[2]], [ld[3]], [m0[1], "s_nop 0", ld[4]], [ld[5]], [ld[6]], [ld[7]], post]


def early_loads():
    P, L = qloads("s35")
    Q = []
    for x in L:
        x = x.replace("s33", "s64").replace("s[8:11]", "s[44:47]")
        if x.startswith("s_"):
            Q[-1].append(x)
        else:
            Q.append([x + " ;@vm q0"])
    return Q, dma_units(False, 2, "k0"), dma_units(False, 0, "k1") + dma_units(True, 1, "v0")


def main(a, publish_b):
    tl = TL(a, 1, 4, 'tl' in FL)
    tl.early()
    srd(a, 16, 4, 5, 16 * MB, WS_CTX)
    srd(a, 52, 4, 5, FLG_END, WS_XCH)
    a("s_mov_b32 s46, %d\ns_mov_b32 s47, 0x00020000\ns_mov_b32 s50, %d\ns_mov_b32 s51, 0x00020000" % (8 * MB, 2 * MB))
    a("s_lshl_b32 s33, %s, 14" % sG)
    a("v_add_u32 v%d, %s, v%d" % (vRd, "0" if SHARE else "s33", vLane))
    a("v_add_u32 v%d, 0x10000, v%d" % (vRd + 1, vRd))
    a("v_mov_b32 v%d, v%d" % (vRdV, vRd))
    a("v_mov_b32 v%d, v%d" % (vRdV + 1, vRd + 1))
    a("v_and_b32 v%d, 15, v0" % vT)
    a("v_bfe_u32 v%d, v0, 4, 2" % (vT + 1))
    a("v_lshlrev_b32 v%d, 2, v%d" % (vT + 1, vT + 1))
    a("v_sub_u32 v%d, v%d, v%d" % (vT, vT, vT + 1))
    a("v_mov_b32 v%d, 0xf149f2ca" % vNEG)
    for r in range(4):
        a("v_cmp_gt_i32 vcc, %d, v%d" % (r, vT))
        a("v_cndmask_b32 v%d, 0, v%d, vcc" % (TRI + r, vNEG))
    a("v_mov_b32 v%d, 0x3f803f80" % vT)
    for i in range(4):
        a("v_accvgpr_write_b32 a%d, v%d" % (aONES + i, vT))
    set_mask(a, sRT)
    a("v_mov_b32 v%d, 0" % (vT + 4))
    a("v_mov_b32 v%d, 1" % (vT + 5))
    a("s_barrier")
    tl.stamp(1, vT + 2, sWave)
    for f in range(2 * LEAD):
        a(rd(f, 1))
    phase(a, qk_mfmas(0, True), 0, 1, 0, 0, None, None, None, "kv0,kv1" if BAR1 else "kv0", QK_NEED)
    publish_b(vT + 4, vT + 5)
    if not BAR1:
        dma_now(a, False, 2)
    soft_plain(a, 0, 0)
    a("s_cmp_eq_u32 %s, 1" % sG)
    a("s_cbranch_scc1 Lk2_g1 ;@keep")
    a("s_mov_b32 %s, %s" % (sCnt, sP))
    a("s_cmp_eq_u32 %s, 0" % sP)
    a("s_cbranch_scc1 Lk2_m2 ;@keep")
    a.label("Lk2_l1", keep=True)
    body(a, 0)
    a("s_sub_u32 %s, %s, 1" % (sCnt, sCnt))
    a("s_cmp_eq_u32 %s, 0" % sCnt)
    a("s_cbranch_scc1 Lk2_m1 ;@keep")
    body(a, 1)
    a("s_branch Lk2_l1 ;@keep")
    P, QL = qloads("s35", aQ2)

    def q2():
        a("s_sub_u32 s35, 15, %s" % sP)
        for x in P + QL:
            a(x + (" ;@vm q2" if x.startswith("buffer") else ""))
    if SKIP:
        a.label("Lk2_m1", keep=True)
        a("s_cmp_eq_u32 %s, 1" % sU)
        a("s_cbranch_scc1 Lk2_m1b ;@keep")
        body(a, 1, tq='T')
        a.label("Lk2_m2a", keep=True)
        q2()
        body(a, 0, tq='Z', tp='T')
        a(";@waitvm q2")
        body(a, 1, q=aQ2, tp='Z')
        a("s_branch Lk2_ea ;@keep")
        a.label("Lk2_m2", keep=True)
        a(PEND)
        a("s_cmp_eq_u32 %s, 0" % sU)
        a("s_cbranch_scc1 Lk2_m2a ;@keep")
        a("s_branch Lk2_m2b ;@keep")
        a.label("Lk2_m1b", keep=True)
        a(PEND)
        body(a, 1)
        a.label("Lk2_m2b", keep=True)
        q2()
        body(a, 0, tq='T')
        a(";@waitvm q2")
        body(a, 1, q=aQ2, tp='T')
        a.label("Lk2_ea", keep=True)
    else:
        a.label("Lk2_m1", keep=True)
        body(a, 1, masked="0")
        a.label("Lk2_m2", keep=True)
        q2()
        body(a, 0, masked="-64")
        a(";@waitvm q2")
        body(a, 1, q=aQ2)
    tl.stamp(4, vT + 2, sWave)
    read_l(a, CUP)
    finalize(a, sP, range(4), 1, [CUP + q for q in range(4)])
    tl.stamp(5, vT + 2, sWave)
    a(PEND)
    a("s_sub_u32 %s, 7, %s" % (sCnt, sP))
    a("s_cmp_lg_u32 %s, 0" % sCnt)
    a("s_cbranch_scc1 Lk2_b0 ;@keep")
    fin(a, True, 0, 0)
    a("s_branch Lk2_merge")
    a.label("Lk2_b0", keep=True)
    a(PEND)
    body(a, 0, q=aQ2, first=True)
    a("s_branch Lk2_l2b ;@keep")
    a.label("Lk2_l2", keep=True)
    body(a, 0, q=aQ2)
    a.label("Lk2_l2b", keep=True)
    body(a, 1, q=aQ2)
    a("s_sub_u32 %s, %s, 1" % (sCnt, sCnt))
    a("s_cmp_lg_u32 %s, 0" % sCnt)
    a("s_cbranch_scc1 Lk2_l2 ;@keep")
    a.label("Lf0", keep=True)
    fin(a, False, 0, 1)
    a.label("Lk2_merge")
    tl.stamp(2, vT + 2, sWave)
    merge(a, 0)
    a("s_branch Lk2_chk")
    if 'k2nowarm' not in FL:
        a.label("Lk2_wm")
        a("s_lshl_b32 s33, s2, 1")
        a("s_add_u32 s33, s33, %s" % sU)
        a("s_lshl_b32 s34, s33, 12")
        a("s_lshl_b32 s33, s33, 14")
        a("v_lshlrev_b32 v%d, 3, v%d" % (vT, vLane))
        a("v_lshlrev_b32 v%d, 2, v%d" % (vT + 1, vLane))
        a("buffer_load_dword a244, v%d, s[44:47], s33 offen ;@cond" % vT)
        a("s_add_u32 s33, s33, 8192")
        a("buffer_load_dword a245, v%d, s[44:47], s33 offen ;@cond" % vT)
        a("buffer_load_dword a246, v%d, s[48:51], s34 offen ;@cond" % (vT + 1))
        a("s_branch Lk2_l3b")
        if 'g' in TCH:
            a.label("Lk2_gt")
            a("s_sub_u32 s39, s101, 2")
            for k, w in enumerate(("s101", "s39")):
                for x in code_touch("Lg1m", "Lk2_chk", vT, "a%d" % (249 + k), 36, w, "g%d" % k) + \
                        code_touch("Lf0", "Lk2_wm", vT, "a%d" % (251 + k), 36, w, "h%d" % k, back=True):
                    a(x + (" ;@cond" if x.startswith("global") else ""))
            a("s_branch Lk2_l3b")
    a.label("Lk2_g1", keep=True)
    a(PEND)
    tl.stamp(20)
    a(PEND)
    a("s_mov_b32 %s, 7" % sCnt)
    a("s_bfe_u32 s65, s2, 0x20003")
    a("s_add_u32 s65, s65, 2")
    if SHARE:
        a("s_lshl_b32 %s, %s, 1" % (sD, sP))
        a("s_min_u32 %s, %s, 13" % (sD, sD))
        a("s_add_u32 %s, %s, 2" % (sD, sD))
        for y in kflip(1):
            a(y)
        a("s_sub_u32 %s, %s, 1" % (sD, sD))
    a.label("Lk2_l3", keep=True)
    if 'k2nowarm' not in FL:
        a("s_cmp_eq_u32 %s, s65" % sCnt)
        a("s_cbranch_scc1 Lk2_wm ;@keep")
        if 'g' in TCH:
            a("s_cmp_eq_u32 %s, 1" % sCnt)
            a("s_cbranch_scc1 Lk2_gt ;@keep")
        a.label("Lk2_l3b", keep=True)
    body(a, 0, g1=True)
    body(a, 1, g1=True)
    a("s_sub_u32 %s, %s, 1" % (sCnt, sCnt))
    a("s_cmp_lg_u32 %s, 0" % sCnt)
    a("s_cbranch_scc1 Lk2_l3 ;@keep")
    tl.stamp(21)
    a.label("Lg1m", keep=True)
    if SKIP:
        a("s_cmp_eq_u32 %s, 1" % sU)
        a("s_cbranch_scc1 Lk2_g1b ;@keep")
        otouch(a, 0)
        body(a, 0, g1=True, tq='T')
        body(a, 1, g1=True, tq='Z', tp='T')
        fin(a, False, 1, 3, 'Z')
        a("s_branch Lk2_mg1")
        a.label("Lk2_g1b", keep=True)
        a(PEND)
        otouch(a, 1)
        body(a, 0, g1=True)
        body(a, 1, g1=True, tq='T')
        fin(a, False, 1, 2, 'T')
        a.label("Lk2_mg1")
    else:
        body(a, 0, masked="0", g1=True)
        body(a, 1, masked="-64", g1=True)
        tl.stamp(22)
        fin(a, False, 1, 2)
    tl.stamp(2, vT + 2, sWave)
    merge(a, 1)
    a.label("Lk2_chk")
    a("s_cmp_eq_u32 %s, 0" % sFlag)
    a("s_cbranch_scc1 Lk2_done")
    a("s_sub_u32 s56, 15, %s" % sP)
    a("s_lshl_b32 s33, %s, 1" % sG)
    a("s_lshl_b32 s61, 3, s33")
    a("s_and_b32 s34, %s, 2" % sFlag)
    a("s_bitcmp1_b32 %s, 0" % sFlag)
    a("s_cselect_b32 s56, %s, s56" % sP)
    a("s_cselect_b32 s61, 15, s61")
    a("s_cselect_b32 %s, s34, 0" % sFlag)
    slow_path(a)
    a("s_branch Lk2_chk")
    a.label("Lk2_done")
    tl.stamp(6, vT + 2, sWave)
    tl.dump(vT + 2, sWave, envi("TLW", 0))
    a("s_lshl_b32 s33, %s, 4" % sHead)
    a("s_add_u32 s33, s33, %d" % FLG_T)
    a("s_sub_u32 s34, 15, %s" % sP)
    a("s_lshl_b32 s34, s34, 9")
    a("s_add_u32 s92, s33, s34")
    a("s_lshl_b32 s34, %s, 2" % sWave)
    a("s_add_u32 s92, s92, s34")
    a("s_lshl_b32 s34, %s, 9" % sP)
    a("s_add_u32 s93, s33, s34")
    a("s_lshl_b32 s34, %s, 3" % sU)
    a("s_add_u32 s93, s93, s34")
    a("s_cmp_eq_u32 %s, 0" % sG)
    a("s_cselect_b32 s93, s93, s92")
    a("s_cselect_b32 s94, 4, 0")
    a("s_add_u32 s94, s94, s93")

    def publish(vZ, vOne):
        a("s_mov_b64 exec, 1")
        for so in ("s92", "s93", "s94"):
            a("buffer_store_dword v%d, v%d, %s, %s offen sc1" % (vOne, vZ, k3.FS, so))
        a("s_mov_b64 exec, -1")
    tl3 = TL(a, 2, 4, 'tl' in FL)
    tl3.early()
    k3.main(a, tl3, publish)
```

```python
from asmlib import Asm, Col, srd, v4, v2
from common import *

vLane, vWdA, vWdB, vWrA, vWrB = 1, 2, 6, 8, 24
ACCA, WF = 32, 160
aB, aW1, aX = 0, 32, 96
NX = 5
vT = 232
RCV = PAY = 192
NS = 8
D = envi('K3D', 3)
NE = 2
T0 = 1
N1 = envi("K3N1", 7)
NAS = 16
TA, TB, TE = T0 + N1, T0 + N1 + NAS, T0 + 16 + NAS
sWave, sXa, sWo, sCnt = "s101", "s25", "s26", "s28"
sMA, sNA, sMB, sNB = "s29", "s30", "s21", "s22"
SF = os.environ.get("K3SF", "")
XS, WS_, FS = "s[44:47]", "s[48:51]", "s[52:55]"


def isA(t):
    return TA <= t < TB


def a4(b):
    return "a[%d:%d]" % (b, b + 3)


def mfma(d, a_, b_, c):
    return "v_mfma_f32_16x16x32_bf16 %s, %s, %s, %s" % (d, a_, b_, c)


def xf(t, mi, ks):
    return a4(aX + 32 * ((t + 3 - T0) % NX) + 8 * mi + 4 * ks)


def wreg(t, ni, ks, n):
    r = 8 * ni + 4 * ks
    return ("a[%d:%d]" % (aW1 + r, aW1 + r + n - 1)) if t % 2 else ("v[%d:%d]" % (WF + r, WF + r + n - 1))


def loads(t, wd=vWdB):
    tag = " ;@vm s%d" % (t % NS)
    if isA(t):
        U = [(["s_add_u32 m0, s41, %d" % ((t % NS) * 16384)] if j == 0 else []) +
             ["buffer_load_dwordx4 v%d, %s, %s offen offset:%d lds%s" % (vWdA + j, WS_, sWo, j * 1024, tag)] for j in range(4)]
    else:
        U = [(["s_add_u32 m0, s42, %d" % ((t % NS) * 16384)] if j == 0 else []) +
             ["buffer_load_dwordx4 v%d, %s, %s offen offset:%d lds%s" % (wd + j, WS_, sWo, j * 1024, tag)] for j in range(2)]
    U += [["buffer_load_dwordx4 %s, v%d, %s, %s offen offset:%d sc1%s" % (xf(t, j >> 1, j & 1), vLane, XS, sXa, j * 1024, tag)] for j in range(4)]
    if isA(t):
        U += [(["s_add_u32 s63, %s, 4096" % sXa] if j == 4 else []) +
              ["buffer_load_dwordx4 %s, v%d, %s, s63 offen offset:%d sc1%s" % (xf(t, j >> 1, j & 1), vLane, XS, (j - 4) * 1024, tag)] for j in range(4, 8)]
    if isA(t):
        U.append(["s_sub_u32 s39, s39, 1", "s_cmp_eq_u32 s39, 0", "s_cselect_b32 s3, s64, s65"])
        U.append(["s_add_u32 %s, %s, s3" % (sXa, sXa), "s_lshl_b32 s3, s3, 3", "s_add_u32 %s, %s, s3" % (sWo, sWo)])
    else:
        U.append(["s_add_u32 %s, %s, 16384" % (sXa, sXa), "s_add_u32 %s, %s, %d" % (sWo, sWo, 64 * 2048)])
    return U


TO_A = ["s_mov_b32 s32, %s" % sXa, "s_mov_b32 s33, %s" % sWo, "s_mov_b64 s[34:35], s[44:45]", "s_mov_b64 s[36:37], s[48:49]",
        "s_mov_b64 s[44:45], s[8:9]", "s_mov_b32 s46, %d" % (16 * MB), "s_mov_b64 s[48:49], s[10:11]", "s_mov_b32 s50, %d" % (8 * MB),
        "s_mov_b32 %s, s12" % sXa, "s_mov_b32 %s, s13" % sWo]
TO_B = ["s_mov_b64 s[44:45], s[34:35]", "s_mov_b32 s46, %d" % (4 * MB), "s_mov_b64 s[48:49], s[36:37]", "s_mov_b32 s50, %d" % (2 * MB),
        "s_mov_b32 %s, s32" % sXa, "s_mov_b32 %s, s33" % sWo]


def half(r, j):
    b = int(r[2:r.index(":")]) + 2 * j
    return "%s[%d:%d]" % (r[0], b, b + 1)


def reads(t):
    L = []
    sl = t % NS
    A = isA(t)
    for ni in range(8 if A else 4):
        for ks in range(2):
            for j in range(2):
                base = (vWrA + 8 * (sl >> 2) if A else vWrB + 4 * (sl >> 2)) + ni
                L.append("ds_read_b64_tr_b16 %s, v%d offset:%d" % (half(wreg(t, ni, ks, 4), j), base, (sl & 3) * 16384 + (ks * 32 + j * 16) * (256 if A else 128)))
    return L


def step(a, t, vm=None, tags="", post_bar=None, mem=None, at=None):
    A = isA(t)
    NI = 8 if A else 4
    M = []
    for mi in range(4 if A else 2):
        for ni in range(NI):
            d = v4(ACCA + 32 * mi + 4 * ni) if A else a4(aB + 16 * mi + 4 * ni)
            for n, ks in enumerate((0, 1) if ni % 2 == 0 else (1, 0)):
                M.append(mfma(d, wreg(t, ni, ks, 4), xf(t, mi, ks), "0" if (t in (T0, TA) and n == 0) else d))
    n = len(M)
    G = [[] for _ in range(n)]
    if t + 1 < TE:
        HB = envi("K3HB", 0)
        lo, hi = (TA, TB - 2) if HB == 1 else ((T0 + 2, TE - 2) if HB == 2 else (0, 0))
        if lo <= t < hi and (t - TA) % 2 == 1 and not tags and not post_bar:
            a("s_waitcnt lgkmcnt(0)")
        else:
            two = lo <= t + 1 < hi and (t + 1 - TA) % 2 == 1
            a(";@waitvm s%d%s lgkmcnt(0)" % ((t + (2 if two else 1)) % NS, tags))
            a("s_barrier ;@keep")
        if post_bar:
            post_bar()
        R = reads(t + 1)
        U = loads(t + 1 + D) if t + 1 + D < TE else []
        if t + 1 + D == TA:
            U[0] = TO_A + U[0]
        if t + 1 + D == TB:
            U[0] = TO_B + U[0]
        U = U + (mem or [])
        nr = len(R) // 2
        slots = [R[2 * i:2 * i + 2] for i in range(nr)]
        order = []
        for i in range(max(nr, len(U))):
            if i < len(U):
                order.append(U[i])
            if i < nr:
                order.append(slots[i])
        for i, u in enumerate(order):
            G[(i * (n - 2)) // len(order)] += u
    else:
        a("s_waitcnt lgkmcnt(0)")
    for g, u in (at or {}).items():
        G[g] += u
    for i in range(n):
        a(M[i])
        for y in G[i]:
            a(y)


def epilogue(a, isB, T):
    a("v_bfe_u32 v%d, v0, 4, 1" % T)
    a("v_lshrrev_b32 v%d, 5, v0" % (T + 1))
    a("v_lshl_or_b32 v%d, v%d, 1, v%d" % (T, T, T + 1))
    a("v_and_b32 v%d, 15, v0" % (T + 1))
    a("v_lshlrev_b32 v%d, %d, v%d" % (T + 1, 13 if isB else 12, T + 1))
    a("v_lshl_add_u32 v%d, v%d, 4, v%d" % (T, T, T + 1))
    if isB:
        a("s_and_b32 s3, %s, 1" % sWave)
        a("s_lshl_b32 s3, s3, 6")
        a("s_lshr_b32 s6, %s, 1" % sWave)
        a("s_add_u32 s3, s3, s6")
    else:
        a("s_lshl_b32 s3, %s, 6" % sWave)
    a("s_add_u32 s3, s3, %s" % (sMB if isB else sMA))
    a("s_lshl_b32 s3, s3, 12")
    a("s_lshl_b32 s6, %s, 1" % (sNB if isB else sNA))
    a("s_add_u32 s3, s3, s6")
    if isB:
        a("s_add_u32 s3, s3, 2048")
    else:
        a("s_mov_b32 s6, 0x00003f80")
        a("s_mov_b32 s7, 0x3f800000")
    for k in range(4):
        u = T + 4 + 4 * (k & 1)
        if isB:
            r = T + 12
            for e in range(8):
                a("v_accvgpr_read_b32 v%d, a%d" % (r + e, aB + 8 * k + e))
        else:
            r = ACCA + 32 * k
            for pn in range(3):
                for e in range(4):
                    src = PAY + 16 * pn + 4 * k + e
                    a("v_dot2_f32_bf16 v%d, v%d, s6, v%d" % (r + 2 * e, src, r + 2 * e))
                    a("v_dot2_f32_bf16 v%d, v%d, s7, v%d" % (r + 2 * e + 1, src, r + 2 * e + 1))
        a("v_cvt_pk_bf16_f32 v%d, v%d, v%d" % (u, r, r + 1))
        a("v_cvt_pk_bf16_f32 v%d, v%d, v%d" % (u + 1, r + 2, r + 3))
        a("v_cvt_pk_bf16_f32 v%d, v%d, v%d" % (u + 2, r + 4, r + 5))
        a("v_cvt_pk_bf16_f32 v%d, v%d, v%d" % (u + 3, r + 6, r + 7))
        a("v_permlane16_swap_b32 v%d, v%d" % (u, u + 2))
        a("v_permlane16_swap_b32 v%d, v%d" % (u + 1, u + 3))
        a("buffer_store_dwordx4 %s, v%d, s[16:19], s3 offen offset:%d %s" % (v4(u), T, (k & 1) * 64 if isB else 0, SF))
        if (k == 1 if isB else k < 3):
            a("s_add_u32 s3, s3, %d" % ((32 if isB else 16) * 4096))


def wdB(a, dst, T):
    a("s_lshl_b32 s3, %s, 4" % sWave)
    a("v_lshrrev_b32 v%d, 3, v0" % T)
    a("v_and_b32 v%d, 6, v%d" % (T + 1, T))
    a("v_and_b32 v%d, 7, v0" % (T + 2))
    a("v_xor_b32 v%d, v%d, v%d" % (T + 1, T + 1, T + 2))
    a("v_add_u32 v%d, s3, v%d" % (T, T))
    a("v_lshlrev_b32 v%d, 11, v%d" % (T, T))
    a("v_lshl_add_u32 v%d, v%d, 4, v%d" % (dst, T + 1, T))
    a("v_add_u32 v%d, %d, v%d" % (dst + 1, 8 * 2048 - 1024, dst))


def spin(a, name, back, vdst, vaddr, soff, allones):
    a.label(name)
    a("s_add_u32 s61, s61, 1")
    a("s_cmp_gt_u32 s61, %d" % envi("SPINMAX", 0x100000))
    a("s_cbranch_scc1 %s" % back)
    a("s_sleep %d" % envi("SLP", 2))
    a("buffer_load_dword v%d, v%d, %s, %s offen sc1" % (vdst, vaddr, FS, soff))
    a("s_waitcnt vmcnt(0)")
    a("v_cmp_ne_u32 vcc, 1, v%d" % vdst)
    a("s_cbranch_vccnz %s" % name)
    a("s_branch %s" % back)


def poll_b(a):
    a("s_and_b32 s3, s2, 3")
    a("s_lshl_b32 s3, s3, 2")
    a("s_bfe_u32 s27, s2, 0x20003")
    a("s_add_u32 s27, s3, s27")
    a("s_lshl_b32 s43, s27, 8")
    a("s_add_u32 s43, s43, %d" % FLG_B)
    a("v_lshlrev_b32 v15, 2, v0")
    a("buffer_load_dword v7, v15, %s, s43 offen sc1 ;@vm pb" % FS)


def early(T, g):
    a = Col()
    a("s_mov_b32 s61, 0")
    a("s_bfe_u32 s3, s2, 0x10002")
    a("s_lshl_b32 s3, s3, 3")
    a("s_lshr_b32 s28, s2, 5")
    a("s_add_u32 s28, s3, s28")
    a("s_lshl_b32 %s, s27, 18" % sXa)
    a("s_lshl_b32 s3, %s, 12" % sWave)
    a("s_add_u32 %s, %s, s3" % (sXa, sXa))
    a("s_lshl_b32 %s, s28, 7" % sWo)
    a("s_lshl_b32 s42, %s, 11" % sWave)
    srd(a, 44, 4, 5, 4 * MB, WS_OB)
    a("s_mov_b32 s50, %d\ns_mov_b32 s51, 0x00020000" % (2 * MB))
    wdB(a, T + 3, T)
    post = [["v_cmp_ne_u32 vcc, 1, v7", "s_cbranch_vccnz Lk3_spinb%d ;@keep" % g, "Lk3_gotb%d: ;@keep" % g]]
    for st in range(T0, T0 + NE):
        for u in loads(st, T + 3):
            post.append(u)
    return a.atoms(1), post


def main(a, tl, publish):
    T = vT
    a("s_load_dwordx2 s[10:11], s[0:1], 40")
    a("s_load_dwordx2 s[14:15], s[0:1], 72")
    a("s_lshl_b32 %s, s27, 7" % sMB)
    a("s_lshl_b32 %s, s28, 6" % sNB)
    wdB(a, vWdB, T)
    for st in range(T0 + NE, T0 + D + 1):
        for u in loads(st):
            for x in u:
                a(x)
    a("v_lshrrev_b32 v%d, 2, v0" % T)
    a("v_and_b32 v%d, 1, v0" % (T + 2))
    a("v_bfe_u32 v%d, v0, 1, 1" % (T + 5))
    a("v_lshlrev_b32 v%d, 7, v%d" % (T + 1, T))
    a("v_lshl_add_u32 v%d, v%d, 3, v%d" % (T + 1, T + 2, T + 1))
    a("v_and_b32 v%d, 6, v%d" % (T + 4, T))
    for ni in range(4):
        a("v_add_u32 v%d, %d, v%d" % (T + 3, 2 * ni, T + 5))
        a("v_xor_b32 v%d, v%d, v%d" % (T + 3, T + 3, T + 4))
        a("v_lshl_add_u32 v%d, v%d, 4, v%d" % (vWrB + ni, T + 3, T + 1))
        a("v_add_u32 v%d, 0x10000, v%d" % (vWrB + 4 + ni, vWrB + ni))
    a(";@waitvm s%d" % (T0 % NS))
    a("s_barrier")
    tl.stamp(1)
    for x in reads(T0):
        a(x)
    a("s_and_b32 s40, s2, 3")
    a("s_bfe_u32 s36, s2, 0x30003")
    a("s_lshl_b32 %s, s36, 8" % sMA)
    a("s_bfe_u32 s3, s2, 0x10002")
    a("s_lshl_b32 s3, s3, 2")
    a("s_lshr_b32 s37, s2, 6")
    a("s_add_u32 s3, s3, s37")
    a("s_lshl_b32 s13, s3, 8")
    a("s_lshl_b32 %s, s3, 7" % sNA)
    a("s_lshl_b32 s3, s40, 5")
    a("s_add_u32 %s, %s, s3" % (sNA, sNA))
    a("s_lshl_b32 s41, %s, 12" % sWave)
    a("s_lshl_b32 s12, s36, 21")
    a("s_lshr_b32 s3, %s, 1" % sWave)
    a("s_lshl_b32 s3, s3, 20")
    a("s_add_u32 s12, s12, s3")
    a("s_and_b32 s3, %s, 1" % sWave)
    a("s_lshl_b32 s3, s3, 13")
    a("s_add_u32 s12, s12, s3")
    a("s_lshl_b32 s62, s36, 10")
    a("s_lshl_b32 s3, s40, 7")
    a("s_add_u32 s62, s62, s3")
    a("s_add_u32 s62, s62, %d" % FLG_T)
    a("s_bfe_u32 s3, s2, 0x10002")
    a("s_lshl_b32 s3, s3, 3")
    a("s_sub_u32 s39, 16, s3")
    a("s_lshl_b32 s38, s40, 4")
    a("s_add_u32 s3, s3, s38")
    a("s_lshl_b32 s3, s3, 14")
    a("s_add_u32 s12, s12, s3")
    a("s_lshl_b32 s3, s3, 3")
    a("s_add_u32 s13, s13, s3")
    a("s_mov_b32 s64, %d" % ((16384 - 16 * 16384) & 0xffffffff))
    a("s_mov_b32 s65, 16384")
    a("s_add_u32 s8, s4, %d" % WS_CTX)
    a("s_addc_u32 s9, s5, 0")
    a("s_lshl_b32 s56, s2, 16")
    a("s_lshl_b32 s38, %s, 14" % sWave)
    a("s_add_u32 s56, s56, s38")
    a("s_lshl_b32 s58, s2, 4")
    a("s_lshl_b32 s38, %s, 2" % sWave)
    a("s_add_u32 s58, s58, s38")
    a("s_add_u32 s58, s58, %d" % FLG)
    a("s_and_b32 s59, s58, 0xffffffcf")
    a("s_mov_b32 s61, 0")
    U = T + 8
    a("s_lshl_b32 s3, %s, 4" % sWave)
    a("v_lshrrev_b32 v%d, 4, v0" % U)
    a("v_and_b32 v%d, 15, v0" % (U + 2))
    for j in range(4):
        a("v_add_u32 v%d, %d, v%d" % (U + 1, 4 * (j & 1), U))
        a("v_lshlrev_b32 v%d, 1, v%d" % (U + 1, U + 1))
        a("v_xor_b32 v%d, v%d, v%d" % (U + 1, U + 1, U + 2))
        a("v_add_u32 v%d, s3, v%d" % (U + 3, U))
        a("v_lshlrev_b32 v%d, 11, v%d" % (U + 3, U + 3))
        a("v_lshl_add_u32 v%d, v%d, 4, v%d" % (U + 3, U + 1, U + 3))
        a("v_add_u32 v%d, %d, v%d" % (vWdA + j, 4 * j * 2048 - j * 1024, U + 3))
    a("v_lshlrev_b32 v%d, 8, v%d" % (T + 1, T))
    a("v_lshl_add_u32 v%d, v%d, 3, v%d" % (T + 1, T + 2, T + 1))
    a("v_and_b32 v%d, 7, v%d" % (T + 4, T))
    a("v_lshlrev_b32 v%d, 1, v%d" % (T + 4, T + 4))
    a("s_lshl_b32 s38, s40, 2")
    a("v_xor_b32 v%d, s38, v%d" % (T + 4, T + 4))
    for ni in range(8):
        a("v_add_u32 v%d, %d, v%d" % (T + 3, 2 * ni, T + 5))
        a("v_xor_b32 v%d, v%d, v%d" % (T + 3, T + 3, T + 4))
        a("v_lshl_add_u32 v%d, v%d, 4, v%d" % (vWrA + ni, T + 3, T + 1))
        a("v_add_u32 v%d, 0x10000, v%d" % (vWrA + 8 + ni, vWrA + ni))
    vP, vZ, vO1, vL4 = 252, 253, 254, 255
    a("v_mov_b32 v%d, 0" % vZ)
    a("v_mov_b32 v%d, 1" % vO1)
    a("v_and_b32 v%d, 31, v0" % vL4)
    a("v_lshlrev_b32 v%d, 2, v%d" % (vL4, vL4))
    a("v_lshrrev_b32 v%d, 5, v0" % vP)
    a("v_lshl_add_u32 v%d, v%d, 9, v%d" % (vL4, vP, vL4))
    a("s_waitcnt lgkmcnt(0)")
    srd(a, 16, 14, 15, 8 * MB)
    vF = vWrA

    def send(mi, pn):
        r = ACCA + 32 * mi + 8 * pn
        return (["v_cvt_pk_bf16_f32 v%d, v%d, v%d" % (r + e, r + 2 * e, r + 2 * e + 1) for e in range(4)],
                ["s_add_u32 s60, s56, %d" % (pn * 4096),
                 "buffer_store_dwordx4 %s, v%d, %s, s60 offen offset:%d sc1 ;@vm xs" % (v4(r), vLane, FS, mi * 1024)])

    def flag():
        a(";@waitvm xs")
        a("s_mov_b64 exec, 1")
        a("buffer_store_dword v%d, v%d, %s, s58 offen sc1" % (vO1, vZ, FS))
        a("s_mov_b64 exec, -1")

    def check(reg, name):
        def f():
            a(";@waitvm " + name)
            a("v_cmp_ne_u32 vcc, 1, v%d" % reg)
            a("s_cbranch_vccnz Lk3_spin%s ;@keep" % name)
            a.label("Lk3_got%s" % name, keep=True)
        return f

    def recv(pn):
        return [(["s_xor_b32 s60, s56, %d" % (pn << 16), "s_add_u32 s60, s60, %d" % (pn * 4096)] if mi == 0 else []) +
                ["buffer_load_dwordx4 %s, v%d, %s, s60 offen offset:%d sc1 ;@vm pay" % (v4(RCV + 16 * (pn - 1) + 4 * mi), vLane, FS, mi * 1024)] for mi in range(4)]
    TC = TA - 1 - D
    TPUB = T0 + envi("K3PUB", 0)
    TF, TP = TB + envi("K3TF", 1), TE - envi("K3TP", 2)
    assert TF < TP - 1
    t = T0
    while t < TE:
        a(";@wtphase %d" % (7 if t < TA else (8 if t < TB else 9)))
        if t == TA:
            tl.stamp(5)
        if t == TB:
            tl.stamp(2)
        kw = {}
        if t == TPUB:
            kw['post_bar'] = lambda: (a(";@waitvm cs"), publish(vZ, vO1))
        if t == TC - 1:
            kw['mem'] = [["buffer_load_dword v%d, v%d, %s, s62 offen sc1 ;@vm ft" % (vP, vL4, FS)]]
        if t == TC:
            kw['post_bar'] = check(vP, "ft")
        if t == TA + 7:
            a.label("Lo2", keep=True)
        if t == TA + 2 and 'f' in os.environ.get("TCH", "abcdefg"):
            kw['at'] = {40: code_touch("Lo2", "Lc3", 250, "v251", 92, sWave, "f")}
        if t == TB - 1:
            kw['at'] = {}
            for mi in range(3):
                for pn in range(1, 4):
                    c, st = send(mi, pn)
                    g = 16 * (mi + 1) + 5 * pn - 3
                    kw['at'][g] = c[:2]
                    kw['at'][g + 1] = c[2:]
                    kw['at'][g + 3] = st
        if t == TB:
            kw['mem'] = [send(3, pn)[0] + send(3, pn)[1] for pn in range(1, 4)] + \
                [["v_and_b32 v%d, 3, v0" % (vF + 3), "v_lshlrev_b32 v%d, 4, v%d" % (vF + 3, vF + 3)]]
        if t == TF:
            kw['post_bar'] = flag
        if t == TP - 1:
            kw['mem'] = [["buffer_load_dword v%d, v%d, %s, s59 offen sc1 ;@vm fl" % (vF, vF + 3, FS)]]
        if t == TP:
            kw['post_bar'] = check(vF, "fl")
            kw['mem'] = recv(1) + recv(2) + recv(3)
        step(a, t, **kw)
        tl.stamp(100 + t)
        t += 1
    assert TPUB < TC
    tl.stamp(4)
    epilogue(a, True, vWrA)
    epilogue(a, False, vWrA)
    if tl.on:
        a("s_waitcnt vmcnt(0)")
    tl.stamp(3)
    tl.dump(vWrA, sWave)
    a("s_endpgm")
    for g in range(3 if 'noskip' in FL else 4):
        a.label("Lk3_spinb%d" % g)
        spin(a, "Lk3_spinb%d_" % g, "Lk3_gotb%d" % g, 7, 15, "s43", True)
    spin(a, "Lk3_spinft", "Lk3_gotft", vP, vL4, "s62", True)
    spin(a, "Lk3_spinfl", "Lk3_gotfl", vF, vF + 3, "s59", False)
```
